```python
import torch

def _softmax(x, axis=-1):
    return torch.softmax(x, dim=axis)
def _gelu(x):
    return torch.nn.functional.gelu(x, approximate="tanh")
def _silu(x):
    return torch.nn.functional.silu(x)
def _sigmoid(x):
    return torch.sigmoid(x)
def _layernorm(x, axis=-1, eps=1e-5):
    m = x.mean(dim=axis, keepdim=True)
    v = x.var(dim=axis, keepdim=True, unbiased=False)
    return (x - m) / torch.sqrt(v + eps)
def _scatter_add(tgt, idx, src, axis=0):
    return tgt.clone().index_add_(axis, idx, src)
def _segment_sum(src, seg, n):
    out = torch.zeros((n,) + src.shape[1:], dtype=src.dtype)
    return out.index_add_(0, seg, src)
def _pad(x, pw):
    flat = tuple(v for pair in reversed(pw) for v in pair)
    return torch.nn.functional.pad(x, flat)

kernel_name = 'recurrent_scan__spectral_fnet__moe_arch_mod__prompt'

def setup_inputs():

    _w = (lambda a: (lambda t: t.to(torch.bfloat16) if t.is_floating_point() else t)(torch.as_tensor(a)))
    def _A_setup():
        B, S, D = 1, 2048, 1024
        ns = torch.arange(S)[:, None] * torch.arange(S)[None, :]
        nd = torch.arange(D)[:, None] * torch.arange(D)[None, :]
        Ws_re = torch.cos(-2.0 * torch.pi * ns / S).to(float)
        Ws_im = torch.sin(-2.0 * torch.pi * ns / S).to(float)
        Wd_re = torch.cos(-2.0 * torch.pi * nd / D).to(float)
        Wd_im = torch.sin(-2.0 * torch.pi * nd / D).to(float)
        return {
            "x": _w((lambda *s: torch.randn(*s, dtype=torch.bfloat16) * 0.05)(B, S, D)),
            "dft_seq_re": _w(Ws_re),
            "dft_seq_im": _w(Ws_im),
            "dft_hid_re": _w(Wd_re),
            "dft_hid_im": _w(Wd_im),
        }
    _A_in = _A_setup()

    def _B_setup():
        B, S, D, F, C = 1, 2048, 1024, 3584, 1
        return {
            "x": _w((lambda *s: torch.randn(*s, dtype=torch.bfloat16) * 0.05)(B, S, D)),
            "w_r": _w((lambda *s: torch.randn(*s, dtype=torch.bfloat16) * 0.05)(D)),
            "w_gate": _w((lambda *s: torch.randn(*s, dtype=torch.bfloat16) * 0.05)(D, F)),
            "w_up": _w((lambda *s: torch.randn(*s, dtype=torch.bfloat16) * 0.05)(D, F)),
            "w_down": _w((lambda *s: torch.randn(*s, dtype=torch.bfloat16) * 0.05)(F, D)),
        }
    _B_in = _B_setup()

    return {
        "A_x": _A_in["x"],
        "A_dft_seq_re": _A_in["dft_seq_re"],
        "A_dft_seq_im": _A_in["dft_seq_im"],
        "A_dft_hid_re": _A_in["dft_hid_re"],
        "A_dft_hid_im": _A_in["dft_hid_im"],
        "B_x": _B_in["x"],
        "B_w_r": _B_in["w_r"],
        "B_w_gate": _B_in["w_gate"],
        "B_w_up": _B_in["w_up"],
        "B_w_down": _B_in["w_down"],
    }

def reference(A_x, A_dft_seq_re, A_dft_seq_im, A_dft_hid_re, A_dft_hid_im, B_x, B_w_r, B_w_gate, B_w_up, B_w_down):
    def _A_ref(x, dft_seq_re, dft_seq_im, dft_hid_re, dft_hid_im):
        a = torch.einsum("bsd,ed->bse", x, dft_hid_re)
        b = torch.einsum("bsd,ed->bse", x, dft_hid_im)
        y = torch.einsum("ts,bse->bte", dft_seq_re, a) - torch.einsum("ts,bse->bte", dft_seq_im, b)
        return y

    def _B_ref(x, w_r, w_gate, w_up, w_down):
        B, S, D = x.shape
        C = 1
        r = x @ w_r
        idx = torch.argsort(-r, axis=-1)[:, :C]
        idx_e = (lambda x, n, axis: torch.repeat_interleave(x, n, dim=axis))(idx.reshape(B, C, 1), D, axis=2)
        x_sel = (lambda x, i, axis: torch.take_along_dim(x, i, dim=axis))(x, idx_e, axis=1)
        g = _silu(x_sel @ w_gate)
        u = x_sel @ w_up
        y = (g * u) @ w_down
        r_sel = _sigmoid((lambda x, i, axis: torch.take_along_dim(x, i, dim=axis))(r, idx, axis=1))
        y = y * r_sel.reshape(B, C, 1)
        b_off = (torch.arange(B) * S).reshape(B, 1)
        flat_idx = (idx + b_off).reshape(B * C)
        zero = (x * 0.0).reshape(B * S, D)
        upd = _scatter_add(zero, flat_idx, y.reshape(B * C, D), axis=0)
        return x + upd.reshape(B, S, D)

    x = A_x
    xn = _layernorm(x, axis=-1)
    s = _A_ref(xn, A_dft_seq_re, A_dft_seq_im, A_dft_hid_re, A_dft_hid_im)
    g = _silu(_B_ref(xn, B_w_r, B_w_gate, B_w_up, B_w_down))
    return x + s * g
```

```python
import re

TRANS = ("v_exp_", "v_log_", "v_rcp_", "v_rsq_", "v_sqrt_", "v_sin_", "v_cos_")


def _regs(tok):
    tok = tok.strip()
    tok = tok.lstrip("-")
    m = re.fullmatch(r"(?:abs\()?\|?([vsa])(\d+)\|?\)?", tok)
    if m:
        return {(m.group(1), int(m.group(2)))}
    m = re.fullmatch(r"([vsa])\[(\d+):(\d+)\]", tok)
    if m:
        return {(m.group(1), i) for i in range(int(m.group(2)), int(m.group(3)) + 1)}
    if tok == "vcc":
        return {("s", "vcc_lo"), ("s", "vcc_hi")}
    if tok in ("vcc_lo", "vcc_hi"):
        return {("s", tok)}
    if tok == "exec":
        return {("s", "exec")}
    if tok == "m0":
        return {("s", "m0")}
    return set()


def _split_ops(rest):
    ops, depth, cur = [], 0, ""
    for ch in rest:
        if ch in "[(":
            depth += 1
        if ch in "])":
            depth -= 1
        if ch == "," and depth == 0:
            ops.append(cur.strip())
            cur = ""
        else:
            cur += ch
    if cur.strip():
        ops.append(cur.strip())
    if ops:
        last = ops[-1].split()
        mods = " ".join(last[1:])
        ops[-1] = last[0]
    else:
        mods = ""
    return ops, mods


class Ins:
    def __init__(self, text):
        self.text = text
        body = text.split(";")[0].strip()
        parts = body.split(None, 1)
        self.op = parts[0]
        rest = parts[1] if len(parts) > 1 else ""
        self.ops, self.mods = _split_ops(rest)
        op = self.op
        R = [_regs(o) for o in self.ops]
        self.is_mfma = op.startswith("v_mfma")
        self.is_valu = op.startswith("v_") and not self.is_mfma
        self.is_trans = op.startswith(TRANS)
        self.is_vmem = op.startswith(("buffer_", "global_", "flat_"))
        self.is_ds = op.startswith("ds_")
        self.is_salu = op.startswith("s_")
        self.is_dpp = "_dpp" in op or any(
            k in self.mods for k in ("row_", "quad_perm", "wave_"))
        self.is_dot = op.startswith("v_dot")
        self.w, self.r = set(), set()
        self.srcA = self.srcB = self.srcC = set()
        self.store_data = set()
        self.wide_store = False
        self.lds_dma = False
        self.partial = False
        U = lambda l: set().union(*l) if l else set()
        if self.is_mfma:
            self.w = R[0]
            self.srcA, self.srcB, self.srcC = R[1], R[2], R[3]
            self.r = R[1] | R[2] | R[3]
            if "32x32x16" in op or "32x32x8" in op:
                self.passes = 8
            elif "16x16x32" in op or "16x16x16" in op:
                self.passes = 4
            elif "32x32x2_f32" in op:
                self.passes = 16
            elif "16x16x4_f32" in op:
                self.passes = 8
            elif "4x4x4" in op:
                self.passes = 2
            else:
                raise ValueError("unknown mfma " + op)
            self.sgemm = op.endswith("_f32") and op.count("f32") == 2
        elif self.is_valu:
            if op.startswith("v_nop"):
                pass
            elif op.startswith("v_cmpx"):
                self.w = R[0] | {("s", "exec")}
                self.r = U(R[1:])
            elif op.startswith(("v_add_co", "v_sub_co", "v_addc_co", "v_subb_co", "v_subrev_co")):
                self.w = R[0] | R[1]
                self.r = U(R[2:])
            elif op.startswith("v_permlane") and "swap" in op:
                self.w = R[0] | R[1]
                self.r = R[0] | R[1]
            else:
                self.w = R[0]
                self.r = U(R[1:])
                if op.startswith(("v_fmac", "v_dot2c", "v_pk_fmac", "v_fma_mixlo", "v_fma_mixhi",
                                  "v_writelane")):
                    self.r |= R[0]
                if self.is_dpp:
                    self.r |= R[0]
                if op.startswith("v_cndmask") and len(self.ops) == 3:
                    self.r |= _regs("vcc")
                if op.startswith("v_fma_mixhi") or "dst_sel:WORD" in self.mods or \
                        "dst_sel:BYTE" in self.mods or op.startswith("v_fma_mixlo"):
                    self.partial = True
                    self.r |= R[0]
                if re.search(r"op_sel:\[[01,]*1\]", self.mods) and not op.startswith("v_pk") \
                        and not op.startswith("v_fma_mix") and not self.is_dot:
                    self.partial = True
        elif self.is_vmem:
            lds = " lds" in (" " + self.mods) or "_lds_" in op
            self.lds_dma = lds
            if op.startswith(("buffer_wbl2", "buffer_inv")):
                pass
            elif lds:
                self.r = U(R) | {("s", "m0")}
            elif "_load" in op:
                self.w = R[0]
                self.r = U(R[1:])
                if "d16" in op:
                    self.r |= R[0]
            elif "_store" in op or "_atomic" in op:
                self.r = U(R)
                if op.startswith("buffer_"):
                    data = R[0]
                    if "_atomic" in op and "sc0" in self.mods:
                        self.w = R[0]
                else:
                    ret = "_atomic" in op and "sc0" in self.mods
                    data = R[2] if ret else R[1]
                    if ret:
                        self.w = R[0]
                self.store_data = data
                self.wide_store = len(data) >= 3
            else:
                raise ValueError("unknown vmem " + op)
        elif self.is_ds:
            if op.startswith(("ds_read", "ds_bpermute", "ds_permute", "ds_swizzle")) or "_rtn" in op:
                self.w = R[0]
                self.r = U(R[1:])
                if "d16" in op:
                    self.r |= R[0]
            else:
                self.r = U(R)
        elif self.is_salu:
            if op.startswith(("s_cmp", "s_waitcnt", "s_nop", "s_barrier", "s_branch", "s_cbranch",
                              "s_endpgm", "s_sleep", "s_setprio", "s_bitcmp", "s_setpc")):
                self.r = U(R)
            else:
                self.w = R[0] if R else set()
                self.r = U(R[1:])
                if "saveexec" in op:
                    self.w |= {("s", "exec")}

    def slots(self):
        if self.op == "s_nop":
            return int(self.ops[0], 0) + 1
        return 1


def _isv(regs):
    return {x for x in regs if x[0] in "va"}


def _iss(regs):
    return {x for x in regs if x[0] == "s"}


def required_gap(p, c):
    need = 0
    pv, ps = _isv(p.w), _iss(p.w)
    if p.is_valu:
        if c.is_mfma and (pv & c.r):
            need = max(need, 3 if p.is_dot else 2)
        if c.is_valu and c.is_dpp and (pv & c.r):
            need = max(need, 2)
        if c.op.startswith(("v_readlane", "v_readfirstlane")) and (pv & c.r):
            need = max(need, 1)
        if c.op.startswith("v_permlane") and (pv & c.r):
            need = max(need, 2)
        if p.is_trans and c.is_valu and (pv & c.r):
            need = max(need, 1)
        if p.is_trans and (c.is_vmem or c.is_ds) and (pv & c.r):
            need = max(need, 1)
        if p.partial and (c.is_valu or c.is_mfma) and (pv & (c.r | c.w)):
            need = max(need, 1)
        if p.is_dot:
            if pv & (c.r | c.w):
                same = c.op == p.op
                as_c_only = False
                if same and c.is_dot:
                    ab = set()
                    for o in c.ops[1:3]:
                        ab |= _regs(o)
                    as_c_only = not (pv & ab)
                if not as_c_only:
                    need = max(need, 3)
        if ps:
            if c.is_vmem and (ps & c.r):
                need = max(need, 5)
            if c.is_valu and (ps & c.r):
                need = max(need, 2)
                if c.op.startswith(("v_readlane", "v_writelane")):
                    need = max(need, 4)
                if c.op.startswith("v_div_fmas"):
                    need = max(need, 4)
            if c.is_salu and (ps & c.r):
                need = max(need, 1)
            if c.op.startswith("s_cbranch_vcc") and (("s", "vcc_lo") in ps):
                need = max(need, 1)
            if ("s", "exec") in ps:
                if c.is_dpp:
                    need = max(need, 5)
                if c.is_mfma or c.op.startswith(("v_readlane", "v_readfirstlane", "v_writelane",
                                                 "v_permlane")):
                    need = max(need, 4)
    if p.is_salu and ("s", "m0") in p.w and (c.lds_dma or "addtid" in c.op):
        need = max(need, 1)
    if p.is_vmem and p.wide_store and (p.store_data & c.w):
        need = max(need, 2 if (c.is_valu or c.is_mfma) else 1)
    if p.is_mfma:
        idx = {2: 0, 4: 1, 8: 2, 16: 3}[p.passes]
        if p.sgemm:
            t_ab, t_c, t_v = [4, 6, 10, 18], [2, 4, 8, 16], [4, 6, 10, 18]
        else:
            t_ab, t_c, t_v = [5, 8, 12, 20], [4, 6, 10, 18], [5, 8, 12, 20]
        if c.is_mfma:
            if p.w & (c.srcA | c.srcB):
                need = max(need, t_ab[idx])
            if p.w & c.srcC:
                if p.w == c.srcC and p.passes == c.passes and p.sgemm == c.sgemm:
                    need = max(need, 2 if p.passes == 2 else 0)
                else:
                    need = max(need, t_c[idx])
            elif p.w & c.w:
                need = max(need, t_c[idx])
        elif c.is_valu or c.is_vmem or c.is_ds:
            if p.w & (c.r | c.w):
                need = max(need, t_v[idx])
            if c.is_valu and not p.sgemm and (p.srcC & c.w):
                need = max(need, [1, 3, 7, 15][idx])
    return need


class Asm:
    def __init__(self):
        self.lines = []

    def __call__(self, s):
        for ln in s.split("\n"):
            ln = ln.strip()
            if ln:
                self.lines.append(ln)

    def raw(self, s):
        self.lines.append("\x00" + s)

    def label(self, name):
        self.lines.append(name + ":")

    def settle(self):
        self.lines.append("\x01settle")

    def finalize(self, report=False):
        out, hist, nops = [], [], 0
        for ln in self.lines:
            if ln.startswith("\x00"):
                out.append(ln[1:])
                continue
            if ln.startswith("\x01"):
                worst = 0
                dist = 0
                for p in reversed(hist):
                    lim = 0
                    if p.is_mfma:
                        lim = {2: 5, 4: 8, 8: 12, 16: 20}[p.passes]
                    elif p.is_valu:
                        lim = 5 if _iss(p.w) else 3 if p.is_dot else 2
                    elif p.is_vmem and p.wide_store:
                        lim = 2
                    elif p.is_salu and ("s", "m0") in p.w:
                        lim = 1
                    worst = max(worst, lim - dist)
                    dist += p.slots()
                    if dist > 24:
                        break
                while worst > 0:
                    n = min(worst, 16)
                    i = Ins("s_nop %d" % (n - 1))
                    out.append("    " + i.text)
                    hist.append(i)
                    worst -= n
                continue
            body = ln.split(";")[0].strip()
            if not body or body.endswith(":") or body.startswith("."):
                out.append(ln if body.endswith(":") or body.startswith(".") else "    " + ln)
                continue
            c = Ins(ln)
            dist, pad = 0, 0
            for p in reversed(hist):
                pad = max(pad, required_gap(p, c) - dist)
                dist += p.slots()
                if dist > 24:
                    break
            while pad > 0:
                n = min(pad, 16)
                i = Ins("s_nop %d" % (n - 1))
                out.append("    " + i.text)
                hist.append(i)
                nops += n
                pad -= n
            out.append("    " + ln)
            hist.append(c)
            if c.op == "s_endpgm" or c.op == "s_branch":
                hist = []
        if report:
            print("wait states inserted:", nops)
        return "\n".join(out) + "\n"


def kernel_head(name):
    return (".text\n.globl %s\n.p2align 8\n.type %s,@function\n%s:\n" % (name, name, name))


def kernel_desc(name, vgpr, sgpr=102, accum=None, extra=""):
    if accum is None:
        accum = (vgpr + 3) // 4 * 4
    return (""".section .rodata,"a"
.p2align 6
.amdhsa_kernel %s
  .amdhsa_next_free_vgpr %d
  .amdhsa_next_free_sgpr %d
  .amdhsa_accum_offset %d
  .amdhsa_group_segment_fixed_size 0
  .amdhsa_kernarg_size 104
  .amdhsa_user_sgpr_count 2
  .amdhsa_user_sgpr_kernarg_segment_ptr 1
  .amdhsa_system_sgpr_workgroup_id_x 1
%s.end_amdhsa_kernel
""" % (name, vgpr, sgpr, accum, extra))


def f2u(x):
    import struct
    return "0x%08x" % struct.unpack("<I", struct.pack("<f", x))[0]
```

```python
import sys, math
sys.path.insert(0, 'tools')
from asmlib import *

NAME = 'recurrent_scan__spectral_fnet__moe_arch_mod__prompt_kernel'
HEADER = open('recurrent_scan__spectral_fnet__moe_arch_mod__prompt.s.ref').read().split('; Override')[0]
WS_BYTES = 268435456
WS_RES = 4096
WS_KY = 8192
WS_ST = WS_KY + 16384
WS_KB = WS_ST + 16384
WS_H1 = 262144
WS_H2 = WS_H1 + 229376
NBASE = WS_H2 + 229376 if "hwarm=0" not in sys.argv else 131072
WS_N1 = NBASE
WS_N2 = NBASE + 32768
WS_V = 1 << 20
VB = 129 * 128
VU = 8192 + 128
WS_TS = 16 << 20
SPIN_CAP = 200000
NWG = 480

L_X = 0
L_Z = 32768
L_WR = 41216
L_T = 43520
L_U = 32768
L_C = 56832
M_XS = 0
M_ONE = 512
M_H = 1024
M_F = 1152
M_G = 1280
M_U = M_G + 32768
LDS_BYTES = M_U + 32768 + 256

LOG2E = math.log2(math.e)
DOC = """; Generated by tools/gen_v16.py.  out = x + Re(DFT2(LN x)) * silu(LN x + routed-token FFN).
"""


class Cfg:
    stamps = False
    smask = 0xffff
    thr = 12
    thr2 = 28
    g2 = 5
    thr3 = 24
    g3 = 99
    out_flag = "nt"
    wfl = ""
    early_b2 = True
    xpos = 5
    prio = 3
    kprio = 2
    revpos = 4
    hint1 = False
    gfirst = True
    pk0 = 8
    sdelay = 0
    nrep = 8
    brep = 32
    kmap = True
    diag = 0
    pf = 1
    scan2 = True
    h1d = 0
    h1s = 0
    h2s = 0
    xdel = 0
    psl = 5
    ramp = 0
    stag = 4
    n1 = 14
    n2 = 2
    n2p = 20
    h2d = 0
    rdel = 0
    hyb = False
    exact = True
    sfirst = 0
    dxor = 1
    lut = True
    lprio = 3
    pre = True
    vdel = 0
    dprog = True
    noack = 0
    jswap = True
    fin2 = True
    midg = True
    drain = 99
    fastk = False
    lfirst = True
    spos = 0
    edel = 0
    sdel = 0
    ltail = False
    latex = True
    gate = 0
    gsl = 3
    eh = True
    scan3 = True
    ssl = 2
    nopois = False
    fpf = 0
    fboth = False
    hpf = 0
    nohop = False
    ru = 0
    pf2 = True
    thrn = 0
    nostat = False
    allpre = False
    hwarm = True
    kwarm = 0
    resn = 64
    late = 0
    latej = 0
    kgrp = False
    tlo = 0
    tev = 20
    tcnt = 7
    nsl = 1
    skipg = 0
    halfxp = False
    sfloor = 0
    trim = 2
    agent = 2
    gprog = True
    pp = False
    pstat = False
    vfull = 2
    early = 0
    lprof = 0
    pfn = 0
    e1 = 0
    e1v = 0
    mpos = 0
    wsl = 0
    wsn = 4
    pad = 0
    pad2 = 0
    pad3 = 0
    e2 = 0
    tlbw = 0
    own1 = 0
    fullout = 0
    nostst = 0
    sep = 0
    hybst = 0


def srd(a, d, b, nbytes):
    a(f"s_mov_b32 s{d}, s{b}")
    a(f"s_and_b32 s{d+1}, s{b+1}, 0xffff")
    a(f"s_mov_b32 s{d+2}, {nbytes}")
    a(f"s_mov_b32 s{d+3}, 0x20000")


def vr(b, n):
    return f"v[{b}:{b+n-1}]"


def stamp(a, i):
    if Cfg.stamps and (Cfg.smask >> i) & 1:
        a("s_memrealtime s[100:101]")
        a("s_waitcnt lgkmcnt(0)")
        a(f"v_writelane_b32 v127, s100, {i}")


def estamp(a, i):
    if Cfg.stamps and Cfg.early:
        a("s_memrealtime s[100:101]")
        a("s_waitcnt lgkmcnt(0)")
        a(f"v_writelane_b32 v127, s100, {i}")


def lstamp(a, i):
    if Cfg.stamps and Cfg.ltail:
        a("s_memrealtime s[100:101]")
        a("s_waitcnt lgkmcnt(0)")
        a(f"v_writelane_b32 v127, s100, {i}")


def lgk(a, n):
    a(f"s_waitcnt lgkmcnt({n})")


def round_bf16(a, v):
    a(f"v_cvt_pk_bf16_f32 v{v}, v{v}, v{v}")
    a(f"v_lshlrev_b32 v{v}, 16, v{v}")


def gen_cs(a, dc, ds, ang, step, t, neg_s):
    sg = "-" if neg_s else ""
    for p in range(4):
        a(f"v_cos_f32 v{t}, v{ang}")
        a(f"v_sin_f32 v{t+1}, v{ang}")
        a(f"v_add_f32 v{ang}, v{ang}, v{step}")
        a(f"v_cos_f32 v{t+2}, v{ang}")
        a(f"v_sin_f32 v{t+3}, v{ang}")
        if p < 3:
            a(f"v_add_f32 v{ang}, v{ang}, v{step}")
        a(f"v_cvt_pk_f16_f32 v{dc+p}, v{t}, v{t+2}")
        a(f"v_cvt_pk_f16_f32 v{ds+p}, {sg}v{t+1}, {sg}v{t+3}")


def silu(a, v, n, tmp):
    for j in range(n):
        a(f"v_mul_f32 v{tmp+j}, {f2u(-LOG2E)}, v{v+j}")
    for j in range(n):
        a(f"v_exp_f32 v{tmp+j}, v{tmp+j}")
    for j in range(n):
        a(f"v_add_f32 v{tmp+j}, 1.0, v{tmp+j}")
    for j in range(n):
        a(f"v_rcp_f32 v{tmp+j}, v{tmp+j}")
    for j in range(n):
        a(f"v_mul_f32 v{v+j}, v{v+j}, v{tmp+j}")


def wave_max_u32(a, v, s):
    for r in (8, 4, 2, 1):
        a(f"v_max_u32_dpp v{v}, v{v}, v{v} row_ror:{r} row_mask:0xf bank_mask:0xf")
    a(f"v_max_u32_dpp v{v}, v{v}, v{v} row_bcast:15 row_mask:0xa bank_mask:0xf")
    a(f"v_max_u32_dpp v{v}, v{v}, v{v} row_bcast:31 row_mask:0xc bank_mask:0xf")
    a(f"v_readlane_b32 s{s}, v{v}, 63")


def round_pairs(a, regs, tmp):
    for p in range(len(regs) // 2):
        a(f"v_cvt_pk_bf16_f32 v{tmp+p}, v{regs[2*p]}, v{regs[2*p+1]}")
    for p in range(len(regs) // 2):
        a(f"v_lshlrev_b32 v{regs[2*p]}, 16, v{tmp+p}")
        a(f"v_and_b32 v{regs[2*p+1]}, 0xffff0000, v{tmp+p}")


def spin_tail(a, label, done, cnt="s62", sleep=1, glob=True):
    a(f"s_add_u32 {cnt}, {cnt}, 1")
    a(f"s_cbranch_vccz {done}")
    if sleep:
        a(f"s_sleep {sleep}")
    a(f"s_cmp_lt_u32 {cnt}, {SPIN_CAP if glob else 5*SPIN_CAP}")
    a(f"s_cbranch_scc1 {label}")


def lds_wait(a, name, off, val, tv, sleep=1):
    a(f"v_mov_b32 v{tv}, {off}")
    a("s_mov_b32 s62, 0")
    a.label(name)
    a(f"ds_read_b32 v{tv+1}, v{tv}")
    a("s_waitcnt lgkmcnt(0)")
    a(f"v_cmp_gt_u32 vcc, {val}, v{tv+1}")
    spin_tail(a, name, name + "_d", sleep=sleep, glob=False)
    a.label(name + "_d")


def sspin_tail(a, label, done, sleep=2):
    a(f"s_cbranch_scc1 {done}")
    a("s_add_u32 s62, s62, 1")
    if sleep:
        a(f"s_sleep {sleep}")
    a(f"s_cmp_lt_u32 s62, {SPIN_CAP}")
    a(f"s_cbranch_scc1 {label}")


def key_wait(a, name):
    a("s_mov_b32 s62, 0")
    a.label(name)
    a("ds_read_b64 v[8:9], v7 offset:16")
    a("s_waitcnt lgkmcnt(0)")
    a("v_cmp_gt_u32 vcc, 7, v9")
    spin_tail(a, name, name + "_d", sleep=0, glob=False)
    a.label(name + "_d")
    a("v_readfirstlane_b32 s48, v8")


def moe_unit(a):
    if Cfg.lut:
        a("s_lshr_b32 s29, s28, 1")
        a("s_xor_b32 s29, s29, s28")
        a("s_and_b32 s29, s29, 8")
        a("s_mul_i32 s29, s29, 3")
        a("s_xor_b32 s28, s28, s29")
    a("s_lshr_b32 s29, s28, 2")
    a("s_and_b32 s30, s28, 3")
    if Cfg.dxor:
        a("s_xor_b32 s30, s30, 1")


def stat_req(a):
    a("s_and_b32 s50, s48, 7")
    a("s_bfe_u32 s34, s48, 0x40003")
    a("s_lshl4_add_u32 s50, s50, s34")
    a("s_bfe_u32 s34, s48, 0x40007")
    a("s_lshl4_add_u32 s50, s50, s34")
    a(f"s_lshl3_add_u32 s50, s50, {WS_ST}")
    a("s_load_dwordx2 s[52:53], s[10:11], s50")


def stat_use(a):
    a("s_mov_b32 s62, 0")
    a.label("M_sta")
    a("s_cmp_eq_u32 s53, s33")
    a("s_cbranch_scc1 M_sta_d" if not Cfg.nostst else "s_branch M_sta_d")
    a("s_load_dwordx2 s[52:53], s[10:11], s50 glc")
    a("s_add_u32 s62, s62, 1")
    a(f"s_cmp_lt_u32 s62, {SPIN_CAP}")
    a("s_waitcnt lgkmcnt(0)")
    a("s_cbranch_scc1 M_sta")
    a.label("M_sta_d")
    a("s_lshl_b32 s54, s52, 16")
    a("s_and_b32 s52, s52, 0xffff0000")
    a(f"v_mov_b32 v124, {f2u(1e-5)}")
    a("v_add_f32 v124, s52, v124")
    round_bf16(a, 124)
    a("v_sqrt_f32 v124, v124")
    round_bf16(a, 124)
    a("v_rcp_f32 v124, v124")


def nonce(a):
    a("s_mul_i32 s33, s33, 0x9e3779b1")
    a("s_add_u32 s33, s33, 0x7f4a7c15")


def fft_role(a):
    PA, PB, WR = 8, 16, 24
    F1C, F1S, R8R, R8I, F2C, F2N, F2S, TWC, TWS = range(32, 68, 4)
    SEL = 68
    DA_, DB_ = 76, 92
    T0 = 108
    AZW, AZR, AVS, AO, K32, VROW, ATB = 120, 121, 122, 123, 124, 125, 126
    AX = DB_
    AY = SEL + 4
    PQ = WR
    def m_first():
        a.label("M_first")
        a("s_cmp_lg_u32 s3, 0")
        a("s_cbranch_scc1 M_entry")
        a(f"s_setprio {Cfg.lprio}")
        a("s_lshr_b32 s29, s2, 1")
        a("s_xor_b32 s29, s29, s2")
        a("s_and_b32 s29, s29, 8")
        a("s_mul_i32 s29, s29, 3")
        a("s_xor_b32 s28, s2, s29")
        a("s_bitset0_b32 s28, 8")
        a("v_mul_u32_u24 v8, 7168, v4")
        a("v_lshlrev_b32 v9, 1, v4")
        a("v_xor_b32 v9, v9, v3")
        a("v_lshl_add_u32 v8, v9, 4, v8")
        a("s_and_b32 s34, s28, 7")
        a(f"s_mulk_i32 s34, {128*28}")
        a("s_lshr_b32 s35, s28, 3")
        a("s_add_u32 s34, s34, s35")
        a("s_lshl_b32 s34, s34, 8")
        a("s_mov_b32 s14, 7340032")
        a("s_mov_b32 s15, 0x20000")
        a(f"s_movk_i32 s46, {M_G}")
        a("s_mov_b32 s45, s34")
        a("s_waitcnt lgkmcnt(0)")
        a("s_mov_b64 s[12:13], s[38:39]")
        stamp(a, 2)
        a.label("M_burst")
        a("s_mov_b32 m0, s46")
        a("s_addk_i32 s46, 1024")
        a(f"buffer_load_dwordx4 v8, s[12:15], s45 offen {Cfg.wfl} lds")
        a(f"s_addk_i32 s45, {4*7168}")
        a("v_xor_b32 v8, 128, v8")
        a(f"s_cmpk_lt_u32 s46, {M_G + 1024*Cfg.thr}")
        a("s_cbranch_scc1 M_burst")
        a("s_branch M_loader2")

    def code_prefetch():
        n = 128 // Cfg.pfn
        a(f"s_cmp_ge_u32 s3, {max(1, n // 64)}")
        a("s_cbranch_scc1 L_nopf")
        a("s_getpc_b64 s[6:7]")
        a.label("L_pc")
        a(f"s_mov_b32 m0, {LDS_BYTES - 256}")
        a(f"s_bfe_u32 s34, s2, {hex(3 + ((Cfg.pfn.bit_length() - 1) << 16))}" if Cfg.pfn > 1 else "s_mov_b32 s34, 0")
        a(f"s_mul_i32 s34, s34, {n*128}")
        a("v_lshl_add_u32 v8, v0, 7, s34")
        a("v_min_u32 v8, L_end-L_pc, v8")
        a("v_mov_b32 v9, s7")
        a("v_add_co_u32 v8, vcc, s6, v8")
        a("v_addc_co_u32 v9, vcc, 0, v9, vcc")
        if n < 64:
            a(f"s_mov_b64 exec, {hex((1 << n) - 1)}")
        a("global_load_lds_dword v[8:9], off")
        if n < 64:
            a("s_mov_b64 exec, -1")
        a.label("L_nopf")

    def row_requests():
        a(f"s_mov_b32 m0, {L_WR}")
        a("s_cmp_lg_u32 s3, 0")
        a("s_waitcnt lgkmcnt(0)")
        stamp(a, 1)
        a("s_mov_b64 s[12:13], s[4:5]")
        a("s_load_dword s33, s[10:11], 0")
        a("s_cbranch_scc1 F_nowr")
        a("s_mov_b64 s[16:17], s[36:37]")
        a("buffer_load_dwordx4 v5, s[16:19], 0 offen lds")
        a("buffer_load_dwordx4 v5, s[16:19], 0 offen offset:1024 lds")
        a.label("F_nowr")
        a("s_mov_b32 m0, s53")
        a("s_mov_b64 s[24:25], s[10:11]")
        a(f"buffer_load_dwordx4 v5, s[12:15], s49 offen lds")
        a(f"buffer_load_dwordx4 v5, s[12:15], s49 offen offset:1024 lds")

    def poison():
        a(f"s_mov_b32 s26, {WS_BYTES}")
        a("s_mov_b32 s27, 0x20000")
        a(f"v_lshlrev_b32 v{8 if Cfg.e1 else 7}, 2, v0")
        a("s_lshl_b32 s34, s2, 11")
        a(f"s_add_u32 s34, s34, {WS_H1}")
        a(f"v_mov_b32 v{9 if Cfg.e1 else 6}, -1")
        if Cfg.nopois:
            a("s_mov_b64 exec, 1")
        if Cfg.e1:
            a("buffer_store_dword v9, v8, s[24:27], s34 offen sc1")
        else:
            a("buffer_store_dword v6, v7, s[24:27], s34 offen sc1" if not Cfg.nopois else "buffer_load_dword v1, v7, s[12:15], 0 offen")
        if Cfg.nopois:
            a("s_mov_b64 exec, -1")
    if Cfg.e1:
        assert Cfg.pfn and Cfg.revpos == 4 and not Cfg.fastk
        if Cfg.mpos == 0:
            m_first()
            a.label("F_entry")
        code_prefetch()
    a("s_and_b32 s28, s2, 7")
    a("s_bfe_u32 s44, s2, 0x10003")
    a("s_lshr_b32 s45, s2, 4")
    a("s_xor_b32 s30, s45, 15")
    a("s_lshl3_add_u32 s30, s30, s28")
    a("s_cmp_eq_u32 s30, 0")
    a("s_cselect_b32 s46, 1, 0")
    a("s_cmp_eq_u32 s2, 248")
    a("s_cselect_b32 s30, 128, s30")
    a("s_lshl_b32 s31, s3, 8")
    a("s_add_u32 s31, s31, s30")
    a("s_sub_u32 s32, 0, s31")
    a("s_and_b32 s32, s32, 2047")
    a("s_cmp_eq_u32 s44, 0")
    a("s_cselect_b32 s47, s31, s32")
    a("s_cselect_b32 s48, s32, s31")
    a("s_lshl_b32 s49, s47, 11")
    a("s_lshl_b32 s48, s48, 11")
    a("v_lshrrev_b32 v5, 3, v2")
    a("v_and_b32 v5, 2, v5")
    a("v_xor_b32 v5, v5, v2")
    a("v_lshlrev_b32 v5, 4, v5")
    a("s_lshl_b32 s53, s3, 12")
    a("s_mov_b32 s14, 4194304")
    a("s_mov_b32 s15, 0x20000")
    a("s_mov_b32 s18, 2048")
    a("s_mov_b32 s19, 0x20000")
    if not Cfg.e1:
        row_requests()
        if Cfg.lfirst:
            a("s_branch F_go")
            m_first()
            a.label("F_go")
        poison()

    def rev_loads():
        a("s_add_u32 m0, s53, 2048")
        a(f"buffer_load_dwordx4 v5, s[12:15], s48 offen lds")
        a(f"buffer_load_dwordx4 v5, s[12:15], s48 offen offset:1024 lds")
    if Cfg.revpos == 3:
        rev_loads()
    UN, ANG, AJ = T0+8, T0+9, T0+11
    a(f"v_lshlrev_b32 v{ATB}, 4, v2")
    a("s_and_b32 s34, s3, 1")
    a("s_lshr_b32 s35, s3, 1")
    a(f"v_lshl_add_u32 v{AJ}, s34, 3, v{ATB}")
    a("s_cmp_eq_u32 s35, 3")
    a("s_cbranch_scc1 F_jobr8")
    a("s_lshl4_add_u32 s54, s44, 1")
    a("s_cmp_eq_u32 s35, 2")
    a("s_cselect_b32 s54, 0, s54")
    a("s_cselect_b32 s57, 4096, 0")
    a("s_cmp_eq_u32 s35, 1")
    a(f"s_cselect_b32 s55, {f2u(1/1024)}, 0")
    a("s_cselect_b32 s58, s46, 0")
    a("s_cselect_b32 s57, 7168, s57")
    a(f"s_cselect_b32 s55, s55, {f2u(1/32)}")
    a("s_lshl_b32 s34, s34, 4")
    a(f"v_lshl_add_u32 v{T0+1}, v4, 2, s34")
    a(f"v_cvt_f32_u32 v{T0+1}, v{T0+1}")
    a(f"v_add_u32 v{AJ}, s57, v{AJ}")
    a.label("F_job")
    a(f"v_add_u32 v{UN}, s54, v3")
    a(f"v_cvt_f32_u32 v{UN}, v{UN}")
    a(f"v_mul_f32 v{UN}, s55, v{UN}")
    a(f"v_mul_f32 v{ANG}, v{UN}, v{T0+1}")
    CS = DA_
    for j in range(4):
        a(f"v_cos_f32 v{CS+j}, v{ANG}")
        a(f"v_sin_f32 v{CS+4+j}, v{ANG}")
        if j < 3:
            a(f"v_add_f32 v{ANG}, v{ANG}, v{UN}")
    a("s_cmp_eq_u32 s35, 0")
    a("s_cbranch_scc1 F_jobf1")
    for p in range(2):
        a(f"v_cvt_pk_f16_f32 v{CS+8+p}, v{CS+2*p}, v{CS+2*p+1}")
    for p in range(2):
        a(f"v_cvt_pk_f16_f32 v{CS+10+p}, v{CS+4+2*p}, v{CS+4+2*p+1}")
    for p in range(2):
        a(f"v_xor_b32 v{CS+12+p}, 0x80008000, v{CS+10+p}")
    a(f"ds_write2st64_b64 v{AJ}, {vr(CS+8,2)}, {vr(CS+10,2)} offset0:{L_T//512} offset1:{L_T//512+2}")
    a(f"ds_write_b64 v{AJ}, {vr(CS+12,2)} offset:{L_T+2048}")
    a("s_cmp_eq_u32 s58, 0")
    a("s_cbranch_scc1 F_jobd")
    a("s_mov_b32 s58, 0")
    a("s_xor_b32 s54, s54, 16")
    a(f"v_add_u32 v{AJ}, 3072, v{AJ}")
    a("s_branch F_job")
    a.label("F_jobf1")
    for p in range(2):
        a(f"v_cvt_pk_bf16_f32 v{CS+8+p}, v{CS+2*p}, v{CS+2*p+1}")
    for p in range(2):
        a(f"v_cvt_pk_bf16_f32 v{CS+10+p}, -v{CS+4+2*p}, -v{CS+4+2*p+1}")
    a(f"ds_write2st64_b64 v{AJ}, {vr(CS+8,2)}, {vr(CS+10,2)} offset0:{L_T//512} offset1:{L_T//512+2}")
    a("s_branch F_jobd")
    a.label("F_jobr8")
    STP = T0+10
    a(f"v_and_b32 v{STP}, 7, v3")
    a(f"v_cvt_f32_u32 v{STP}, v{STP}")
    a(f"v_mul_f32 v{STP}, {f2u(1/8)}, v{STP}")
    a(f"v_and_b32 v{ANG}, 1, v4")
    a(f"v_lshl_add_u32 v{ANG}, v{ANG}, 1, s34")
    a(f"v_cvt_f32_u32 v{ANG}, v{ANG}")
    a(f"v_mul_f32 v{ANG}, v{ANG}, v{STP}")
    a(f"v_add_f32 v{ANG}, v{ANG}, v{ANG}")
    a(f"v_add_f32 v{STP}, v{ANG}, v{STP}")
    a(f"v_cos_f32 v{CS}, v{ANG}")
    a(f"v_sin_f32 v{CS+1}, v{ANG}")
    a(f"v_cos_f32 v{CS+2}, v{STP}")
    a(f"v_sin_f32 v{CS+3}, v{STP}")
    a(f"v_lshrrev_b32 v{UN}, 2, v2")
    a(f"v_xor_b32 v{UN}, v{UN}, v2")
    a(f"v_bfe_u32 v{UN}, v{UN}, 3, 1")
    a(f"v_add_u32 v{UN}, -1, v{UN}")
    a("s_lshl_b32 s34, s44, 31")
    for jj in range(2):
        a(f"v_cvt_pk_f16_f32 v{CS+8+jj}, v{CS+2*jj}, v{CS+2*jj+1}")
        a(f"v_cvt_pk_f16_f32 v{CS+10+jj}, -v{CS+2*jj+1}, v{CS+2*jj}")
    for r in range(4):
        a(f"v_bitop3_b32 v{CS+8+r}, v{CS+8+r}, s34, v{UN} bitop3:0x28")
    a(f"ds_write2st64_b64 v{AJ}, {vr(CS+8,2)}, {vr(CS+10,2)} offset0:{L_T//512+4} offset1:{L_T//512+6}")
    a.label("F_jobd")
    QA, QB, DW = range(T0, T0+3)
    val = []
    for r in range(4):
        val.append(f"v_mov_b32 v{T0+r}, 0")
    val.append(f"v_mov_b32 v7, {L_C}")
    val.append(f"ds_write_b128 v7, {vr(T0,4)}")
    val += [
        f"v_and_b32 v{AX+4}, 60, v2",
        f"v_and_b32 v{AX+5}, 3, v2",
        f"v_lshl_add_u32 v{AX+4}, v{AX+4}, 1, v{AX+5}",
        f"v_bfe_u32 v{AX+5}, v2, 4, 1",
        f"v_lshl_add_u32 v{AX+4}, v{AX+5}, 2, v{AX+4}",
        f"v_lshlrev_b32 v{AX+4}, 3, v{AX+4}",
        f"v_xor_b32 v{AX+5}, 32, v{AX+4}",
        f"v_add_u32 v{AX}, s53, v{AX+4}",
        f"v_xor_b32 v{AX+1}, 32, v{AX}",
        f"v_xor_b32 v{AX+2}, 0x3d8, v{AX}",
        f"v_xor_b32 v{AX+3}, 0x3f8, v{AX}",
        f"v_and_b32 v{AY}, 0x3d8, v{AX+4}",
        f"v_sub_u32 v{AY}, 1024, v{AY}",
        f"v_add_u32 v{AY+1}, -32, v{AY}",
        f"v_lshrrev_b32 v{AY+2}, 3, v{AY}",
        f"v_lshrrev_b32 v{AY+3}, 3, v{AY+1}",
        f"v_bitop3_b32 v{AY}, v{AY}, v{AY+2}, 32 bitop3:0x78",
        f"v_bitop3_b32 v{AY+1}, v{AY+1}, v{AY+3}, 32 bitop3:0x78",
        f"v_add_u32 v{AY}, s53, v{AY}",
        f"v_add_u32 v{AY+1}, s53, v{AY+1}",
        f"v_xor_b32 v{AY+2}, 1024, v{AY}",
    ]
    for r in range(4):
        val.append(f"v_mov_b32 v{SEL+r}, 0x3f803f80")
    val += [
        f"v_bfe_u32 v{AZW}, v3, 1, 2",
        f"v_xor_b32 v{AZW}, v{AZW}, v4",
        f"v_lshl_add_u32 v{AZW}, v3, 2, v{AZW}",
        f"v_lshl_add_u32 v{AZW}, v{AZW}, 4, s58",
        f"v_xor_b32 v{AZR}, s59, v3",
        f"v_lshrrev_b32 v{T0+4}, 1, v4",
        f"v_lshl_add_u32 v{AZR}, v{T0+4}, 4, v{AZR}",
        f"v_and_b32 v{T0+4}, 1, v4",
        f"v_mul_u32_u24 v{T0+4}, 1040, v{T0+4}",
        f"v_add_lshl_u32 v{AZR}, v{AZR}, v{T0+4}, 2",
        f"v_and_b32 v{T0+5}, 7, v3",
        f"v_lshrrev_b32 v{T0+4}, 3, v3",
        *([f"v_mul_u32_u24 v{AVS}, {128 if Cfg.vfull == 2 else 16*VB}, v{T0+5}",
           f"v_lshl_add_u32 v{AVS}, v{T0+4}, 6, v{AVS}"] if Cfg.vfull else
          [f"v_lshl_add_u32 v{AVS}, v{T0+5}, 4, v{T0+4}",
           f"v_mul_u32_u24 v{AVS}, {VB}, v{AVS}"]),
        f"v_lshl_add_u32 v{AVS}, v4, 4, v{AVS}",
        "v_bfe_u32 v6, v2, 2, 2",
        "v_lshl_add_u32 v6, v6, 2, v4",
        "v_and_b32 v1, 3, v2",
        "v_lshlrev_b32 v1, 4, v1",
        "v_lshl_add_u32 v6, v6, 18, v1",
        f"v_lshlrev_b32 v{AO}, 14, v{T0+4}",
        f"v_lshl_add_u32 v{AO}, v4, 20, v{AO}",
        f"v_lshl_add_u32 v{AO}, v{T0+5}, 3, v{AO}",
        f"v_add_u32 v{K32}, 1, v3",
        f"v_bfe_i32 v{K32}, v{K32}, 4, 1",
        f"v_and_b32 v{K32}, s63, v{K32}",
        f"v_mov_b32 v{VROW}, s47",
        f"v_mov_b32 v{T0+10}, 1",
        f"v_mov_b32 v{T0+11}, 0",
    ]
    sal = [
        "s_lshr_b32 s58, s3, 2", "s_lshl4_add_u32 s58, s3, s58", "s_lshl_b32 s58, s58, 6",
        "s_and_b32 s59, s3, 3", "s_lshl3_add_u32 s59, s3, s59", "s_lshl_b32 s59, s59, 2",
        *(["s_mov_b32 s34, 0x71605432", "s_mov_b32 s35, 0x98fedcba", "s_lshl_b32 s56, s45, 2", "s_lshr_b64 s[34:35], s[34:35], s56",
           "s_and_b32 s34, s34, 15", "s_xor_b32 s45, s45, 8", "s_cmp_eq_u32 s44, 0", "s_cselect_b32 s45, s45, s34"] if Cfg.lut else
          ["s_mul_i32 s34, s44, 14", "s_xor_b32 s34, s34, 8", "s_xor_b32 s45, s45, s34"]),
        *(["s_sub_u32 s34, 0, s28", "s_and_b32 s34, s34, 7", "s_lshr_b32 s35, s45, 1", "s_cmp_lt_u32 s35, s44",
           "s_cselect_b32 s28, s34, s28"] if Cfg.jswap else []),
        "s_sub_u32 s34, 0, s28", "s_and_b32 s34, s34, 7", "s_sub_u32 s35, 31, s45", "s_cmp_eq_u32 s44, 0",
        "s_cselect_b32 s56, s28, s34", "s_cselect_b32 s57, s45, s35", f"s_cselect_b32 s63, 0, {f2u(-32.0)}",
        "s_and_b32 s34, s30, 15", "s_sub_u32 s35, 16, s34", "s_and_b32 s50, s34, 7", "s_cmp_gt_u32 s34, 8",
        "s_cselect_b32 s50, s35, s50",
        "s_and_b32 s34, s34, 8", "s_lshl4_add_u32 s50, s50, s34", "s_lshr_b32 s34, s30, 4", "s_add_u32 s50, s50, s34",
        "s_cmp_eq_u32 s30, 128", "s_cselect_b32 s50, 128, s50", "s_lshl1_add_u32 s29, s50, s44",
        *([f"s_mul_i32 s50, s29, {VU}", "s_lshl_b32 s34, s3, 10"] if Cfg.vfull == 2 else
          ["s_lshl_b32 s50, s50, 7", "s_lshl1_add_u32 s34, s3, s44", f"s_mul_i32 s34, s34, {VB}"] if Cfg.vfull else
          ["s_lshl_b32 s50, s29, 6", f"s_mul_i32 s34, s3, {2*VB}"]),
        "s_add_u32 s50, s50, s34", f"s_add_u32 s50, s50, {WS_V}",
        "s_and_b32 s29, s29, 255", f"s_lshl2_add_u32 s29, s29, {WS_KB}",
        "s_and_b32 s51, s47, 7", "s_bfe_u32 s34, s47, 0x40003", "s_lshl4_add_u32 s51, s51, s34",
        "s_lshr_b32 s34, s47, 7", "s_lshl4_add_u32 s51, s51, s34", f"s_lshl3_add_u32 s51, s51, {WS_ST}",
        "s_lshl_b32 s52, s46, 23", f"s_sub_u32 s52, {f2u(1/8)}, s52",
        "s_lshl4_add_u32 s64, s3, s56", "s_lshl_b32 s64, s64, 11", "s_lshl_b32 s34, s57, 6", "s_add_u32 s64, s64, s34",
        "s_add_u32 s65, s64, 262144", "s_add_u32 s66, s64, 524288", "s_add_u32 s67, s64, 786432",
        "s_mov_b32 s60, 0x80000000", "s_mov_b32 s61, 0xfffff800",
        "s_mov_b64 s[20:21], s[8:9]", "s_mov_b32 s22, 4194304", "s_mov_b32 s23, 0x20000",
    ]
    mid_v, mid_s, post_v, post_s = [], [], [], []
    if Cfg.e2:
        assert Cfg.lut and Cfg.jswap and Cfg.vfull == 2 and not Cfg.fastk
        TA, TB = PB, PB + 1
        mid_v = [
            f"v_xor_b32 v{AX+2}, 0x3d8, v{AX}",
            f"v_xor_b32 v{AX+3}, 0x3f8, v{AX}",
            f"v_and_b32 v{AY}, 0x3d8, v{AX+4}",
            f"v_sub_u32 v{AY}, 1024, v{AY}",
            f"v_add_u32 v{AY+1}, -32, v{AY}",
            f"v_lshrrev_b32 v{AY+2}, 3, v{AY}",
            f"v_lshrrev_b32 v{AY+3}, 3, v{AY+1}",
            f"v_bitop3_b32 v{AY}, v{AY}, v{AY+2}, 32 bitop3:0x78",
            f"v_bitop3_b32 v{AY+1}, v{AY+1}, v{AY+3}, 32 bitop3:0x78",
            f"v_add_u32 v{AY}, s53, v{AY}",
            f"v_add_u32 v{AY+1}, s53, v{AY+1}",
            f"v_xor_b32 v{AY+2}, 1024, v{AY}",
            f"v_bfe_u32 v{AZW}, v3, 1, 2",
            f"v_xor_b32 v{AZW}, v{AZW}, v4",
            f"v_lshl_add_u32 v{AZW}, v3, 2, v{AZW}",
            f"v_lshl_add_u32 v{AZW}, v{AZW}, 4, s58",
            f"v_xor_b32 v{AZR}, s59, v3",
            f"v_lshrrev_b32 v{TA}, 1, v4",
            f"v_lshl_add_u32 v{AZR}, v{TA}, 4, v{AZR}",
            f"v_and_b32 v{TA}, 1, v4",
            f"v_mul_u32_u24 v{TA}, 1040, v{TA}",
            f"v_add_lshl_u32 v{AZR}, v{AZR}, v{TA}, 2",
            f"v_and_b32 v{TB}, 7, v3",
            f"v_lshrrev_b32 v{TA}, 3, v3",
            f"v_mul_u32_u24 v{AVS}, 128, v{TB}",
            f"v_lshl_add_u32 v{AVS}, v{TA}, 6, v{AVS}",
            f"v_lshl_add_u32 v{AVS}, v4, 4, v{AVS}",
            f"v_add_u32 v{K32}, 1, v3",
            f"v_bfe_i32 v{K32}, v{K32}, 4, 1",
            f"v_and_b32 v{K32}, s35, v{K32}",
        ]
        mid_s = [
            "s_lshr_b32 s58, s3, 2", "s_lshl4_add_u32 s58, s3, s58", "s_lshl_b32 s58, s58, 6",
            "s_and_b32 s59, s3, 3", "s_lshl3_add_u32 s59, s3, s59", "s_lshl_b32 s59, s59, 2",
            "s_and_b32 s34, s30, 15", "s_sub_u32 s35, 16, s34", "s_and_b32 s50, s34, 7", "s_cmp_gt_u32 s34, 8",
            "s_cselect_b32 s50, s35, s50",
            "s_and_b32 s34, s34, 8", "s_lshl4_add_u32 s50, s50, s34", "s_lshr_b32 s34, s30, 4", "s_add_u32 s50, s50, s34",
            "s_cmp_eq_u32 s30, 128", "s_cselect_b32 s50, 128, s50", "s_lshl1_add_u32 s29, s50, s44",
            f"s_mul_i32 s50, s29, {VU}", "s_lshl_b32 s34, s3, 10",
            "s_add_u32 s50, s50, s34", f"s_add_u32 s50, s50, {WS_V}",
            "s_and_b32 s29, s29, 255", f"s_lshl2_add_u32 s29, s29, {WS_KB}",
            "s_cmp_eq_u32 s44, 0", f"s_cselect_b32 s35, 0, {f2u(-32.0)}",
        ]
        post_v = [
            "v_bfe_u32 v6, v2, 2, 2",
            "v_lshl_add_u32 v6, v6, 2, v4",
            "v_and_b32 v1, 3, v2",
            "v_lshlrev_b32 v1, 4, v1",
            "v_lshl_add_u32 v6, v6, 18, v1",
            f"v_lshrrev_b32 v{T0}, 3, v3",
            f"v_and_b32 v{T0+1}, 7, v3",
            f"v_lshlrev_b32 v{AO}, 14, v{T0}",
            f"v_lshl_add_u32 v{AO}, v4, 20, v{AO}",
            f"v_lshl_add_u32 v{AO}, v{T0+1}, 3, v{AO}",
        ]
        if Cfg.fullout:
            post_v[-3:] = [f"v_lshlrev_b32 v{AO}, 3, v3", f"v_lshl_add_u32 v{AO}, v4, 20, v{AO}", f"v_mov_b32 v{T0}, 0"]
        post_s = [
            "s_mov_b32 s34, 0x71605432", "s_mov_b32 s35, 0x98fedcba", "s_lshl_b32 s56, s45, 2", "s_lshr_b64 s[34:35], s[34:35], s56",
            "s_and_b32 s34, s34, 15", "s_xor_b32 s45, s45, 8", "s_cmp_eq_u32 s44, 0", "s_cselect_b32 s45, s45, s34",
            "s_sub_u32 s34, 0, s28", "s_and_b32 s34, s34, 7", "s_lshr_b32 s35, s45, 1", "s_cmp_lt_u32 s35, s44",
            "s_cselect_b32 s28, s34, s28",
            "s_sub_u32 s34, 0, s28", "s_and_b32 s34, s34, 7", "s_sub_u32 s35, 31, s45", "s_cmp_eq_u32 s44, 0",
            "s_cselect_b32 s56, s28, s34", "s_cselect_b32 s57, s45, s35",
            "s_lshl4_add_u32 s64, s3, s56", "s_lshl_b32 s64, s64, 11", "s_lshl_b32 s34, s57, 6", "s_add_u32 s64, s64, s34",
            "s_add_u32 s65, s64, 262144", "s_add_u32 s66, s64, 524288", "s_add_u32 s67, s64, 786432",
            "s_mov_b64 s[20:21], s[8:9]", "s_mov_b32 s22, 4194304", "s_mov_b32 s23, 0x20000",
        ]
        val = [f"v_mov_b32 v{T0+r}, 0" for r in range(4)] + [f"v_mov_b32 v7, {L_C}", f"ds_write_b128 v7, {vr(T0,4)}",
            f"v_and_b32 v{AX+4}, 60, v2",
            f"v_and_b32 v{AX+5}, 3, v2",
            f"v_lshl_add_u32 v{AX+4}, v{AX+4}, 1, v{AX+5}",
            f"v_bfe_u32 v{AX+5}, v2, 4, 1",
            f"v_lshl_add_u32 v{AX+4}, v{AX+5}, 2, v{AX+4}",
            f"v_lshlrev_b32 v{AX+4}, 3, v{AX+4}",
            f"v_xor_b32 v{AX+5}, 32, v{AX+4}",
            f"v_add_u32 v{AX}, s53, v{AX+4}",
            f"v_xor_b32 v{AX+1}, 32, v{AX}"] + [f"v_mov_b32 v{SEL+r}, 0x3f803f80" for r in range(4)] + [
            f"v_mov_b32 v{VROW}, s47", f"v_mov_b32 v{T0+10}, 1", f"v_mov_b32 v{T0+11}, 0"]
        sal = ["s_and_b32 s51, s47, 7", "s_bfe_u32 s34, s47, 0x40003", "s_lshl4_add_u32 s51, s51, s34",
               "s_lshr_b32 s34, s47, 7", "s_lshl4_add_u32 s51, s51, s34", f"s_lshl3_add_u32 s51, s51, {WS_ST}",
               "s_lshl_b32 s52, s46, 23", f"s_sub_u32 s52, {f2u(1/8)}, s52",
               "s_mov_b32 s60, 0x80000000", "s_mov_b32 s61, 0xfffff800", "s_mov_b32 s71, 0"]

    def inter(sl, vl):
        for k in range(max(len(sl), len(vl))):
            if k < len(sl):
                a(sl[k])
            if k < len(vl):
                a(vl[k])

    def pairs(lo, hi):
        for k in range(lo, hi):
            if k < len(sal):
                a(sal[k])
            if k < len(val):
                a(val[k])

    def table_reads():
        for k in range(9):
            a(f"ds_read_b128 {vr(F1C+4*k,4)}, v{ATB} offset:{L_T+1024*k}")
    SW, S = DB_ + 8, DB_ + 12

    def ror(v, r):
        a(f"v_add_f32_dpp v{v}, v{v}, v{v} row_ror:{r} row_mask:0xf bank_mask:0xf")
    npairs = max(len(val), len(sal))
    if Cfg.e1:
        late = [x for x in sal if "s[8:9]" in x]
        sal = [x for x in sal if "s[8:9]" not in x]
        pairs(0, Cfg.e1v)
        row_requests()
        if Cfg.mpos == 1:
            a("s_branch F_go")
            m_first()
            a.label("F_go")
        a("s_barrier")
        table_reads()
        poison()
        pairs(Cfg.e1v, npairs)
        for x in late:
            a(x)
        estamp(a, 9)
        a("s_waitcnt vmcnt(3) lgkmcnt(0)")
        estamp(a, 10)
        a("s_barrier")
        stamp(a, 2)
        for be in range(2):
            for u2 in range(2):
                a(f"ds_read_b64_tr_b16 {vr(WR+4*be+2*u2,2)}, v{AX+4+be} offset:{L_WR+1024*u2}")
        nonce(a)
        a(f"s_mov_b32 s63, {f2u(1/1024)}")
        a(f"v_mov_b32 v{T0+9}, s33")
        if Cfg.kprio:
            a(f"s_setprio {Cfg.kprio}")
        a("s_waitcnt vmcnt(1)")
        estamp(a, 11)
    else:
        pairs(0, npairs)
        for k in range(Cfg.pad):
            a(f"v_lshlrev_b32 v{DA_ + k % 8}, 1, v2")
        if Cfg.revpos == 0:
            rev_loads()
        estamp(a, 9)
        a(f"s_waitcnt vmcnt({5 if Cfg.revpos in (0, 3) else 3}) lgkmcnt(0)")
        estamp(a, 10)
        a("s_barrier")
        if Cfg.revpos == 1:
            rev_loads()
        stamp(a, 2)
        for be in range(2):
            for u2 in range(2):
                a(f"ds_read_b64_tr_b16 {vr(WR+4*be+2*u2,2)}, v{AX+4+be} offset:{L_WR+1024*u2}")
        if not Cfg.fastk:
            table_reads()
        if Cfg.revpos == 2:
            rev_loads()
        nonce(a)
        a(f"s_mov_b32 s63, {f2u(1/1024)}")
        a(f"v_mov_b32 v{T0+9}, s33")
        lgk(a, 0 if Cfg.fastk else 9)
        a(f"v_mfma_f32_16x16x32_bf16 {vr(SW,4)}, {vr(SEL,4)}, {vr(WR,4)}, 0")
        a(f"v_mfma_f32_16x16x32_bf16 {vr(SW,4)}, {vr(SEL,4)}, {vr(WR+4,4)}, {vr(SW,4)}")
        if not Cfg.fastk:
            for r in (8, 4, 2, 1):
                ror(SW, r)
        stamp(a, 3)
        if Cfg.kprio:
            a(f"s_setprio {Cfg.kprio}")
        if Cfg.revpos == 4:
            a("s_waitcnt vmcnt(1) lgkmcnt(0)")
            estamp(a, 11)
            if not Cfg.fastk:
                rev_loads()
        else:
            a("s_waitcnt vmcnt(3) lgkmcnt(0)")
    for be in range(2):
        for u2 in range(2):
            a(f"ds_read_b64_tr_b16 {vr(PA+4*be+2*u2,2)}, v{AX+be} offset:{1024*u2}")

    def xp_load(h):
        if h == 0:
            a("s_mov_b32 m0, s53")
            a("s_add_u32 s35, s64, 16384")
            a("buffer_load_dwordx4 v6, s[12:15], s64 offen lds")
        else:
            a("s_add_u32 m0, s53, 1152")
            a("s_add_u32 s35, s64, 16384")
            if Cfg.halfxp:
                a("s_mov_b64 exec, 1")
            a("buffer_load_dwordx4 v6, s[12:15], s35 offen lds")
            if Cfg.halfxp:
                a("s_mov_b64 exec, -1")

    def bc15(v):
        a(f"v_add_f32_dpp v{v}, v{v}, v{v} row_bcast:15 row_mask:0xa bank_mask:0xf")

    def s1(D, P):
        for c, F1 in enumerate((F1C, F1S)):
            for b in range(2):
                a(f"v_mfma_f32_16x16x32_bf16 {vr(D+8*c+4*b,4)}, {vr(P+4*b,4)}, {vr(F1,4)}, 0")
    if (Cfg.fastk or Cfg.e1) and Cfg.revpos == 4:
        rev_loads()
    if Cfg.e1:
        lgk(a, 4)
        a(f"v_mfma_f32_16x16x32_bf16 {vr(SW,4)}, {vr(SEL,4)}, {vr(WR,4)}, 0")
        a(f"v_mfma_f32_16x16x32_bf16 {vr(SW,4)}, {vr(SEL,4)}, {vr(WR+4,4)}, {vr(SW,4)}")
    lgk(a, 2)
    a(f"v_mfma_f32_16x16x32_bf16 {vr(S,4)}, {vr(SEL,4)}, {vr(PA,4)}, 0")
    for j in range(8):
        if j == 4:
            lgk(a, 0)
            a(f"v_mfma_f32_16x16x32_bf16 {vr(S,4)}, {vr(SEL,4)}, {vr(PA+4,4)}, {vr(S,4)}")
        a(f"v_dot2_f32_bf16 v{DW}, v{PA+j}, v{WR+j}, v{DW}")
        a(f"v_dot2_f32_bf16 v{QA}, v{PA+j}, v{PA+j}, v{QA}")
    M, RS, CC = T0+4, T0+3, T0+5
    sw = (lambda r: ror(SW, r)) if (Cfg.fastk or Cfg.e1) else (lambda r: None)
    ror(S, 8)
    sw(8)
    a(f"v_permlane32_swap_b32 v{QA}, v{DW}")
    ror(S, 4)
    a(f"v_add_f32 v{QA}, v{QA}, v{DW}")
    sw(4)
    ror(S, 2)
    ror(QA, 8)
    sw(2)
    ror(S, 1)
    ror(QA, 4)
    sw(1)
    a(f"v_mul_f32 v{M}, {f2u(1/1024)}, v{S}")
    ror(QA, 2)
    a(f"v_mul_f32 v{CC}, -v{M}, v{M}")
    ror(QA, 1)
    a(f"v_mul_f32 v{DW}, v{M}, v{SW}")
    bc15(QA)
    a(f"v_readlane_b32 s34, v{QA}, 48")
    a(f"v_fmamk_f32 v{QA}, v{QA}, {f2u(1/1024)}, v{CC}")
    a(f"v_max_f32 v{QA}, 0, v{QA}")
    a(f"v_add_f32 v{RS}, {f2u(1e-5)}, v{QA}")
    a(f"v_rsq_f32 v{RS}, v{RS}")
    a(f"v_sub_f32 v{DW}, s34, v{DW}")
    a(f"v_mul_f32 v{DW}, v{DW}, v{RS}")
    a(f"v_ashrrev_i32 v{T0+7}, 31, v{DW}")
    a(f"v_bitop3_b32 v{T0+7}, v{DW}, v{T0+7}, s60 bitop3:0x1e")
    a(f"v_and_or_b32 v{T0+7}, v{T0+7}, s61, v{VROW}")
    estamp(a, 13)
    a("s_mov_b64 exec, 0x10000")
    a("s_waitcnt vmcnt(2)")
    if Cfg.stamps and Cfg.early:
        a("s_mov_b64 exec, -1")
        estamp(a, 15)
        a("s_mov_b64 exec, 0x10000")
    a(f"ds_max_u32 v7, v{T0+7}")
    a(f"ds_add_rtn_u32 v{T0+10}, v7, v{T0+10} offset:8")
    a(f"v_cvt_pk_bf16_f32 v{T0+8}, v{M}, v{QA}")
    if Cfg.nostst:
        a(f"s_lshl3_add_u32 s34, s2, s3")
        a(f"s_lshl_b32 s34, s34, 7")
        a(f"s_add_u32 s34, s34, {8 << 20}")
    a(f"buffer_store_dwordx2 {vr(T0+8,2)}, v{T0+11}, s[24:27], {'s34' if Cfg.nostst else 's51'} offen sc1")
    a("s_mov_b64 exec, -1")
    a(f"ds_read_b32 v{T0+6}, v7")
    if Cfg.fastk:
        table_reads()
    a(f"v_mul_f32 v{RS}, s52, v{RS}")
    a(f"v_mul_f32 v{CC}, v{M}, v{RS}")
    a(f"v_readlane_b32 s54, v{RS}, 16")
    a(f"v_readlane_b32 s70, v{CC}, 16")
    if not Cfg.fastk:
        s1(DA_, PA)
    lgk(a, 9 if Cfg.fastk else 0)
    a(f"v_readlane_b32 s34, v{T0+10}, 16")
    a("s_cmp_lg_u32 s34, 7")
    a("s_cbranch_scc0 F_key")
    if Cfg.fastk:
        a.label("F_nokey")
        if Cfg.kprio:
            a("s_setprio 0")
        lgk(a, 7)
        s1(DA_, PA)
        a("s_cmp_lg_u32 s34, 7")
        a("s_waitcnt vmcnt(2) lgkmcnt(0)")
        a("s_cbranch_scc0 F_nokey2")
    estamp(a, 12)
    if Cfg.e2:
        a.label("F_nokey")
        if Cfg.kprio:
            a("s_setprio 0")
        inter(mid_s, mid_v)
        a("s_cmp_lg_u32 s71, 0")
        a("s_cbranch_scc1 F_wkey")
        a("s_waitcnt vmcnt(1)")
        a.label("F_wkey_r")
    else:
        a("s_waitcnt vmcnt(1)")
        a.label("F_nokey2" if Cfg.fastk else "F_nokey")
    if Cfg.diag == 2:
        a("s_branch L_fin")
    if Cfg.kprio and not Cfg.fastk and not Cfg.e2:
        a("s_setprio 0")
    stamp(a, 4)
    for be in range(2):
        for u2 in range(2):
            a(f"ds_read_b64_tr_b16 {vr(PQ+4*be+2*u2,2)}, v{AX+2+be} offset:{2048+1024*(1-u2)}")
    a(f"ds_read_b64_tr_b16 {vr(PB,2)}, v{AY+2} offset:2048")
    a(f"ds_read_b64_tr_b16 {vr(PB+2,2)}, v{AY} offset:2048")
    a(f"ds_read_b64_tr_b16 {vr(PB+4,2)}, v{AY+1} offset:3072")
    a(f"ds_read_b64_tr_b16 {vr(PB+6,2)}, v{AY+1} offset:2048")
    lgk(a, 6)
    a(f"v_mfma_f32_16x16x32_bf16 {vr(S,4)}, {vr(SEL,4)}, {vr(PQ,4)}, 0")
    for j in range(8):
        if j == 4:
            lgk(a, 4)
            a(f"v_mfma_f32_16x16x32_bf16 {vr(S,4)}, {vr(SEL,4)}, {vr(PQ+4,4)}, {vr(S,4)}")
        a(f"v_dot2_f32_bf16 v{QB}, v{PQ+j}, v{PQ+j}, v{QB}")
    a("s_mov_b32 exec_lo, 0xeeeeeeee")
    a("s_mov_b32 exec_hi, 0xeeeeeeee")
    lgk(a, 0)
    for j in range(8):
        a(f"v_mov_b32_dpp v{PB+j}, v{PQ+j} quad_perm:[0,3,2,1] row_mask:0xf bank_mask:0xf")
    a("s_mov_b64 exec, -1")
    if Cfg.xpos in (7, 8):
        xp_load(0)
    if Cfg.xpos == 7:
        xp_load(1)
    a(f"v_add_f32_dpp v{M}, v{S}, v{S} row_ror:8 row_mask:0xf bank_mask:0xf")
    mf = [f"v_mfma_f32_16x16x32_bf16 {vr(DB_+8*c+4*b,4)}, {vr(PB+4*b,4)}, {vr(F1,4)}, 0"
          for c, F1 in enumerate((F1C, F1S)) for b in range(2)]
    ror(QB, 8)
    a(mf[0])
    for k, r in enumerate((4, 2, 1)):
        ror(M, r)
        ror(QB, r)
        a(mf[1+k])
    a(f"v_mul_f32 v{M}, {f2u(1/1024)}, v{M}")
    bc15(QB)
    a(f"v_fmaak_f32 v{CC}, v{M}, v{M}, {f2u(-1e-5)}")
    CV = T0+8
    a(f"v_mul_f32 v{CV}, s70, v{K32}")
    a(f"v_add_f32_dpp v{QB}, v{QB}, v{QB} row_bcast:31 row_mask:0xc bank_mask:0xf")
    a(f"v_fma_f32 v{QB}, v{QB}, s63, -v{CC}")
    a(f"v_max_f32 v{QB}, {f2u(1e-5)}, v{QB}")
    a(f"v_rsq_f32 v{QB}, v{QB}")
    for r in range(8, 16, 2):
        a(f"v_pk_mul_f32 {vr(DA_+r,2)}, {vr(DA_+r,2)}, s[54:55] op_sel:[0,0] op_sel_hi:[1,0]")
        if r == 8:
            a(f"v_mul_f32 v{QB}, s52, v{QB}")
        if r == 10:
            a(f"v_readlane_b32 s55, v{QB}, 48")
    a(f"v_mul_f32 v{M}, s55, v{M}")
    a(f"v_fmac_f32 v{CV}, v{M}, v{K32}")
    a.label("F_pass")
    T, TP, D2, Z = WR, SEL, DB_, WR
    for r in range(0, 8, 2):
        a(f"v_pk_fma_f32 {vr(DA_+r,2)}, {vr(DA_+r,2)}, s[54:55], {vr(CV,2)} op_sel:[0,0,0] op_sel_hi:[1,0,0]")
    for r in range(0, 16, 2):
        a(f"v_pk_fma_f32 {vr(DA_+r,2)}, {vr(DB_+r,2)}, s[54:55], {vr(DA_+r,2)} op_sel:[0,1,0] op_sel_hi:[1,1,1]")
    for r in range(8):
        a(f"v_cvt_pk_f16_f32 v{T+r}, v{DA_+2*r}, v{DA_+2*r+1}")
    for i in range(4):
        a(f"v_pk_mul_f16 v{TP+i}, v{T+i}, v{TWC+i}")
    for i in range(4):
        a(f"v_pk_fma_f16 v{TP+i}, v{T+4+i}, v{TWS+i}, v{TP+i}")
    for i in range(4):
        a(f"v_pk_mul_f16 v{TP+4+i}, v{T+4+i}, v{TWC+i}")
    a(f"v_mfma_f32_16x16x32_f16 {vr(D2,4)}, {vr(TP,4)}, {vr(F2C,4)}, 0")
    a(f"v_mfma_f32_16x16x32_f16 {vr(D2+4,4)}, {vr(TP,4)}, {vr(F2S,4)}, 0")
    for i in range(4):
        a(f"v_pk_fma_f16 v{TP+4+i}, v{T+i}, v{TWS+i}, v{TP+4+i} neg_lo:[1,0,0] neg_hi:[1,0,0]")
    a(f"v_mfma_f32_16x16x32_f16 {vr(D2,4)}, {vr(TP+4,4)}, {vr(F2N,4)}, {vr(D2,4)}")
    a(f"v_mfma_f32_16x16x32_f16 {vr(D2+4,4)}, {vr(TP+4,4)}, {vr(F2C,4)}, {vr(D2+4,4)}")
    for i in range(4):
        a(f"v_cvt_pk_f16_f32 v{Z+i}, v{D2+i}, v{D2+4+i}")
    a(f"ds_write_b128 v{AZW}, {vr(Z,4)} offset:{L_Z}")
    if Cfg.xpos == 9:
        xp_load(0)
    if Cfg.xpos in (8, 9):
        xp_load(1)
    stamp(a, 6)
    a("s_waitcnt lgkmcnt(0)")
    a("s_barrier")
    a(f"ds_read2st64_b32 {vr(Z+4,2)}, v{AZR} offset0:{L_Z//256} offset1:{L_Z//256+4}")
    a(f"ds_read2st64_b32 {vr(Z+6,2)}, v{AZR} offset0:{L_Z//256+8} offset1:{L_Z//256+12}")
    a("s_waitcnt lgkmcnt(0)")
    a(f"v_mfma_f32_16x16x32_f16 {vr(D2+8,4)}, {vr(Z+4,4)}, {vr(R8R,4)}, 0")
    a(f"v_mfma_f32_16x16x32_f16 {vr(D2+12,4)}, {vr(Z+4,4)}, {vr(R8I,4)}, 0")
    for i in range(4):
        a(f"v_cvt_pk_f16_f32 v{TP+i}, v{D2+8+i}, v{D2+12+i}")
    for k in range(Cfg.pad2):
        a(f"v_lshlrev_b32 v{D2 + k % 4}, 1, v2")
    if Cfg.vdel:
        a("s_cmp_ge_u32 s2, 224")
        a("s_cbranch_scc1 F_nvd")
        a(f"s_sleep {Cfg.vdel}")
        a.label("F_nvd")
    a(f"buffer_store_dwordx4 {vr(TP,4)}, v{AVS}, s[24:27], s50 offen sc1")
    if Cfg.noack:
        a("s_cmp_lg_u32 s3, 7")
        a("s_cbranch_scc1 F_nef")
        a("s_cmp_lg_u32 s46, 0")
        a("s_cbranch_scc1 F_nef")
        a(f"v_mov_b32 v{T0}, s33")
        a(f"v_lshlrev_b32 v{T0+1}, 10, v2")
        a(f"s_mov_b32 exec_lo, {hex((1 << Cfg.brep) - 1)}")
        a("s_mov_b32 exec_hi, 0")
        a(f"buffer_store_dword v{T0}, v{T0+1}, s[24:27], s29 offen sc1")
        a("s_mov_b64 exec, -1")
        a.label("F_nef")
    a("s_cmp_lg_u32 s46, 0")
    a("s_cbranch_scc1 F_second")
    stamp(a, 7)

    if Cfg.diag == 3:
        a("s_branch L_fin")
    XP, ST, CA, CX, CB, V, VX = 8, 24, 32, 40, 44, 48, 56
    XF, G, TMP = 60, 76, 92
    DA = 92
    AV, AUW, AUR, AST, AVX = 120, 121, 122, 124, 125
    if Cfg.xpos == 0:
        xp_load(0)
        xp_load(1)
    if Cfg.e2:
        inter(post_s, post_v)
    if Cfg.own1:
        a("s_mov_b32 s16, 0")
    if Cfg.latex:
        assert Cfg.xpos == 5 and Cfg.gfirst and Cfg.midg
        a("s_lshr_b32 s34, s57, 1")
        a("s_lshl4_add_u32 s34, s56, s34")
        a("s_cmp_eq_u32 s34, 63")
        a("s_cselect_b32 s46, 3, 0")
    def xp_pair(k):
        a("s_lshr_b32 s34, s3, 1")
        a("s_lshl2_add_u32 s34, s46, s34")
        a(f"s_cmp_lg_u32 s34, {k}")
        a(f"s_cbranch_scc1 F_xp{k}")
        xp_load(0)
        xp_load(1)
        a.label(f"F_xp{k}")
    if Cfg.nsl:
        xp_pair(0)
    COL, H, TF, CP, PH, MK = range(T0+2, T0+8)
    ANG, STP = T0+8, T0+9
    a(f"v_and_b32 v{COL}, 31, v2")
    a(f"v_lshrrev_b32 v{H}, 5, v2")
    a("s_lshl_b32 s61, s44, 31")
    a(f"s_xor_b32 s60, s61, {f2u(1/2048)}")
    a(f"v_lshrrev_b32 v{TF}, 1, v{COL}")
    a(f"v_lshl_add_u32 v{TF}, v{TF}, 3, s56")
    a(f"v_cvt_f32_u32 v{TF}, v{TF}")
    a(f"v_mul_f32 v{TF}, s60, v{TF}")
    a(f"v_and_b32 v{CP}, 1, v{COL}")
    a(f"v_cvt_f32_u32 v{PH}, v{CP}")
    a("s_sub_u32 s58, 16, s3")
    a("s_cmp_eq_u32 s3, 0")
    a(f"s_cselect_b32 s34, 0, {f2u(0.25)}")
    a("s_cselect_b32 s35, 0, -1")
    a("s_cselect_b32 s58, 8, s58")
    a(f"v_mul_f32 v{PH}, s34, v{PH}")
    a(f"v_mul_f32 v{STP}, {f2u(32.0)}, v{TF}")
    for sec in range(2):
        a(f"v_lshl_add_u32 v{ANG}, v{H}, 4, {'s3' if sec == 0 else 's58'}")
        a(f"v_cvt_f32_u32 v{ANG}, v{ANG}")
        a(f"v_fma_f32 v{ANG}, v{ANG}, v{TF}, {'' if sec == 0 else '-'}v{PH}")
        for jj in range(4):
            a(f"v_cos_f32 v{T0}, v{ANG}")
            a(f"v_sin_f32 v{T0+1}, v{ANG}")
            a(f"v_add_f32 v{ANG}, v{ANG}, v{STP}")
            a(f"v_cvt_pk_f16_f32 v{CA+4*sec+jj}, v{T0}, v{T0+1}")
        if sec == 0 and Cfg.early_b2:
            break
    def stats_addr():
        a(f"v_lshrrev_b32 v{T0+10}, 3, v3")
        a(f"v_lshlrev_b32 v{AST}, 7, v{T0+10}")
        a(f"v_lshl_add_u32 v{AST}, v4, 5, v{AST}")
        a("s_lshl3_add_u32 s59, s56, s3")
        a("s_lshl_b32 s59, s59, 8")
        a(f"s_add_u32 s59, s59, {WS_ST}")
    if Cfg.spos:
        assert Cfg.xpos >= 7
        stats_addr()
        a(f"buffer_load_dwordx4 {vr(ST,4)}, v{AST}, s[24:27], s59 offen sc1")
        a(f"buffer_load_dwordx4 {vr(ST+4,4)}, v{AST}, s[24:27], s59 offen offset:16 sc1")

    def p2_setup():
        if Cfg.early_b2:
            a(f"v_lshl_add_u32 v{ANG}, v{H}, 4, s58")
            a(f"v_cvt_f32_u32 v{ANG}, v{ANG}")
            a(f"v_fma_f32 v{ANG}, v{ANG}, v{TF}, -v{PH}")
            for jj in range(4):
                a(f"v_cos_f32 v{T0}, v{ANG}")
                a(f"v_sin_f32 v{T0+1}, v{ANG}")
                a(f"v_add_f32 v{ANG}, v{ANG}, v{STP}")
                a(f"v_cvt_pk_f16_f32 v{CA+4+jj}, v{T0}, v{T0+1}")
        a("s_cmp_lg_u32 s3, 0")
        a("s_cbranch_scc1 F_now0")
        a(f"v_mul_f32 v{ANG}, {f2u(128.0)}, v{TF}")
        a(f"v_cos_f32 v{T0}, v{ANG}")
        a(f"v_sin_f32 v{T0+1}, v{ANG}")
        a(f"v_add_u32 v{MK}, -1, v{CP}")
        for jj in range(4):
            a(f"v_and_b32 v{CA+jj}, v{CA+jj}, v{MK}")
            a(f"v_bfi_b32 v{CA+4+jj}, v{MK}, 0, v{CA+4+jj}")
        a(f"v_or_b32 v{MK}, v{CP}, v{H}")
        a(f"v_add_u32 v{MK}, -1, v{MK}")
        a(f"v_cvt_pk_f16_f32 v{CX}, v{T0}, v{T0+1}")
        a(f"v_and_b32 v{CX}, v{CX}, v{MK}")
        for r in range(1, 4):
            a(f"v_mov_b32 v{CX+r}, 0")
            a(f"v_mov_b32 v{VX+r}, 0")
        a.label("F_now0")
        if Cfg.nsl == 1:
            xp_pair(3)
        a(f"s_xor_b32 s60, s61, {f2u(1/16)}")
        a(f"v_cvt_f32_u32 v{STP}, v3")
        a(f"v_mul_f32 v{STP}, s60, v{STP}")
        a(f"v_lshlrev_b32 v{ANG}, 1, v4")
        a(f"v_cvt_f32_u32 v{ANG}, v{ANG}")
        a(f"v_mul_f32 v{ANG}, v{ANG}, v{STP}")
        a(f"v_add_f32 v{STP}, v{ANG}, v{STP}")
        a(f"v_cos_f32 v{T0}, v{ANG}")
        a(f"v_sin_f32 v{T0+1}, v{ANG}")
        a(f"v_cos_f32 v{PH}, v{STP}")
        a(f"v_sin_f32 v{MK}, v{STP}")
        a(f"v_cvt_pk_f16_f32 v{CB}, v{T0}, v{T0+1}")
        a("s_mov_b32 s34, 0x3c003c00")
        a(f"v_cvt_pk_f16_f32 v{CB+1}, v{PH}, v{MK}")
        a("s_mov_b64 exec, 0xffff")
        a(f"v_lshl_or_b32 v{CB}, v3, 31, s34")
        a("s_mov_b64 exec, -1")
        a(f"v_lshl_add_u32 v{AUR}, s3, 1, v{T0+10}")
        a(f"v_mul_u32_u24 v{AUR}, 1280, v{AUR}")
        a(f"v_mul_u32_u24 v{T0}, 272, v4")
        a(f"v_and_b32 v{T0+1}, 7, v3")
        a(f"v_lshlrev_b32 v{T0+1}, 5, v{T0+1}")
        a(f"v_add3_u32 v{AUR}, v{AUR}, v{T0}, v{T0+1}")
        a("s_lshr_b32 s34, s3, 1")
        a("s_mul_i32 s34, s34, 272")
        a("s_and_b32 s35, s3, 1")
        a("s_lshl2_add_u32 s34, s35, s34")
        a(f"v_mul_u32_u24 v{AUW}, 2560, v{H}")
        a(f"v_lshl_add_u32 v{AUW}, v{COL}, 3, v{AUW}")
        a(f"v_add_u32 v{AUW}, s34, v{AUW}")
        a("s_cmp_eq_u32 s44, 0")
        a("s_cselect_b32 s34, 0, 31")
        a("s_cselect_b32 s35, -1, 0")
        a("s_lshl_b32 s60, s45, 5")
        a("s_add_u32 s35, s35, s60")
        a(f"v_xor_b32 v{T0}, s34, v{COL}")
        a(f"v_add_u32 v{T0}, s35, v{T0}")
        a(f"v_max_i32 v{T0}, 0, v{T0}")
        if Cfg.vfull == 2:
            a(f"v_bfe_u32 v{AVX}, v{T0}, 4, 1")
            a(f"v_mul_u32_u24 v{AVX}, {VU}, v{AVX}")
            a(f"v_lshrrev_b32 v{T0+1}, 6, v{T0}")
            a(f"v_lshl_add_u32 v{AVX}, v{T0+1}, 10, v{AVX}")
            a(f"v_bfe_u32 v{T0+1}, v{T0}, 5, 1")
            a(f"v_lshl_add_u32 v{AVX}, v{T0+1}, 6, v{AVX}")
            a(f"v_and_b32 v{T0}, 15, v{T0}")
        elif Cfg.vfull:
            a(f"v_lshrrev_b32 v{T0+1}, 6, v{T0}")
            a(f"v_bfe_u32 v{AVX}, v{T0}, 4, 1")
            a(f"v_lshl_add_u32 v{AVX}, v{T0+1}, 1, v{AVX}")
            a(f"v_mul_u32_u24 v{AVX}, {VB}, v{AVX}")
            a(f"v_bfe_u32 v{T0+1}, v{T0}, 5, 1")
            a(f"v_lshl_add_u32 v{AVX}, v{T0+1}, 6, v{AVX}")
            a(f"v_and_b32 v{T0}, 15, v{T0}")
        else:
            a(f"v_lshrrev_b32 v{AVX}, 5, v{T0}")
            a(f"v_mul_u32_u24 v{AVX}, {VB}, v{AVX}")
            a(f"v_and_b32 v{T0}, 31, v{T0}")
        a(f"v_lshl_add_u32 v{AVX}, v{T0}, 2, v{AVX}")
        if Cfg.vfull == 2:
            a(f"v_mul_u32_u24 v{AV}, {2*VU}, v{H}")
            a(f"v_add_u32 v{AV}, v{AV}, v{AVX}")
            a("s_lshl_b32 s58, s28, 7")
            a(f"s_add_u32 s58, s58, {WS_V}")
            a(f"s_add_u32 s60, s58, {256*VU}")
            a(f"s_mul_i32 s34, s3, {32*VU}")
        else:
            a(f"v_lshl_add_u32 v{AV}, v{H}, 7, v{AVX}")
            a(f"s_mul_i32 s58, s28, {16*VB}")
            a(f"s_add_u32 s58, s58, {WS_V}")
            a("s_add_u32 s60, s58, 16384")
            a("s_lshl_b32 s34, s3, 11")
        a("s_add_u32 s58, s58, s34")
        a("s_lshl4_add_u32 s47, s3, s56")
        a("s_lshl_b32 s48, s57, 7")
        a(f"s_add_u32 s49, s48, {WS_H2}")
        a(f"s_lshl1_add_u32 s48, s48, {WS_N2}")
        a("s_add_u32 s52, s48, 128")
        a(f"s_and_b32 s34, s2, {Cfg.brep-1}")
        a("s_lshl3_add_u32 s34, s34, s3")
        a("s_lshl_b32 s34, s34, 7")
        a(f"s_add_u32 s34, s34, {WS_KB}")
        if Cfg.fpf:
            a("s_mov_b64 s[16:17], s[42:43]")
            a("s_mov_b32 s18, 7340032")
        a("s_add_u32 s42, s10, s34")
        a("s_addc_u32 s43, s11, 0")
        a("s_mov_b32 s40, s33")
        a("s_mov_b32 s41, s33")
        a("s_and_b32 s63, s2, 31")
        a("s_lshl_b32 s63, s63, 7")
        a(f"s_add_u32 s63, s63, {WS_RES}")

    def free_prefetch():
        a("s_cmp_lt_u32 s2, 224")
        a("s_cbranch_scc1 F_npf")
        a("s_cmp_eq_u32 s3, 7")
        a("s_cbranch_scc1 F_npf")
        a("s_bfe_u32 s34, s2, 0x20003")
        a("s_mul_i32 s34, s34, 7")
        a("s_add_u32 s34, s34, s3")
        a("s_and_b32 s35, s2, 7")
        a("s_lshl3_add_u32 s34, s34, s35")
        a("s_and_b32 s35, s34, 3")
        if Cfg.dxor:
            a("s_xor_b32 s35, s35, 1")
        a("s_lshr_b32 s34, s34, 2")
        a("s_lshl_b32 s34, s34, 8")
        a("s_add_u32 s34, s34, s35")
        a("s_lshl_b32 s34, s34, 9")
        a(f"s_mov_b32 m0, {LDS_BYTES - 256}")
        b_ = 1 if Cfg.fboth else 0
        a(f"v_lshrrev_b32 v1, {2+b_}, v2")
        a(f"v_and_b32 v5, {(4 << b_) - 1}, v2")
        a(f"v_lshlrev_b32 v5, {7-b_}, v5")
        a("v_lshl_add_u32 v5, v1, 11, v5")
        for k in range(Cfg.fpf << b_):
            a(f"s_add_u32 s35, s34, {131072 - (k+1)*(32768 >> b_)}")
            a("buffer_load_dword v5, s[16:19], s35 offen lds")
        a.label("F_npf")

    def staggered(name):
        a(f"s_and_b32 s34, s3, {7 if Cfg.xpos == 6 else 3}")
        a.label(name)
        a("s_cmp_eq_u32 s34, 0")
        a(f"s_cbranch_scc1 {name}_d")
        a(f"s_sleep {Cfg.stag}")
        a("s_sub_u32 s34, s34, 1")
        a(f"s_branch {name}")
        a.label(name + "_d")
        xp_load(0)
        xp_load(1)
    if Cfg.noack:
        a("s_barrier")
        if Cfg.xpos == 6:
            if Cfg.xdel:
                a(f"s_sleep {Cfg.xdel}")
            staggered("F_sg6")
    else:
        a(f"v_mov_b32 v{V}, s33")
        a(f"v_lshlrev_b32 v{V+1}, 10, v2")
        if Cfg.xpos == 5:
            a("s_lshl2_add_u32 s34, s46, s3")
            a("s_cmp_ge_u32 s34, 4")
            a("s_cbranch_scc1 F_x5a")
            if Cfg.nsl:
                xp_pair(1)
            else:
                staggered("F_sg0")
            if Cfg.allpre:
                a.label("F_x5a")
                stats_addr()
                p2_setup()
                a("s_lshl2_add_u32 s34, s46, s3")
                a("s_cmp_lt_u32 s34, 4")
                a("s_waitcnt vmcnt(2)")
                a("s_cbranch_scc1 F_x5b")
            else:
                a("s_waitcnt vmcnt(2)")
                a("s_branch F_x5b")
                a.label("F_x5a")
            a("s_waitcnt vmcnt(0)")
            a.label("F_x5b")
        elif Cfg.allpre:
            stats_addr()
            p2_setup()
        a("s_cmp_lg_u32 s3, 7")
        if Cfg.xpos != 5:
            a(f"s_waitcnt vmcnt({2 if Cfg.xpos == 0 or Cfg.spos else 0})")
        a("s_barrier")
        a("s_cbranch_scc1 F_noflag")
        if Cfg.brep < 64:
            a(f"s_mov_b32 exec_lo, {hex((1 << Cfg.brep) - 1)}")
            a("s_mov_b32 exec_hi, 0")
        a(f"buffer_store_dword v{V}, v{V+1}, s[24:27], s29 offen sc1")
        a("s_mov_b64 exec, -1")
        a.label("F_noflag")
    stamp(a, 8)
    if Cfg.diag == 4:
        a("s_branch L_fin")
    if Cfg.xpos == 2:
        xp_load(0)
        xp_load(1)
    if Cfg.xpos == 5:
        a("s_lshr_b32 s34, s3, s46")
        a("s_cmp_lt_u32 s34, 4")
        a("s_cbranch_scc1 F_x5c")
        if Cfg.nsl:
            xp_pair(2)
        else:
            staggered("F_sg1")
        a.label("F_x5c")
    if not Cfg.spos and not Cfg.allpre:
        stats_addr()
    a("s_mov_b32 s62, 0")
    if Cfg.spos:
        a("s_branch F_stats_i")
    a.label("F_stats")
    if Cfg.nostat:
        for r in range(4):
            a(f"v_mov_b32 v{ST+2*r}, 0x3b200000")
            a(f"v_mov_b32 v{ST+2*r+1}, s33")
    else:
        a(f"buffer_load_dwordx4 {vr(ST,4)}, v{AST}, s[24:27], s59 offen sc1")
        a(f"buffer_load_dwordx4 {vr(ST+4,4)}, v{AST}, s[24:27], s59 offen offset:16 sc1")
    a("s_cmp_lg_u32 s62, 0")
    a("s_cbranch_scc1 F_stats_w")
    a.label("F_stats_i")
    if not Cfg.allpre:
        p2_setup()

    def v_fetch():
        if Cfg.rdel:
            a(f"s_sleep {Cfg.rdel}")
        a("s_mov_b32 s62, 0")
        if Cfg.midg:
            a("s_cmp_eq_u32 s46, 2")
            a("s_cbranch_scc1 F_fetched")
            a("s_branch F_poll_w")
        elif Cfg.pre:
            a("s_branch F_poll_w")
        a.label("F_poll")
        a("s_load_dwordx16 s[68:83], s[42:43], 0 glc")
        a("s_load_dwordx16 s[84:99], s[42:43], 64 glc")
        a.label("F_poll_w")
        a("s_waitcnt lgkmcnt(0)")
        a("s_xor_b64 s[68:69], s[68:69], s[40:41]")
        for k in range(1, 16):
            a(f"s_xor_b64 s[{68+2*k}:{69+2*k}], s[{68+2*k}:{69+2*k}], s[40:41]")
            a(f"s_or_b64 s[68:69], s[68:69], s[{68+2*k}:{69+2*k}]")
        a("s_cbranch_scc0 F_rel")
        if Cfg.midg:
            a("s_cmp_lg_u32 s46, 0")
            a("s_cbranch_scc1 F_poll_n")
            a("s_mov_b32 s46, 1")
            a("s_load_dwordx16 s[68:83], s[42:43], 0 glc")
            a("s_load_dwordx16 s[84:99], s[42:43], 64 glc")
            a("s_branch F_mid")
            a.label("F_poll_n")
        if Cfg.hyb:
            a("s_getreg_b32 s34, hwreg(HW_REG_IB_STS, 0, 4)")
            a("s_or_b32 s34, s34, s46")
            a("s_cbranch_scc0 F_early_no")
        a("s_add_u32 s62, s62, 1")
        if Cfg.psl:
            a(f"s_sleep {Cfg.psl}")
        a(f"s_cmp_lt_u32 s62, {SPIN_CAP}")
        a("s_cbranch_scc1 F_poll")
        a.label("F_rel")
        if Cfg.edel:
            a("s_cmp_eq_u32 s62, 0")
            a("s_cbranch_scc1 F_ned")
            a(f"s_sleep {Cfg.edel}")
            a.label("F_ned")
        stamp(a, 11)
        if Cfg.diag == 5:
            a("s_branch L_fin")
        if Cfg.xpos == 3:
            xp_load(0)
            xp_load(1)
        if Cfg.latex:
            a("s_cmp_lg_u32 s46, 3")
            a("s_cbranch_scc1 F_nlx")
            xp_load(0)
            xp_load(1)
            a.label("F_nlx")
        for n in range(8):
            if Cfg.vfull == 2:
                a(f"buffer_load_dword v{V+n}, v{AV}, s[24:27], s58 offen sc1")
                if n < 7:
                    a(f"s_add_u32 s58, s58, {4*VU}")
            else:
                a(f"buffer_load_dword v{V+n}, v{AV}, s[24:27], s58 offen offset:{256*n} sc1")
        if Cfg.gfirst:
            a("s_load_dwordx2 s[36:37], s[10:11], s63")
        a("s_cmp_lg_u32 s3, 0")
        a("s_cbranch_scc1 F_novx")
        a(f"buffer_load_dword v{VX}, v{AVX}, s[24:27], s60 offen sc1")
        a.label("F_novx")
        if Cfg.latex:
            a("s_cmp_eq_u32 s46, 3")
            a("s_cbranch_scc1 F_lx")
        if Cfg.midg:
            a("s_cmp_eq_u32 s46, 0")
            a("s_mov_b32 s46, 2")
            a("s_cbranch_scc1 F_mid")
        if Cfg.hyb:
            a("s_cmp_eq_u32 s46, 0")
            a("s_cbranch_scc1 F_early_ok")
    if Cfg.nsl == 2:
        xp_pair(3)
    a(f"v_mul_u32_u24 v{T0}, 1152, v{T0+10}")
    a(f"v_lshl_add_u32 v{T0}, v4, 6, v{T0}")
    a(f"v_and_b32 v{T0+1}, 7, v3")
    a(f"v_lshlrev_b32 v{T0+1}, 3, v{T0+1}")
    a(f"v_add3_u32 v{T0}, v{T0}, v{T0+1}, s53")
    if Cfg.xpos == 4:
        if Cfg.xdel:
            a(f"s_sleep {Cfg.xdel}")
        xp_load(0)
        xp_load(1)
    if Cfg.gfirst and Cfg.hyb:
        a("s_branch F_fetch")
        a.label("F_early_ok")
        a("s_mov_b32 s46, 2")
        a("s_waitcnt vmcnt(8) lgkmcnt(0)")
        a("s_branch F_early_c")
        a.label("F_early_no")
        a("s_waitcnt vmcnt(0)")
        a.label("F_early_c")
        a("s_mov_b32 s62, 0")
    elif Cfg.gfirst:
        if Cfg.latex:
            a("s_cmp_eq_u32 s46, 3")
            a("s_cbranch_scc1 F_poll")
        a(f"s_waitcnt vmcnt({0 if Cfg.xpos == 4 or Cfg.nsl else 2})")
        a.label("F_xt")
    else:
        v_fetch()
        a("s_mov_b32 s62, 0")
        a("s_waitcnt vmcnt(8)")
    for i in range(4):
        a(f"ds_read_b64 {vr(XP+2*i,2)}, v{T0} offset:{256*i}")
    for i in range(4):
        lgk(a, 3-i)
        for p in range(2):
            a(f"v_lshlrev_b32 v{XF+8*p+i}, 16, v{XP+2*i+p}")
            a(f"v_and_b32 v{XF+8*p+4+i}, 0xffff0000, v{XP+2*i+p}")
    if not Cfg.gfirst:
        a("s_load_dwordx2 s[36:37], s[10:11], s63")
    if not Cfg.gfirst or Cfg.hyb:
        a("s_branch F_stats_c")
    if Cfg.spos:
        a("s_cmp_eq_u32 s3, 7")
        a("s_waitcnt vmcnt(1)")
        a("s_cbranch_scc1 F_stats_c")
    a.label("F_stats_w")
    if not Cfg.nostat:
        a("s_waitcnt vmcnt(0)")
    a.label("F_stats_c")
    a(f"v_xor_b32 v{T0}, s33, v{ST+1}")
    a(f"v_xor_b32 v{T0+1}, s33, v{ST+3}")
    a(f"v_xor_b32 v{T0+2}, s33, v{ST+5}")
    a(f"v_xor_b32 v{T0+3}, s33, v{ST+7}")
    a(f"v_or3_b32 v{T0}, v{T0}, v{T0+1}, v{T0+2}")
    a(f"v_or_b32 v{T0}, v{T0}, v{T0+3}")
    a(f"v_cmp_ne_u32 vcc, 0, v{T0}")
    spin_tail(a, "F_stats", "F_stats_d", sleep=4)
    a.label("F_stats_d")
    if Cfg.fpf:
        free_prefetch()
    if Cfg.pf2:
        a("s_cmp_lt_u32 s2, 224")
        a("s_cbranch_scc1 F_npf2")
        a("s_cmp_gt_u32 s3, 1")
        a("s_cbranch_scc1 F_npf2")
        a("s_getpc_b64 s[6:7]")
        a.label("L_pc2")
        a(f"s_mov_b32 m0, {LDS_BYTES - 256}")
        a(f"v_lshlrev_b32 v{T0+2}, 7, v0")
        a(f"v_min_u32 v{T0+2}, L_end-L_pc2, v{T0+2}")
        a(f"v_mov_b32 v{T0+3}, s7")
        a(f"v_add_co_u32 v{T0+2}, vcc, s6, v{T0+2}")
        a(f"v_addc_co_u32 v{T0+3}, vcc, 0, v{T0+3}, vcc")
        a(f"global_load_lds_dword {vr(T0+2,2)}, off sc1")
        a.label("F_npf2")
    if Cfg.pre:
        a("s_cmp_eq_u32 s46, 2")
        a("s_cbranch_scc1 F_npre")
        a("s_load_dwordx16 s[68:83], s[42:43], 0 glc")
        a("s_load_dwordx16 s[84:99], s[42:43], 64 glc")
        a.label("F_npre")
    stamp(a, 9)
    RC = 16
    a(f"s_mov_b32 s34, {f2u(-LOG2E/8)}")
    a(f"v_mov_b32 v{T0}, {f2u(1e-5/64)}")
    for i in range(4):
        a(f"v_and_b32 v{RC+i}, 0xffff0000, v{ST+2*i}")
        a(f"v_fmamk_f32 v{RC+i}, v{RC+i}, {f2u(1/64)}, v{T0}")
    for i in range(4):
        a(f"v_rsq_f32 v{RC+i}, v{RC+i}")
        a(f"v_lshlrev_b32 v{RC+4+i}, 16, v{ST+2*i}")
    for i in range(0, 4, 2):
        a(f"v_pk_mul_f32 {vr(RC+4+i,2)}, {vr(RC+4+i,2)}, {vr(RC+i,2)} neg_lo:[1,0] neg_hi:[1,0]")
    for i in range(0, 8, 2):
        a(f"v_pk_mul_f32 {vr(ST+i,2)}, {vr(RC+i,2)}, s[34:35] op_sel:[0,0] op_sel_hi:[1,0]")
    for r in range(0, 16, 2):
        i = r % 4
        a(f"v_pk_fma_f32 {vr(TMP+r,2)}, {vr(XF+r,2)}, {vr(ST+i,2)}, {vr(ST+4+i,2)}")
    for r in range(16):
        a(f"v_exp_f32 v{TMP+r}, v{TMP+r}")
        if r % 2 == 1:
            i = (r-1) % 4
            a(f"v_pk_fma_f32 {vr(G+r-1,2)}, {vr(XF+r-1,2)}, {vr(RC+i,2)}, {vr(RC+4+i,2)}")
    if Cfg.midg:
        a("s_mov_b32 s62, 0")
        a("s_cmp_lg_u32 s46, 2")
        a("s_cbranch_scc1 F_poll_w")
        a.label("F_mid")
    for r in range(0, 16, 2):
        a(f"v_pk_add_f32 {vr(TMP+r,2)}, {vr(TMP+r,2)}, 1.0 op_sel_hi:[1,0]")
    for r in range(16):
        a(f"v_rcp_f32 v{TMP+r}, v{TMP+r}")
    for r in range(0, 16, 2):
        a(f"v_pk_mul_f32 {vr(G+r,2)}, {vr(G+r,2)}, {vr(TMP+r,2)}")
    stamp(a, 10)
    if Cfg.gfirst and Cfg.hyb:
        a("s_cmp_eq_u32 s46, 2")
        a("s_cbranch_scc1 F_fetched")
        a("s_mov_b32 s46, 1")
        a.label("F_fetch")
    if Cfg.gfirst:
        v_fetch()
        a.label("F_fetched")
    if Cfg.gate:
        a("s_load_dwordx16 s[68:83], s[42:43], 32768 glc")
        a("s_load_dwordx16 s[84:99], s[42:43], 32832 glc")
    a("s_cmp_lg_u32 s3, 0")
    a("s_cbranch_scc1 F_A")
    a("s_waitcnt vmcnt(0)")
    a(f"v_mfma_f32_32x32x16_f16 {vr(DA,16)}, {vr(CX,4)}, {vr(VX,4)}, 0")
    a(f"v_mfma_f32_32x32x16_f16 {vr(DA,16)}, {vr(CA,4)}, {vr(V,4)}, {vr(DA,16)}")
    a("s_branch F_A2")
    a.label("F_A")
    a("s_waitcnt vmcnt(4)")
    a(f"v_mfma_f32_32x32x16_f16 {vr(DA,16)}, {vr(CA,4)}, {vr(V,4)}, 0")
    a("s_waitcnt vmcnt(0)")
    a.label("F_A2")
    stamp(a, 12)
    a(f"v_mfma_f32_32x32x16_f16 {vr(DA,16)}, {vr(CA+4,4)}, {vr(V+4,4)}, {vr(DA,16)}")
    if Cfg.eh:
        a("s_waitcnt lgkmcnt(0)")
        a("s_and_b32 s34, s36, 0x77")
        a("s_cmp_eq_u32 s34, s47")
        a("s_cbranch_scc1 F_eh")
        a.label("F_eh_r")
    for rho in range(0, 8, 2):
        a(f"v_cvt_pk_f16_f32 v{V+rho}, v{DA+2*rho}, v{DA+2*rho+1}")
        a(f"v_cvt_pk_f16_f32 v{V+rho+1}, v{DA+2*rho+2}, v{DA+2*rho+3}")
        o = L_U//256 + 20*(rho >> 1)
        a(f"ds_write2st64_b32 v{AUW}, v{V+rho}, v{V+rho+1} offset0:{o} offset1:{o+5}")
    if Cfg.sdel:
        a("s_cmp_eq_u32 s62, 0")
        a("s_cbranch_scc1 F_nsd")
        a(f"s_sleep {Cfg.sdel}")
        a.label("F_nsd")
    if Cfg.gate:
        a("s_mov_b32 s62, 0")
        a("s_cmp_eq_u32 s3, 7")
        a("s_cbranch_scc1 F_gate_d")
        a.label("F_gate")
        a("s_waitcnt lgkmcnt(0)")
        a("s_xor_b64 s[68:69], s[68:69], s[40:41]")
        for k in range(1, 16):
            a(f"s_xor_b64 s[{68+2*k}:{69+2*k}], s[{68+2*k}:{69+2*k}], s[40:41]")
            a(f"s_or_b64 s[68:69], s[68:69], s[{68+2*k}:{69+2*k}]")
        a("s_cbranch_scc0 F_gate_d")
        if Cfg.gsl:
            a(f"s_sleep {Cfg.gsl}")
        a("s_load_dwordx16 s[68:83], s[42:43], 32768 glc")
        a("s_load_dwordx16 s[84:99], s[42:43], 32832 glc")
        a("s_add_u32 s62, s62, 1")
        a("s_cmp_lt_u32 s62, 64")
        a("s_cbranch_scc1 F_gate")
        a.label("F_gate_d")
    a("s_waitcnt lgkmcnt(0)")
    a("s_barrier")
    a(f"ds_read_b128 {vr(V,4)}, v{AUR} offset:{L_U}")
    a(f"ds_read_b128 {vr(V+4,4)}, v{AUR} offset:{L_U+16}")
    Y = DA
    lgk(a, 1)
    for x in range(4):
        if x == 2:
            lgk(a, 0)
        a(f"v_mfma_f32_16x16x16_f16 {vr(Y+4*x,4)}, {vr(CB,2)}, {vr(V+2*x,2)}, 0")
    if Cfg.diag == 6:
        a("s_branch L_fin")
    a("s_and_b32 s34, s36, 0x77")
    a("s_cmp_lg_u32 s34, s47")
    a("s_cbranch_scc1 F_noh")
    if Cfg.eh:
        a("s_mul_i32 s50, s33, 28")
        for k in list(range(68, 82)) + list(range(84, 98)):
            a(f"s_sub_u32 s50, s50, s{k}")
        a("s_cmp_eq_u32 s50, 0")
        a("s_cbranch_scc1 F_own" if Cfg.own1 else "s_cbranch_scc1 F_noh")
    if Cfg.n2:
        a("s_load_dwordx16 s[68:83], s[10:11], s48 glc")
        a("s_load_dwordx16 s[84:99], s[10:11], s52 glc")
    a.label("F_noh")
    a("s_cmp_eq_u32 s57, 0")
    a("s_cbranch_scc1 F_zero")
    a.label("F_nz")
    O = 32
    for ih in range(0, 4, 2):
        for x in range(4):
            r = 4*x + ih
            a(f"v_pk_fma_f32 {vr(XF+r,2)}, {vr(Y+r,2)}, {vr(G+r,2)}, {vr(XF+r,2)}")
        for i in (ih, ih+1):
            for p in range(2):
                a(f"v_cvt_pk_bf16_f32 v{O+2*i+p}, v{XF+8*p+i}, v{XF+8*p+4+i}")
            if Cfg.fullout and i == 0:
                a("s_lshr_b32 s34, s57, 1")
                a("s_lshl_b32 s34, s34, 7")
                a("s_and_b32 s35, s57, 1")
                a("s_lshl_b32 s35, s35, 14")
                a("s_add_u32 s34, s34, s35")
                a("s_lshl4_add_u32 s35, s3, s56")
                a("s_lshl_b32 s35, s35, 11")
                a("s_add_u32 s34, s34, s35")
                for q_ in range(4):
                    a(f"s_add_u32 s{64+q_}, s34, {262144*q_}")
            a(f"buffer_store_dwordx2 {vr(O+2*i,2)}, v{AO}, s[20:23], s{64+i} offen {Cfg.out_flag}")
    stamp(a, 13)
    if Cfg.diag == 1:
        a("s_branch L_fin")
    a("s_mov_b32 s62, 0")
    if Cfg.own1:
        a("s_cmp_lg_u32 s16, 0")
        a("s_cbranch_scc1 F_own2")
    a.label("F_res")
    a("s_cmp_eq_u32 s37, s33")
    a("s_cbranch_scc1 F_res_d")
    a("s_load_dwordx2 s[36:37], s[10:11], s63 glc")
    a("s_add_u32 s62, s62, 1")
    a(f"s_cmp_lt_u32 s62, {SPIN_CAP}")
    a("s_waitcnt lgkmcnt(0)")
    a("s_cbranch_scc1 F_res")
    a.label("F_res_d")
    a("s_and_b32 s34, s36, 0x77")
    a("s_cmp_lg_u32 s34, s47")
    a("s_cbranch_scc1 L_fin")
    P, YS, Q, AG, SG, XV, XN, YV, AS = 60, 40, 88, T0, T0+1, T0+2, T0+3, T0+4, T0+5
    AW = T0 + 6
    PL = [8, 12, 24, 28, 48, 52, 56] if Cfg.own1 else [P + 4*k for k in range(7)]

    def gather_addr():
        a(f"v_lshrrev_b32 v{AG}, 3, v2")
        a(f"v_lshlrev_b32 v{AG}, 12, v{AG}")
        a(f"v_and_b32 v{SG}, 0x70, v{ATB}")
        a(f"v_add_u32 v{AG}, v{AG}, v{SG}")

    def gather_req():
        a("s_mov_b32 s34, s49")
        for k in range(7):
            a(f"buffer_load_dwordx4 {vr(PL[k],4)}, v{AG}, s[24:27], s34 offen sc1")
            if k < 6:
                a("s_add_u32 s34, s34, 32768")

    def prep():
        a("s_bfe_u32 s38, s36, 0x20007")
        a("s_bfe_u32 s39, s36, 0x20009")
        a("s_bfe_u32 s51, s36, 0x10003")
        a("s_set_gpr_idx_on s38, 1")
        for x in range(4):
            a(f"v_mov_b32 v{YS+x}, v{Y+4*x}")
        a(f"v_mov_b32 v{YS+4}, v{RC}")
        a(f"v_mov_b32 v{YS+5}, v{RC+4}")
        a("s_set_gpr_idx_off")
        a("s_lshl1_add_u32 s34, s39, s51")
        a("s_lshl_b32 s44, s34, 3")
        a(f"v_add_u32 v{AW}, s53, v{ATB}")
        a(f"ds_write_b128 v{AW}, {vr(YS,4)} offset:2560")
        a(f"v_and_b32 v{AS}, 7, v2")
        a(f"v_lshl_add_u32 v{AS}, v{AS}, 2, v4")
        a("s_lshl4_add_u32 s34, s44, s53")
        a(f"v_lshl_add_u32 v{YV}, v{AS}, 2, s34")
        a(f"ds_read_b32 v{YV}, v{YV} offset:2560")
        a("s_lshl2_add_u32 s34, s38, s39")
        a("s_lshl_b32 s34, s34, 6")
        a("s_mul_i32 s35, s51, 1152")
        a("s_add_u32 s34, s34, s35")
        a("s_add_u32 s34, s34, s53")
        a(f"v_lshlrev_b32 v{AS}, 1, v{AS}")
        a(f"v_add_u32 v{XV}, s34, v{AS}")
        a(f"ds_read_u16 v{XV}, v{XV}")
        a(f"v_readlane_b32 s45, v{YS+4}, s44")
        a(f"v_readlane_b32 s46, v{YS+5}, s44")
    if not Cfg.fin2:
        prep()
    gather_addr()
    if Cfg.eh:
        a("s_cmp_eq_u32 s50, 0")
        a("s_cbranch_scc1 F_n2_d")
    a("s_mul_i32 s50, s33, 28")
    a("s_mov_b32 s62, 0")
    a.label("F_n2")
    a("s_waitcnt lgkmcnt(0)")
    if Cfg.n2:
        for k in list(range(68, 82)) + list(range(85, 98)):
            a(f"s_add_u32 s84, s84, s{k}")
        a("s_cmp_eq_u32 s84, s50")
        a("s_cbranch_scc1 F_n2_d")
        a("s_load_dwordx16 s[68:83], s[10:11], s48 glc")
        a("s_load_dwordx16 s[84:99], s[10:11], s52 glc")
        a("s_add_u32 s62, s62, 1")
        a(f"s_cmp_lt_u32 s62, {SPIN_CAP}")
        a("s_cbranch_scc1 F_n2")
        a.label("F_n2_d")
    if Cfg.stamps and (Cfg.smask >> 15) & 1:
        a("s_memrealtime s[100:101]")
        a("s_waitcnt lgkmcnt(0)")
        a("v_writelane_b32 v127, s100, 2")
    if Cfg.h2d:
        a(f"s_sleep {Cfg.h2d}")
    a("s_mov_b32 s62, 0")
    a.label("F_h2")
    gather_req()
    a("s_cmp_lg_u32 s62, 0")
    a("s_cbranch_scc1 F_h2_w")
    if Cfg.own1:
        a.label("F_own2")
    if Cfg.fin2:
        prep()
    a("s_and_b32 s34, s36, 0xfffff800")
    a("s_ashr_i32 s35, s34, 31")
    a("s_orn2_b32 s35, 0x80000000, s35")
    a("s_xor_b32 s34, s34, s35")
    a(f"v_mov_b32 v{SG}, {f2u(-LOG2E)}")
    a(f"v_mul_f32 v{SG}, s34, v{SG}")
    a(f"v_exp_f32 v{SG}, v{SG}")
    a("s_waitcnt lgkmcnt(0)")
    a(f"v_lshlrev_b32 v{XV}, 16, v{XV}")
    a(f"v_mov_b32 v{XN}, s46")
    a(f"v_add_f32 v{SG}, 1.0, v{SG}")
    a(f"v_rcp_f32 v{SG}, v{SG}")
    a(f"v_fmac_f32 v{XN}, s45, v{XV}")
    a(f"v_mul_f32 v{SG}, {f2u(8.0)}, v{SG}")
    a("s_and_b32 s38, s36, 2047")
    a("s_lshl_b32 s38, s38, 11")
    a("s_lshl_b32 s34, s57, 6")
    a("s_add_u32 s38, s38, s34")

    def h2_req(B):
        a("s_mov_b32 s34, s49")
        for k in range(7):
            a(f"buffer_load_dwordx4 {vr(B+4*k,4)}, v{AG}, s[24:27], s34 offen sc1")
            if k < 6:
                a("s_add_u32 s34, s34, 32768")

    def h2_sum(B, extra):
        R = PL if B == P else [B + 4*k for k in range(7)]
        for k in range(1, 7):
            if extra is not None:
                a(f"s_waitcnt vmcnt({6-k+extra})")
            for x in range(0, 4, 2):
                a(f"v_pk_add_f32 {vr(Q+x,2)}, {vr((R[0] if k == 1 else Q)+x,2)}, {vr(R[k]+x,2)}")
        a(f"v_permlane16_swap_b32 v{Q}, v{Q+1}")
        a(f"v_permlane16_swap_b32 v{Q+2}, v{Q+3}")
        a(f"v_add_f32 v{Q}, v{Q}, v{Q+1}")
        a(f"v_add_f32 v{Q+2}, v{Q+2}, v{Q+3}")
        a(f"v_permlane32_swap_b32 v{Q}, v{Q+2}")
        a(f"v_add_f32 v{Q}, v{Q}, v{Q+2}")
        a(f"v_add_f32_dpp v{Q}, v{Q}, v{Q} row_ror:8 row_mask:0xf bank_mask:0xf")
        a(f"v_cmp_u_f32 vcc, v{Q}, v{Q}")
        a(f"v_fma_f32 v{Q}, v{Q}, v{SG}, v{XN}")
    if Cfg.own1:
        assert not Cfg.pp and Cfg.eh and Cfg.fin2
        a("s_cmp_eq_u32 s16, 0")
        a("s_cbranch_scc1 F_h2_w")
        a("s_waitcnt vmcnt(4)")
        h2_sum(P, None)
        a("s_cbranch_vccz F_h2_d")
        a("s_branch F_h2_x")
    if Cfg.pp:
        P2 = 8
        a.label("F_pp")
        h2_req(P2)
        h2_sum(P, 7)
        a("s_cbranch_vccz F_h2_d")
        h2_req(P)
        h2_sum(P2, 7)
        a("s_cbranch_vccz F_h2_d")
        a("s_add_u32 s62, s62, 1")
        a("s_cmp_lt_u32 s62, 8")
        a("s_cbranch_scc1 F_pp")
    a.label("F_h2_w")
    h2_sum(P, 0)
    a("s_cbranch_vccnz F_h2_x")
    a.label("F_h2_d")
    stamp(a, 15)
    if Cfg.stamps and (Cfg.smask >> 15) & 1:
        a("v_readlane_b32 s34, v127, 0")
        a("s_mul_i32 s35, s62, 100")
        a("s_add_u32 s34, s34, s35")
        a("v_writelane_b32 v127, s34, 1")
    a(f"v_mul_f32 v{Q+1}, {f2u(-LOG2E/8)}, v{Q}")
    a(f"v_exp_f32 v{Q+1}, v{Q+1}")
    a(f"v_mul_f32 v{Q}, v{Q}, v{YV}")
    a(f"v_add_f32 v{Q+1}, 1.0, v{Q+1}")
    a(f"v_rcp_f32 v{Q+1}, v{Q+1}")
    a("s_mov_b32 exec_lo, 0x00ff00ff")
    a("s_mov_b32 exec_hi, 0x00ff00ff")
    a(f"v_fmac_f32 v{XV}, v{Q}, v{Q+1}")
    a(f"v_cvt_pk_bf16_f32 v{XV}, v{XV}, v{XV}")
    a(f"buffer_store_short v{XV}, v{AS}, s[20:23], s38 offen {Cfg.out_flag}")
    a("s_cmp_lg_u32 s57, 0")
    a("s_cbranch_scc1 L_fin")
    a("s_mov_b64 exec, 1")
    a(f"v_mov_b32 v{T0}, 0")
    a(f"v_mov_b32 v{T0+1}, s33")
    a(f"buffer_store_dword v{T0+1}, v{T0}, s[24:27], 0 offen")
    a("s_branch L_fin")
    if Cfg.latex:
        a.label("F_lx")
        a("s_mov_b32 s46, 2")
        a("s_mov_b32 s62, 0")
        a("s_waitcnt vmcnt(8) lgkmcnt(0)")
        a("s_branch F_xt")
    if Cfg.own1:
        a.label("F_own")
        a("s_cmp_lg_u32 s37, s33")
        a("s_cbranch_scc1 F_noh")
        gather_addr()
        gather_req()
        a("s_mov_b32 s16, 1")
        a("s_branch F_noh")
    if Cfg.eh:
        a.label("F_eh")
        a("s_load_dwordx16 s[68:83], s[10:11], s48 glc")
        a("s_load_dwordx16 s[84:99], s[10:11], s52 glc")
        a("s_branch F_eh_r")
    a.label("F_h2_x")
    PR = [PL[k] + x for k in range(7) for x in range(4)]
    a(f"v_max3_u32 v{Q+1}, v{PR[0]}, v{PR[1]}, v{PR[2]}")
    for r in range(3, 27, 2):
        a(f"v_max3_u32 v{Q+1}, v{Q+1}, v{PR[r]}, v{PR[r+1]}")
    a(f"v_max_u32 v{Q+1}, v{Q+1}, v{PR[27]}")
    a(f"v_cmp_eq_u32 vcc, -1, v{Q+1}")
    spin_tail(a, "F_h2", "F_h2_d", sleep=Cfg.h2s)
    a("s_branch F_h2_d")
    a.label("F_zero")
    a("s_mov_b32 exec_lo, 0x01010101")
    a("s_mov_b32 exec_hi, 0x01010101")
    a("s_nop 2")
    for i in range(4):
        a(f"v_mov_b32 v{Y+i}, 0")
    a("s_mov_b64 exec, -1")
    a("s_branch F_nz")
    a.label("F_second")
    a(f"ds_read_b128 {vr(TWC,4)}, v{ATB} offset:{L_T+10240}")
    a(f"ds_read_b128 {vr(TWS,4)}, v{ATB} offset:{L_T+11264}")
    a("s_mov_b32 s46, 0")
    if Cfg.vfull:
        a(f"s_mul_i32 s34, s44, {2*(VU if Cfg.vfull == 2 else VB)}")
        a(f"s_add_u32 s50, s50, {VU if Cfg.vfull == 2 else VB}")
        a("s_sub_u32 s50, s50, s34")
    else:
        a("s_xor_b32 s50, s50, 64")
    a(f"v_add_u32 v{T0+5}, 1, v3")
    a(f"v_bfe_i32 v{T0+5}, v{T0+5}, 4, 1")
    a(f"v_and_b32 v{T0+5}, {f2u(-32.0)}, v{T0+5}")
    a(f"v_xor_b32 v{K32}, v{T0+5}, v{K32}")
    for p in range(8):
        a(f"v_xor_b32 v{F1C+p}, 0x80000000, v{F1C+p}")
    a(f"v_mul_f32 v{CV}, s70, v{K32}")
    a(f"v_fmac_f32 v{CV}, v{M}, v{K32}")
    s1(DA_, PA)
    s1(DB_, PB)
    for r in range(8, 16, 2):
        a(f"v_pk_mul_f32 {vr(DA_+r,2)}, {vr(DA_+r,2)}, s[54:55] op_sel:[0,0] op_sel_hi:[1,0]")
    a("s_waitcnt lgkmcnt(0)")
    a("s_barrier")
    a.settle()
    a("s_branch F_pass")
    a.label("F_key")
    a(f"v_mov_b32 v{T0+7}, s33")
    a(f"v_lshlrev_b32 v{T0}, 11, v2")
    if Cfg.kgrp:
        a("s_and_b32 s35, s2, 7")
        a("s_lshl_b32 s35, s35, 8")
        a("s_andn2_b32 s62, s2, 7")
        a("s_add_u32 s35, s35, s62")
        a(f"s_add_u32 s35, s35, {WS_KY}")
    else:
        a(f"s_lshl3_add_u32 s35, s2, {WS_KY}")
    km = (1 << (Cfg.nrep + Cfg.ru)) - 1
    a(f"s_mov_b32 exec_lo, {hex(km & 0xffffffff)}")
    a(f"s_mov_b32 exec_hi, {hex(km >> 32)}")
    a(f"buffer_store_dwordx2 {vr(T0+6,2)}, v{T0}, s[24:27], s35 offen sc1")
    a("s_mov_b64 exec, -1")
    stamp(a, 5)
    if Cfg.e2:
        a("s_mov_b32 s71, 1")
        a("s_branch F_nokey")
        a.label("F_wkey")
        a("s_waitcnt vmcnt(2)")
        a("s_branch F_wkey_r")
        return
    if not Cfg.fastk:
        a("s_waitcnt vmcnt(2)")
    a("s_branch F_nokey")


def moe_role(a):
    a.label("M_entry")
    if Cfg.diag == 1:
        a("s_endpgm")
    a("s_sub_u32 s28, s2, 256")
    moe_unit(a)
    if Cfg.prio:
        a(f"s_setprio {Cfg.prio}")
    a(f"v_mov_b32 v7, {M_F}")
    a(f"s_mov_b32 s26, {WS_BYTES}")
    a("s_mov_b32 s27, 0x20000")
    if not Cfg.lfirst:
        a("s_cmp_eq_u32 s3, 0")
        a("s_cbranch_scc1 M_loader")
    a("v_mov_b32 v8, 0")
    a("v_mov_b32 v9, 0")
    a("v_mov_b32 v10, 0")
    a("v_mov_b32 v11, 0")
    a("v_mov_b32 v114, 0")
    a("ds_write_b128 v7, v[8:11]")
    a("ds_write_b128 v7, v[8:11] offset:16")
    a("ds_write_b128 v7, v[8:11] offset:32")
    a("v_mov_b32 v8, 0x3f803f80")
    a("v_mov_b32 v9, 0x3f803f80")
    a("v_lshlrev_b32 v10, 3, v2")
    a(f"ds_write_b64 v10, v[8:9] offset:{M_ONE}")
    a("s_waitcnt lgkmcnt(0)")
    stamp(a, 1)
    a("s_load_dword s16, s[10:11], 0")
    a("s_mul_i32 s12, s3, 320")
    a("s_min_u32 s12, s12, 2048")
    a(f"s_add_u32 s18, s12, {WS_KY - 320}")
    a(f"s_and_b32 s13, s28, {Cfg.nrep-1}")
    a("s_lshl_b32 s13, s13, 11")
    a("s_add_u32 s12, s12, s13")
    a(f"s_add_u32 s12, s12, {WS_KY - 320}")
    a("s_add_u32 s12, s10, s12")
    a("s_addc_u32 s13, s11, 0")
    a("s_barrier")
    a("s_waitcnt lgkmcnt(0)")
    a("s_mul_i32 s16, s16, 0x9e3779b1")
    a("s_add_u32 s16, s16, 0x7f4a7c15")
    a("s_mul_i32 s15, s16, 40")
    a("s_mov_b32 s17, 0")
    if Cfg.kwarm:
        a("s_mul_i32 s14, s28, 7")
        a("s_add_u32 s14, s14, s3")
        a("s_lshl_b32 s14, s14, 6")
        a(f"s_add_u32 s14, s14, {WS_RES - 64}")
        a(f"s_sleep {Cfg.kwarm}")
        a("s_load_dword s19, s[10:11], s14 glc")
    if Cfg.sfloor:
        a(f"s_sleep {Cfg.sfloor}")
    if Cfg.tlbw:
        a("s_cmp_lt_u32 s3, 6")
        a("s_cbranch_scc1 M_ntw")
        if Cfg.tlbw == 1:
            a("s_cmp_eq_u32 s3, 6")
            a("s_cselect_b32 s20, s40, s42")
            a("s_cselect_b32 s21, s41, s43")
            for k in range(4):
                a(f"s_mov_b32 s34, {k << 21}")
                a(f"s_load_dword s{56+k}, s[20:21], s34")
            a("s_mov_b32 s34, 0x200000")
            a("s_load_dword s60, s[8:9], 0")
            a("s_load_dword s61, s[8:9], s34")
        else:
            a("s_and_b32 s34, s28, 7")
            a(f"s_mul_i32 s34, s34, {128*7168}")
            a("s_lshr_b32 s35, s28, 3")
            a("s_xor_b32 s35, s35, 2")
            a("s_lshl_b32 s35, s35, 8")
            a("s_add_u32 s34, s34, s35")
            a("s_cmp_eq_u32 s3, 6")
            a("s_cbranch_scc0 M_tw7")
            for k in range(15):
                a(f"s_load_dword s{40+16+k}, s[40:41], s34")
                a(f"s_add_u32 s34, s34, {65536 if k < 13 else 127*7168 - 13*65536}")
            a("s_branch M_ntw")
            a.label("M_tw7")
            a("s_lshl_b32 s34, s29, 17")
            for k in range(3):
                a(f"s_load_dword s{56+k}, s[42:43], s34")
                a(f"s_add_u32 s34, s34, {65536 if k < 1 else 65535 - 2047}")
            a("s_mov_b32 s34, 0x200000")
            a("s_load_dword s60, s[8:9], 0")
            a("s_load_dword s61, s[8:9], s34")
        a.label("M_ntw")
    a("s_sub_u32 s31, s3, 2")
    a("s_cmp_lt_u32 s31, 4")
    if Cfg.sfirst == 3:
        a("s_cselect_b32 s9, 0, 1")
    a("s_cbranch_scc1 M_pre")
    if Cfg.wsl:
        lds_wait(a, "M_pg0", M_F, Cfg.wsn, 8, sleep=Cfg.wsl)
    if Cfg.pk0:
        lds_wait(a, "M_pg", M_F, Cfg.pk0, 8)
    a("s_branch M_scan0")

    def comp_addr():
        a("s_lshr_b32 s44, s28, 3")
        a("s_lshr_b32 s34, s31, 1")
        a("s_lshl1_add_u32 s44, s44, s34")
        a("s_lshl4_add_u32 s44, s44, s46")
        a("s_and_b32 s34, s31, 1")
        a("s_lshl1_add_u32 s44, s44, s34")
        a("s_lshl_b32 s44, s44, 7")
        a("v_lshrrev_b32 v114, 5, v2")
        a("v_mul_u32_u24 v114, 0x4800, v114")
        a("v_xor_b32 v114, s44, v114")
        a("v_and_b32 v115, 31, v2")
        a("v_lshl_add_u32 v114, v115, 2, v114")
        a(f"s_mov_b32 s44, {WS_H1}")
        a("s_lshl2_add_u32 s45, s29, s30")
        a("s_lshl_b32 s45, s45, 10")
        a("s_lshl_b32 s34, s31, 8")
        a("s_add_u32 s45, s45, s34")
        a(f"s_add_u32 s45, s45, {WS_H2}")
        a("s_lshl_b32 s34, s31, 6")
        a("v_lshl_add_u32 v113, v2, 2, s34")
    a.label("M_pre")
    if Cfg.trim == 2:
        a("s_and_b32 s46, s28, 7")
        a("s_lshl2_add_u32 s6, s46, s31")
        a("s_lshl_b32 s6, s6, 6")
        comp_addr()
        a("s_mov_b32 s7, s45")
    BG, BU, AX, DG = 16, 48, 80, 96
    a("v_bfe_u32 v8, v2, 2, 2")
    a("v_lshl_add_u32 v9, v4, 2, v8")
    a("v_and_b32 v10, 7, v9")
    a("v_lshlrev_b32 v10, 1, v10")
    a("v_bfe_u32 v11, v2, 1, 1")
    a("s_lshl_b32 s34, s31, 2")
    a("v_or_b32 v12, s34, v11")
    a("v_xor_b32 v12, v12, v10")
    a("v_lshlrev_b32 v12, 4, v12")
    a("v_lshl_add_u32 v12, v9, 8, v12")
    a("v_and_b32 v13, 1, v2")
    a("v_lshl_add_u32 v12, v13, 3, v12")
    a("v_xor_b32 v126, 32, v12")
    a("s_lshl_b32 s34, s31, 3")
    a("v_or_b32 v120, s34, v11")
    a("v_xor_b32 v120, v120, v10")
    a("v_lshlrev_b32 v120, 4, v120")
    a("v_lshl_add_u32 v120, v9, 9, v120")
    a("v_lshl_add_u32 v120, v13, 3, v120")
    for t in range(1, 4):
        a(f"v_xor_b32 v{120+t}, {32*t}, v120")
    a("v_lshlrev_b32 v14, 4, v4")
    a("v_and_b32 v15, 1, v2")
    a("v_lshl_add_u32 v15, v15, 9, v14")

    def gate_reads(sfx=""):
        lds_wait(a, "M_wg" + sfx, M_F, 8, 8)
        stamp(a, 6)
        for n in range(8):
            for u2 in range(2):
                a(f"ds_read_b64_tr_b16 {vr(BG+4*n+2*u2,2)}, v{126 if n >= 4 else 12} offset:{M_G+8192*(n % 4)+4096*u2}")
                if n == 7 and u2 == 0:
                    a("s_waitcnt lgkmcnt(4)")
        a("v_mov_b32 v8, 1")
        a("s_waitcnt lgkmcnt(0)")
        a("s_mov_b64 exec, 1")
        a("ds_add_u32 v7, v8 offset:4")
        a("s_mov_b64 exec, -1")

    def gate_step(ns):
        for n in ns:
            for t in range(2):
                for u2 in range(2):
                    a(f"ds_read_b64_tr_b16 {vr(BG+16*t+4*n+2*u2,2)}, v{126 if t else 12} offset:{M_G+8192*n+4096*u2}")
    if Cfg.gprog:
        assert Cfg.scan3 and not Cfg.sfirst
        if Cfg.wsl:
            lds_wait(a, "M_wg0", M_F, min(Cfg.wsn, 6), 8, sleep=Cfg.wsl)
        lds_wait(a, "M_wg6", M_F, 6, 8)
        gate_step((0, 1, 2))
        a("v_mov_b32 v8, 1")
        a("s_waitcnt lgkmcnt(0)")
        a("s_mov_b64 exec, 1")
        a("ds_add_u32 v7, v8 offset:4")
        a("s_mov_b64 exec, -1")
        lds_wait(a, "M_wg", M_F, max(8, Cfg.pk0), 8)
        stamp(a, 6)
        gate_step((3,))
    elif Cfg.sfirst:
        lds_wait(a, "M_pg2", M_F, Cfg.pk0, 8)
    else:
        gate_reads()
    a.label("M_scan0")
    if Cfg.sdelay:
        a(f"s_sleep {Cfg.sdelay}")
    if Cfg.scan3:
        a("s_lshl_b32 s15, s16, 3")
        a("s_mov_b32 s19, 0")
        a("v_mov_b32 v10, 0")
        for k in range(5):
            a(f"s_load_dwordx16 s[{20+16*k}:{35+16*k}], s[12:13], {64*k}")
        if Cfg.gprog:
            a("v_mov_b32 v8, 1")
            a("s_mov_b64 exec, 1")
            a("s_waitcnt lgkmcnt(0)")
            a("ds_add_u32 v7, v8 offset:24")
            a("s_mov_b64 exec, -1")
            a("s_branch M_scan1")
        a.label("M_scan")
        a("s_waitcnt lgkmcnt(0)")
        a.label("M_scan1")
        for k in range(5):
            b = 20 + 16*k
            a(f"s_add_u32 s14, s{b+1}, s{b+3}")
            for e in range(2, 8):
                a(f"s_add_u32 s14, s14, s{b+2*e+1}")
            a("s_cmp_lg_u32 s14, s15")
            a(f"s_cbranch_scc1 M_sec{k}")
            for e in range(8):
                a(f"v_max_u32 v10, s{b+2*e}, v10")
            a(f"s_bitset1_b32 s19, {k}")
            a(f"s_mov_b32 s{b+1}, 0")
            a.label(f"M_sec{k}")
        a("s_cmp_eq_u32 s19, 31")
        a("s_cbranch_scc1 M_scan_d")
        if Cfg.sfirst == 3:
            a("s_cmp_lg_u32 s9, 0")
            a("s_cbranch_scc1 M_gskip")
            a("s_mov_b32 s9, 1")
            gate_reads("b")
            a.label("M_gskip")
        if Cfg.ru:
            a("s_add_u32 s17, s17, 1")
            a(f"s_and_b32 s14, s2, {Cfg.ru-1}")
            a("s_lshl_b32 s14, s14, 11")
            a("s_add_u32 s14, s14, s18")
            a(f"s_add_u32 s14, s14, {Cfg.nrep*2048}")
            a("s_add_u32 s12, s10, s14")
            a("s_addc_u32 s13, s11, 0")
            if Cfg.ssl:
                a(f"s_sleep {Cfg.ssl}")
            for k in range(5):
                a(f"s_bitcmp1_b32 s19, {k}")
                a(f"s_cbranch_scc1 M_rl{k}")
                a(f"s_load_dwordx16 s[{20+16*k}:{35+16*k}], s[12:13], {64*k} glc")
                a.label(f"M_rl{k}")
        else:
            a("s_add_u32 s17, s17, 1")
            a("s_add_u32 s14, s2, s17")
            a(f"s_and_b32 s14, s14, {Cfg.nrep-1}")
            a("s_lshl_b32 s14, s14, 11")
            a("s_add_u32 s14, s14, s18")
            a("s_add_u32 s12, s10, s14")
            a("s_addc_u32 s13, s11, 0")
            if Cfg.ssl:
                a(f"s_sleep {Cfg.ssl}")
            a(f"s_cmp_ge_u32 s17, {Cfg.nrep}")
            a("s_cbranch_scc1 M_scan_u")
            for g_, nm in (("", "a"), (" glc", "b")):
                if g_:
                    a.label("M_scan_u")
                for k in range(5):
                    a(f"s_bitcmp1_b32 s19, {k}")
                    a(f"s_cbranch_scc1 M_rl{nm}{k}")
                    a(f"s_load_dwordx16 s[{20+16*k}:{35+16*k}], s[12:13], {64*k}{g_}")
                    a.label(f"M_rl{nm}{k}")
                if not g_:
                    a("s_branch M_scan")
        a(f"s_cmp_lt_u32 s17, {SPIN_CAP}")
        a("s_cbranch_scc1 M_scan")
        a("s_waitcnt lgkmcnt(0)")
    else:
        a.label("M_scan")
        if Cfg.scan2:
            a(f"s_cmp_ge_u32 s17, {Cfg.nrep}")
            a("s_cbranch_scc1 M_scan_u")
            for k in range(5):
                a(f"s_load_dwordx16 s[{20+16*k}:{35+16*k}], s[12:13], {64*k}")
            a.label("M_scan_w")
        else:
            for k in range(5):
                a(f"s_load_dwordx16 s[{20+16*k}:{35+16*k}], s[12:13], {64*k} glc")
        a("v_mov_b32 v10, 0")
        a("s_mov_b32 s14, 0")
        a("s_waitcnt lgkmcnt(0)")
        for k in range(40):
            a(f"s_add_u32 s14, s14, s{21+2*k}")
            a(f"v_max_u32 v10, s{20+2*k}, v10")
        a("s_cmp_eq_u32 s14, s15")
        a("s_cbranch_scc1 M_scan_d")
        a("s_add_u32 s17, s17, 1")
        if Cfg.scan2:
            a("s_add_u32 s14, s2, s17")
            a(f"s_and_b32 s14, s14, {Cfg.nrep-1}")
            a("s_lshl_b32 s14, s14, 11")
            a("s_add_u32 s14, s14, s18")
            a("s_add_u32 s12, s10, s14")
            a("s_addc_u32 s13, s11, 0")
            a("s_sleep 4")
        a(f"s_cmp_lt_u32 s17, {SPIN_CAP}")
        a("s_cbranch_scc1 M_scan")
        if Cfg.scan2:
            a("s_branch M_scan_d")
            a.label("M_scan_u")
            for k in range(5):
                a(f"s_load_dwordx16 s[{20+16*k}:{35+16*k}], s[12:13], {64*k} glc")
            a("s_branch M_scan_w")
    a.label("M_scan_d")
    a("v_mov_b32 v8, 1")
    a("s_mov_b64 exec, 1")
    a("ds_max_u32 v7, v10 offset:16")
    a("ds_add_u32 v7, v8 offset:20")
    a("s_mov_b64 exec, -1")
    stamp(a, 10)
    if Cfg.trim == 2:
        a("s_sub_u32 s31, s3, 2")
        a("s_cmp_lt_u32 s31, 4")
        a("s_cbranch_scc1 M_comp")
    a("s_mov_b32 s33, s16")
    a("s_sub_u32 s28, s2, 256")
    moe_unit(a)
    a("s_mov_b64 s[24:25], s[10:11]")
    a(f"s_mov_b32 s26, {WS_BYTES}")
    a("s_mov_b32 s27, 0x20000")
    if Cfg.gate:
        a("s_cmp_eq_u32 s3, 7")
        a("s_cbranch_scc1 M_gate")
    if Cfg.agent:
        a(f"s_cmp_ge_u32 s3, {8 - Cfg.agent}")
        a("s_cbranch_scc1 M_agent")
    a("s_cmp_ge_u32 s3, 6")
    a("s_cbranch_scc1 L_fin")
    a("s_cmp_eq_u32 s3, 1")
    if Cfg.trim == 2:
        a("s_branch M_poller")
    else:
        a("s_cbranch_scc1 M_poller")
        a("s_sub_u32 s31, s3, 2")
        a("s_branch M_comp")
    if Cfg.gate:
        assert Cfg.brep == 32
        a.label("M_gate")
        a("v_lshlrev_b32 v10, 10, v2")
        a("v_mov_b32 v11, s33")
        a(f"s_lshl2_add_u32 s34, s28, {WS_KB + 32768}")
        lds_wait(a, "M_gw", M_F, Cfg.gate, 8)
        a("s_mov_b32 exec_hi, 0")
        a("buffer_store_dword v11, v10, s[24:27], s34 offen sc1")
        a("s_barrier")
        a("s_branch L_fin")
    if Cfg.agent:
        a.label("M_agent")
        a("s_and_b32 s47, s28, 7")
        a("s_lshl_b32 s47, s47, 8")
        a("s_mov_b32 s49, 0")
        a("s_mov_b32 s62, 0")
        a.label("M_ag")
        a("ds_read_b64 v[8:9], v7 offset:16")
        a("s_waitcnt lgkmcnt(0)")
        a("v_readfirstlane_b32 s48, v8")
        a("v_readfirstlane_b32 s46, v9")
        a("s_cmp_ge_u32 s46, 7")
        a("s_cbranch_scc1 L_fin")
        a("s_cmp_eq_u32 s48, s49")
        a("s_cbranch_scc1 M_ag_n")
        a("s_mov_b32 s49, s48")
        a("s_and_b32 s34, s48, 2047")
        a("s_lshl_b32 s34, s34, 11")
        a("s_add_u32 s34, s34, s47")
        for k in range(4):
            a(f"s_load_dword s{54+k}, s[4:5], s34")
            if k < 3:
                a("s_add_u32 s34, s34, 64")
        stat_req(a)
        a.label("M_ag_n")
        a("s_add_u32 s62, s62, 1")
        a(f"s_cmp_lt_u32 s62, {5*SPIN_CAP}")
        a("s_cbranch_scc1 M_ag")
        a("s_branch L_fin")
    if Cfg.lfirst:
        a.label("M_loader2")
        if Cfg.lprof:
            a("v_mov_b32 v126, 0")
            a("v_mov_b32 v125, 0")
        a(f"v_mov_b32 v7, {M_F}")
        a(f"s_mov_b32 s26, {WS_BYTES}")
        a("s_mov_b32 s27, 0x20000")
        a("v_xor_b32 v18, 128, v8")
        a("s_lshr_b32 s29, s28, 2")
        a("s_and_b32 s30, s28, 3")
        if Cfg.dxor:
            a("s_xor_b32 s30, s30, 1")
    else:
        a.label("M_loader")
        if Cfg.lprio != Cfg.prio:
            a(f"s_setprio {Cfg.lprio}")
        a("v_mul_u32_u24 v8, 7168, v4")
        a("v_lshlrev_b32 v9, 1, v4")
        a("v_xor_b32 v9, v9, v3")
        a("v_lshl_add_u32 v8, v9, 4, v8")
        a("v_xor_b32 v18, 128, v8")
        a("s_and_b32 s34, s28, 7")
        a(f"s_mul_i32 s34, s34, {128*7168}")
        a("s_lshr_b32 s35, s28, 3")
        a("s_lshl_b32 s35, s35, 8")
        a("s_add_u32 s34, s34, s35")
        a("s_mov_b32 s14, 7340032")
        a("s_mov_b32 s15, 0x20000")
        a(f"s_mov_b32 s46, {M_G}")
        a("s_mov_b32 s45, s34")
        a("s_waitcnt lgkmcnt(0)")
        a("s_mov_b64 s[12:13], s[38:39]")
        stamp(a, 2)
        for n in range(4):
            a("s_mov_b32 m0, s46")
            a("s_add_u32 s46, s46, 1024")
            a(f"buffer_load_dwordx4 v{18 if n % 2 else 8}, s[12:15], s45 offen {Cfg.wfl} lds")
            a(f"s_add_u32 s45, s45, {4*7168}")
    a("s_mov_b64 s[24:25], s[10:11]")
    srd(a, 16, 40, 7340032)
    first = Cfg.thr//4 if Cfg.lfirst else 1
    cuts = sorted(set([first, 8, 16, 24] + [g for g in (Cfg.g2, Cfg.g3) if first < g < 24] + ([22] if Cfg.gprog else [])))
    a(f"s_mov_b32 s47, {cuts[0]}")
    a("s_barrier")
    for g0, g1 in zip(cuts, cuts[1:]):
        mat = g0 // 8
        thr = Cfg.thr3 if g0 >= Cfg.g3 else Cfg.thr2 if g0 >= Cfg.g2 else Cfg.thr
        assert thr % 4 == 0
        if g0 == 8:
            srd(a, 20, 42, 7340032)
            a("v_lshrrev_b32 v9, 5, v2")
            a("v_and_b32 v10, 31, v2")
            for n in range(4):
                a(f"v_add_u32 v11, {2*n}, v9")
                a(f"v_lshlrev_b32 v{12+n}, 1, v11")
                a(f"v_xor_b32 v{12+n}, v{12+n}, v10")
                a(f"v_lshlrev_b32 v{12+n}, 4, v{12+n}")
                a(f"v_lshl_add_u32 v{12+n}, v11, 11, v{12+n}")
            a("s_lshl_b32 s44, s29, 17")
            a("s_lshl_b32 s35, s30, 9")
            a("s_add_u32 s44, s44, s35")
        if g0 == 16:
            if Cfg.drain < Cfg.thr2:
                a("s_mov_b64 exec, 1")
                for left in range(Cfg.thr2//4 - 1, Cfg.drain//4 - 1, -1):
                    a(f"v_mov_b32 v16, {16-left}")
                    a(f"s_waitcnt vmcnt({4*left})")
                    a("ds_max_i32 v7, v16")
                a("s_mov_b64 exec, -1")
            lds_wait(a, "M_wgc", M_F+4, 4, 20)
        if g0 == 22 and Cfg.gprog:
            lds_wait(a, "M_wgd", M_F+24, 7, 20)
        if g0 % 8 == 0:
            stamp(a, 2 + mat)
            if mat == 2 and Cfg.skipg:
                a(f"s_mov_b32 s49, {24 - Cfg.skipg}")
            a(f"s_mov_b32 s46, {M_U if mat == 1 else M_G}")
            if mat < 2:
                a("s_xor_b32 s45, s34, 512")
        if g0 == Cfg.g2 and Cfg.ramp:
            a(f"s_sleep {Cfg.ramp}")
        a.label(f"M_ld{g0}")
        if Cfg.tlo and mat == 2:
            a("s_mov_b32 s62, 0")
            a.label(f"M_tl{g0}")
            a(f"ds_read_b32 v20, v7 offset:{Cfg.tev}")
            a("s_getreg_b32 s35, hwreg(HW_REG_IB_STS)")
            a("s_bfe_u32 s48, s35, 0x20016")
            a("s_and_b32 s35, s35, 15")
            a("s_lshl4_add_u32 s48, s48, s35")
            a("s_add_u32 s35, s48, 3")
            a("s_lshr_b32 s35, s35, 2")
            a("s_sub_u32 s35, s47, s35")
            a("v_mov_b32 v16, s35")
            a("s_mov_b64 exec, 1")
            a("ds_max_i32 v7, v16")
            a("s_mov_b64 exec, -1")
            a(f"s_cmp_le_u32 s48, {Cfg.tlo}")
            a(f"s_cbranch_scc1 M_tl{g0}_d")
            a("s_waitcnt lgkmcnt(0)")
            a(f"v_cmp_gt_u32 vcc, {Cfg.tcnt}, v20")
            spin_tail(a, f"M_tl{g0}", f"M_tl{g0}_d", sleep=0, glob=False)
            a.label(f"M_tl{g0}_d")
        for n in range(4):
            a("s_mov_b32 m0, s46")
            a("s_add_u32 s46, s46, 1024")
            if mat < 2:
                a(f"buffer_load_dwordx4 v{18 if n % 2 else 8}, s[{12+4*mat}:{15+4*mat}], s45 offen {Cfg.wfl} lds")
                a(f"s_add_u32 s45, s45, {4*7168}")
            else:
                a(f"buffer_load_dwordx4 v{12+n}, s[20:23], s44 offen {Cfg.wfl} lds")
            a(f"s_waitcnt vmcnt({thr})")
        if Cfg.thrn and g0 >= Cfg.g2:
            a("s_bitcmp1_b32 s28, 3")
            a(f"s_cbranch_scc1 M_tn{g0}")
            a(f"s_waitcnt vmcnt({Cfg.thrn})")
            a.label(f"M_tn{g0}")
        if mat == 2:
            a("s_add_u32 s44, s44, 16384")
        a("s_add_u32 s47, s47, 1")
        if Cfg.exact:
            a("s_getreg_b32 s35, hwreg(HW_REG_IB_STS)")
            a("s_bfe_u32 s48, s35, 0x20016")
            a("s_and_b32 s35, s35, 15")
            a("s_lshl4_add_u32 s35, s48, s35")
            a("s_add_u32 s35, s35, 3")
            a("s_lshr_b32 s35, s35, 2")
            a("s_sub_u32 s35, s47, s35")
        else:
            a(f"s_sub_u32 s35, s47, {thr//4}")
        a("v_mov_b32 v16, s35")
        a("s_mov_b64 exec, 1")
        a("ds_max_i32 v7, v16")
        a("s_mov_b64 exec, -1")
        if Cfg.lprof:
            a("s_memrealtime s[100:101]")
            a("s_waitcnt lgkmcnt(0)")
            a("s_mov_b32 m0, s47")
            a("s_nop 0")
            a("v_writelane_b32 v126, s100, m0")
            a("s_max_i32 s48, s35, 0")
            a("s_mov_b32 m0, s48")
            a("s_nop 0")
            a("v_writelane_b32 v125, s100, m0")
        a(f"s_cmp_lt_u32 s47, {g1 - (Cfg.skipg if g1 == 24 else 0)}")
        a(f"s_cbranch_scc1 M_ld{g0}")
    if Cfg.hpf:
        a("s_sub_u32 s44, s44, 32768")
        a(f"s_xor_b32 s44, s44, {2 << 17}")
        a(f"s_mov_b32 m0, {LDS_BYTES - 256}")
        a("v_lshrrev_b32 v9, 2, v2")
        a("v_and_b32 v10, 3, v2")
        a("v_lshlrev_b32 v10, 7, v10")
        a("v_lshl_add_u32 v10, v9, 11, v10")
        for k in range(Cfg.hpf):
            a("buffer_load_dword v10, s[20:23], s44 offen lds")
            a("s_sub_u32 s44, s44, 32768")
    a("s_mov_b64 exec, 1")
    lstamp(a, 6)
    for left in range(thr//4 - 1, 0, -1):
        a(f"v_mov_b32 v16, {24-left - (Cfg.skipg if left > 3 else 0)}")
        a(f"s_waitcnt vmcnt({4*left + Cfg.hpf})")
        a("ds_max_i32 v7, v16")
        lstamp(a, 13-left)
        if Cfg.lprof:
            a("s_memrealtime s[100:101]")
            a("s_waitcnt lgkmcnt(0)")
            a(f"v_writelane_b32 v126, s100, {32+24-left}")
    a("v_mov_b32 v16, 24")
    a(f"s_waitcnt vmcnt({Cfg.hpf})")
    a("ds_write_b32 v7, v16")
    stamp(a, 5)
    if Cfg.lprof:
        a("s_memrealtime s[100:101]")
        a("s_waitcnt lgkmcnt(0)")
        a("v_writelane_b32 v126, s100, 56")
        a("s_mov_b64 exec, -1")
        a("s_sub_u32 s34, s2, 256")
        a("s_lshl_b32 s34, s34, 9")
        a(f"s_add_u32 s34, s34, {WS_TS + (1 << 20)}")
        a("v_lshlrev_b32 v24, 2, v2")
        a("buffer_store_dword v126, v24, s[24:27], s34 offen")
        a("buffer_store_dword v125, v24, s[24:27], s34 offen offset:256")
    a("s_waitcnt lgkmcnt(0)")
    a("s_barrier")
    a("s_branch L_fin")
    a.label("M_comp")
    if Cfg.sfirst == 1:
        gate_reads()
    if Cfg.sfirst == 3:
        a("s_cmp_lg_u32 s9, 0")
        a("s_cbranch_scc1 M_gdone")
        gate_reads()
        a.label("M_gdone")
    if Cfg.trim != 2:
        a("s_and_b32 s46, s28, 7")
        a("s_lshl2_add_u32 s47, s46, s31")
        a("s_lshl_b32 s47, s47, 6")

    if Cfg.trim == 1:
        comp_addr()
    key_wait(a, "M_box")
    stamp(a, 8)
    a("s_and_b32 s34, s48, 2047")
    a("s_lshl_b32 s34, s34, 11")
    a(f"s_add_u32 s34, s34, {'s6' if Cfg.trim == 2 else 's47'}")
    a("s_load_dwordx16 s[64:79], s[4:5], s34")
    if not Cfg.pstat:
        stat_req(a)
    if not Cfg.trim:
        comp_addr()
    if Cfg.trim == 2:
        a("s_mov_b32 s33, s16")
        a("s_mov_b64 s[24:25], s[10:11]")
        a(f"s_mov_b32 s26, {WS_BYTES}")
        a("s_mov_b32 s27, 0x20000")
        a(f"s_mov_b32 s44, {WS_H1}")
        a("s_mov_b32 s45, s7")
    a("v_mov_b32 v8, 1")
    a("s_waitcnt lgkmcnt(0)")
    for dl in range(16):
        lam = dl >> 1
        lane = 16*(lam >> 3) + 4*(lam & 3) + 2*((lam >> 2) & 1) + (dl & 1)
        a(f"v_writelane_b32 v11, s{64+dl}, {lane}")
    a("s_mov_b64 exec, 0xffff")
    a(f"ds_write_b32 v113, v11 offset:{M_XS}")
    a("s_mov_b64 exec, 1")
    a("ds_add_u32 v7, v8 offset:8")
    a("s_mov_b64 exec, -1")
    stamp(a, 9)
    if Cfg.sfirst == 2:
        gate_reads()
    if not Cfg.pstat and not Cfg.trim:
        stat_use(a)
    a("s_mov_b32 s62, 0")
    a.label("M_wx")
    a("ds_read_b128 v[8:11], v7")
    a("s_waitcnt lgkmcnt(0)")
    a("v_cmp_gt_u32 vcc, 4, v10")
    spin_tail(a, "M_wx", "M_wx_d", sleep=0, glob=False)
    a.label("M_wx_d")
    stamp(a, 2)
    for n in range(4):
        a(f"ds_read_b128 {vr(AX+4*n,4)}, v15 offset:{M_XS+64*n}")
    a("v_readfirstlane_b32 s56, v8")

    def need(name, p):
        a(f"s_cmp_ge_u32 s56, {p}")
        a(f"s_cbranch_scc1 {name}_k")
        a("s_mov_b32 s62, 0")
        a.label(name)
        a("ds_read_b32 v8, v7")
        a("s_waitcnt lgkmcnt(0)")
        a(f"v_cmp_gt_u32 vcc, {p}, v8")
        spin_tail(a, name, name + "_d", sleep=0 if p > 14 else 1, glob=False)
        a.label(name + "_d")
        a("v_readfirstlane_b32 s56, v8")
        a.label(name + "_k")

    def up_mfma(n, t):
        d = DG + 8*t + 4
        a(f"v_mfma_f32_16x16x32_bf16 {vr(d,4)}, {vr(AX+4*n,4)}, {vr(BU+16*t+4*n,4)}, {'0' if n == 0 else vr(d,4)}")
    for n in range(4):
        need(f"M_wu{n}", 10+2*n)
        if n == 3:
            stamp(a, 7)
        for t in range(2):
            for u2 in range(2):
                a(f"ds_read_b64_tr_b16 {vr(BU+16*t+4*n+2*u2,2)}, v{126 if t else 12} offset:{M_U+8192*n+4096*u2}")
        lgk(a, 4)
        if n == 0:
            for k in range(4):
                for t in range(2):
                    d = DG + 8*t
                    a(f"v_mfma_f32_16x16x32_bf16 {vr(d,4)}, {vr(AX+4*k,4)}, {vr(BG+16*t+4*k,4)}, {'0' if k == 0 else vr(d,4)}")
            if Cfg.trim and not Cfg.pstat:
                stat_use(a)
        else:
            up_mfma(n-1, 0)
            up_mfma(n-1, 1)
    if Cfg.pstat:
        a("ds_read_b128 v[116:119], v7 offset:32")
    for t in range(2):
        lgk(a, 2-2*t + (1 if Cfg.pstat else 0))
        up_mfma(3, t)
    if Cfg.pstat:
        a("s_mov_b32 s62, 0")
        a.label("M_ws")
        a("s_waitcnt lgkmcnt(0)")
        a("v_cmp_eq_u32 vcc, 0, v118")
        a("s_cbranch_vccz M_ws_d")
        a("ds_read_b128 v[116:119], v7 offset:32")
        a("s_add_u32 s62, s62, 1")
        a(f"s_cmp_lt_u32 s62, {SPIN_CAP}")
        a("s_cbranch_scc1 M_ws")
        a.label("M_ws_d")
    a("v_mov_b32 v9, 1")
    for q_, d in ((1, DG+8), (2, DG+4), (3, DG+12)):
        for r in range(2):
            a(f"v_mov_b32_dpp v{DG+r}, v{d+r} quad_perm:[0,1,2,3] row_mask:{hex(1 << q_)} bank_mask:0xf")
    a(f"v_fma_f32 v{DG}, -v{DG+1}, {'v116' if Cfg.pstat else 's54'}, v{DG}")
    a(f"v_mul_f32 v{DG}, v{DG}, {'v117' if Cfg.pstat else 'v124'}")
    a(f"buffer_store_dword v{DG}, v114, s[24:27], s44 offen sc1")
    a("s_mov_b64 exec, 1")
    a("ds_add_u32 v7, v9 offset:12")
    a("s_mov_b64 exec, -1")
    stamp(a, 3)
    for n in range(2):
        if Cfg.dprog or n == 0:
            lds_wait(a, f"M_wd{n}", M_F, 20+4*n if Cfg.dprog else 24, 8, sleep=1-n)
        for t in range(4):
            for u2 in range(2):
                a(f"ds_read_b64_tr_b16 {vr(BG+8*t+4*n+2*u2,2)}, v{120+t} offset:{M_G+16384*n+8192*u2}")
                if t == 3 and n == 1 and u2 == 0:
                    a("s_waitcnt lgkmcnt(4)")
    a("v_lshlrev_b32 v8, 2, v2")
    a("s_waitcnt lgkmcnt(0)")
    a("s_barrier")
    stamp(a, 4)
    a(f"ds_read_b128 {vr(AX,4)}, v14 offset:{M_H}")
    a(f"ds_read_b128 {vr(AX+4,4)}, v14 offset:{M_H+64}")
    DD = BU
    for n in range(2):
        lgk(a, 1-n)
        for t in range(4):
            c = "0" if n == 0 else vr(DD+4*t, 4)
            a(f"v_mfma_f32_16x16x32_bf16 {vr(DD+4*t,4)}, {vr(AX+4*n,4)}, {vr(BG+8*t+4*n,4)}, {c}")
    for t in range(1, 4):
        a(f"v_mov_b32_dpp v{DD}, v{DD+4*t} quad_perm:[0,1,2,3] row_mask:{hex(1 << t)} bank_mask:0xf")
    a(f"buffer_store_dword v{DD}, v8, s[24:27], s45 offen sc1")
    stamp(a, 5)
    a("s_branch L_fin")
    a.label("M_poller")
    if Cfg.pstat:
        key_wait(a, "M_pbox")
        stat_req(a)
    a(f"s_cmp_ge_u32 s28, {Cfg.resn}")
    a("s_cbranch_scc1 M_nores")
    if not Cfg.pstat:
        key_wait(a, "M_pbox")
    a("v_mov_b32 v9, s33")
    a("v_mov_b32 v10, 0")
    a("s_lshr_b32 s34, s28, 5")
    a("s_add_u32 s34, s34, s28")
    a("s_and_b32 s34, s34, 31")
    a("s_lshl_b32 s34, s34, 7")
    a(f"s_add_u32 s34, s34, {WS_RES}")
    a("s_mov_b64 exec, 1")
    a("buffer_store_dwordx2 v[8:9], v10, s[24:27], s34 offen sc1")
    a("s_mov_b64 exec, -1")
    a.label("M_nores")
    if Cfg.pstat:
        a("s_waitcnt lgkmcnt(0)")
        stat_use(a)
        a("v_mov_b32 v120, s54")
        a("v_mov_b32 v122, 1")
        a("v_mov_b32 v121, v124")
        a("s_mov_b64 exec, 1")
        a("ds_write_b128 v7, v[120:123] offset:32")
        a("s_mov_b64 exec, -1")
    K = 16
    a("v_lshlrev_b32 v9, 4, v2")
    a("v_and_b32 v12, 8, v2")
    a("v_lshl_add_u32 v12, v12, 2, v4")
    a("v_and_b32 v11, 3, v2")
    a("v_lshl_add_u32 v12, v11, 3, v12")
    a("v_and_b32 v11, 4, v2")
    a("v_add_lshl_u32 v12, v12, v11, 1")
    a("s_lshl_b32 s44, s29, 12")
    a(f"s_add_u32 s44, s44, {WS_H1}")
    a("s_lshl_b32 s46, s28, 7")
    a(f"s_add_u32 s46, s46, {WS_N1}")
    a("s_lshl_b32 s47, s33, 4")
    a("s_lshr_b32 s35, s28, 3")
    a("s_cmp_ge_u32 s35, 14")
    a("s_cselect_b32 s34, 18, 0")
    a("s_add_u32 s35, s35, s34")
    a("s_and_b32 s34, s28, 7")
    a("s_lshl_b32 s34, s34, 8")
    a("s_add_u32 s34, s34, s35")
    a(f"s_lshl2_add_u32 s55, s34, {WS_N2}")
    a("v_lshlrev_b32 v40, 8, v2")
    a("v_mov_b32 v41, s33")
    if Cfg.n1 == 0:
        lds_wait(a, "M_pu", M_F+12, 4, 14)
    else:
        a("s_and_b32 s34, s28, 0xe8")
        a("s_lshl_b32 s34, s34, 5")
        a("s_bfe_u32 s35, s28, 0x10004")
        a("s_lshl3_add_u32 s34, s35, s34")
        a("s_and_b32 s35, s28, 7")
        a("s_add_u32 s34, s34, s35")
        a(f"s_lshl2_add_u32 s54, s34, {WS_N1}")
        a("v_and_b32 v42, 8, v2")
        a("v_add_lshl_u32 v42, v42, v2, 7")
        lds_wait(a, "M_pu", M_F+20, 7, 14)
        lds_wait(a, "M_pv", M_F, Cfg.n1, 14)
        a("s_mov_b64 exec, 0xffff")
        a("buffer_store_dword v41, v42, s[24:27], s54 offen sc1")
        a("s_mov_b64 exec, -1")
        stamp(a, 2)
        a("s_mov_b32 s62, 0")
        a.label("M_hint")
        a("s_load_dwordx16 s[64:79], s[10:11], s46 glc")
        a("s_waitcnt lgkmcnt(0)")
        for k in range(1, 16):
            a(f"s_add_u32 s64, s64, s{64+k}")
        a("s_cmp_eq_u32 s64, s47")
        sspin_tail(a, "M_hint", "M_hint_d", sleep=0)
        a.label("M_hint_d")
    if Cfg.h1d:
        a(f"s_sleep {Cfg.h1d}")
    stamp(a, 3)

    def hint2(p):
        lds_wait(a, "M_pw", M_F, p, 14, sleep=0)
        a("s_mov_b64 exec, 0xf")
        a("buffer_store_dword v41, v40, s[24:27], s55 offen sc1")
        a("s_mov_b64 exec, -1")

    def h1_loads():
        for k in range(4):
            a(f"buffer_load_dwordx4 {vr(K+4*k,4)}, v9, s[24:27], s44 offen offset:{1024*k} sc1")
    if Cfg.n2 == 2:
        h1_loads()
        hint2(Cfg.n2p)
        a("s_mov_b32 s62, 0")
        a("s_waitcnt vmcnt(1)")
        a("s_branch M_ph_c")
    a("s_mov_b32 s62, 0")
    a.label("M_ph")
    h1_loads()
    a("s_waitcnt vmcnt(0)")
    a.label("M_ph_c")
    Q = 32
    for m_ in range(2):
        for x in range(0, 4, 2):
            a(f"v_pk_add_f32 {vr(Q+4*m_+x,2)}, {vr(K+8*m_+x,2)}, {vr(K+8*m_+4+x,2)}")
    for r in range(0, 8, 2):
        a(f"v_permlane16_swap_b32 v{Q+r}, v{Q+r+1}")
    for r in range(0, 8, 2):
        a(f"v_add_f32 v{Q+r}, v{Q+r}, v{Q+r+1}")
    for m_ in range(2):
        a(f"v_permlane32_swap_b32 v{Q+4*m_}, v{Q+4*m_+2}")
    for m_ in range(2):
        a(f"v_add_f32 v{Q+4*m_}, v{Q+4*m_}, v{Q+4*m_+2}")
    a(f"v_cmp_u_f32 vcc, v{Q}, v{Q+4}")
    a(f"v_mul_f32 v{Q+1}, {f2u(-LOG2E)}, v{Q}")
    if Cfg.nohop:
        a(f"v_mov_b32 v{Q}, 1.0")
        a(f"v_mov_b32 v{Q+1}, 1.0")
        a(f"v_mov_b32 v{Q+4}, 1.0")
        a("s_branch M_ph_d")
    a("s_cbranch_vccz M_ph_d")
    a(f"v_max_u32 v{Q+2}, v{K}, v{K+1}")
    for k in range(1, 8):
        a(f"v_max3_u32 v{Q+2}, v{Q+2}, v{K+2*k}, v{K+2*k+1}")
    a(f"v_cmp_eq_u32 vcc, -1, v{Q+2}")
    spin_tail(a, "M_ph", "M_ph_d", sleep=Cfg.h1s)
    a.label("M_ph_d")
    if Cfg.n2 == 1:
        hint2(24)
    stamp(a, 4)
    a(f"v_exp_f32 v{Q+1}, v{Q+1}")
    a(f"v_mul_f32 v{K}, v{Q}, v{Q+4}")
    a(f"v_add_f32 v{Q+1}, 1.0, v{Q+1}")
    a(f"v_rcp_f32 v{Q+1}, v{Q+1}")
    a(f"v_mul_f32 v{K}, v{K}, v{Q+1}")
    a(f"v_cvt_pk_bf16_f32 v{K}, v{K}, v{K}")
    a(f"ds_write_b16 v12, v{K} offset:{M_H}")
    a("s_waitcnt lgkmcnt(0)")
    a("s_barrier")


def build():
    a = Asm()
    a(f"s_cmp_ge_u32 s2, {NWG}")
    a("s_cbranch_scc1 L_end")
    if Cfg.sep:
        a("s_bitcmp1_b32 s2, 7")
        a("s_cbranch_scc1 L_rm")
        a("s_and_b32 s3, s2, 7")
        a("s_bfe_u32 s4, s2, 0x40003")
        a("s_lshl4_add_u32 s3, s4, s3")
        a("s_lshr_b32 s4, s2, 8")
        a("s_lshl3_add_u32 s2, s4, s3")
        a("s_branch L_rd")
        a.label("L_rm")
        a("s_lshr_b32 s4, s2, 8")
        a("s_and_b32 s3, s2, 127")
        a("s_lshl_b32 s4, s4, 7")
        a("s_add_u32 s2, s3, s4")
        a("s_add_u32 s2, s2, 256")
        a.label("L_rd")
    if Cfg.late:
        a("s_and_b32 s3, s2, 7")
        a(f"s_cmp_lg_u32 s3, {Cfg.latej}")
        a("s_cbranch_scc1 L_nl")
        a(f"s_sleep {Cfg.late}")
        a.label("L_nl")
    if Cfg.stamps:
        a("v_mov_b32 v127, 0")
        a("s_memrealtime s[98:99]")
    a("s_load_dwordx2 s[4:5], s[0:1], 0")
    a("s_load_dwordx2 s[10:11], s[0:1], 96")
    a("s_load_dwordx8 s[36:43], s[0:1], 48")
    a("s_load_dwordx2 s[8:9], s[0:1], 80")
    a("v_lshrrev_b32 v1, 6, v0")
    a("v_and_b32 v2, 63, v0")
    a("v_readfirstlane_b32 s3, v1")
    a("v_and_b32 v3, 15, v0")
    a("v_lshrrev_b32 v4, 4, v2")
    if Cfg.e1:
        if Cfg.mpos == 0:
            a("s_cmp_lt_u32 s2, 256")
            a("s_cbranch_scc1 F_entry")
        else:
            a("s_cmp_ge_u32 s2, 256")
            a("s_cbranch_scc1 M_first")
    elif Cfg.pf and Cfg.pfn:
        n = 128 // Cfg.pfn
        a("s_cmp_ge_u32 s2, 256")
        a("s_cbranch_scc1 M_first" if Cfg.lfirst else "s_cbranch_scc1 M_entry")
        a(f"s_cmp_ge_u32 s3, {max(1, n // 64)}")
        a("s_cbranch_scc1 L_nopf")
        a("s_getpc_b64 s[6:7]")
        a.label("L_pc")
        a(f"s_mov_b32 m0, {LDS_BYTES - 256}")
        a(f"s_bfe_u32 s34, s2, {hex(3 + ((Cfg.pfn.bit_length() - 1) << 16))}" if Cfg.pfn > 1 else "s_mov_b32 s34, 0")
        a(f"s_mul_i32 s34, s34, {n*128}")
        a("v_lshl_add_u32 v8, v0, 7, s34")
        a("v_min_u32 v8, L_end-L_pc, v8")
        a("v_mov_b32 v9, s7")
        a("v_add_co_u32 v8, vcc, s6, v8")
        a("v_addc_co_u32 v9, vcc, 0, v9, vcc")
        if n < 64:
            a(f"s_mov_b64 exec, {hex((1 << n) - 1)}")
        a("global_load_lds_dword v[8:9], off")
        if n < 64:
            a("s_mov_b64 exec, -1")
        a.label("L_nopf")
    elif Cfg.pf:
        a("s_cmp_gt_u32 s3, 1")
        a("s_cbranch_scc1 L_nopf")
        a("s_getpc_b64 s[6:7]")
        a.label("L_pc")
        a(f"s_mov_b32 m0, {LDS_BYTES - 256}")
        a("v_lshlrev_b32 v8, 7, v0")
        a("v_min_u32 v8, L_end-L_pc, v8")
        a("v_mov_b32 v9, s7")
        a("v_add_co_u32 v8, vcc, s6, v8")
        a("v_addc_co_u32 v9, vcc, 0, v9, vcc")
        a("global_load_lds_dword v[8:9], off")
        a.label("L_nopf")
    if not Cfg.e1:
        a("s_cmp_ge_u32 s2, 256")
        a("s_cbranch_scc1 M_first" if Cfg.lfirst else "s_cbranch_scc1 M_entry")
    fft_role(a)
    moe_role(a)
    a.label("L_fin")
    if Cfg.stamps:
        a("s_waitcnt vmcnt(0)")
        stamp(a, 14)
        a("s_mov_b64 exec, 0xffff")
        a("s_lshl3_add_u32 s34, s2, s3")
        a("s_lshl_b32 s34, s34, 6")
        a(f"s_add_u32 s34, s34, {WS_TS}")
        a("v_lshlrev_b32 v24, 2, v2")
        a("buffer_store_dword v127, v24, s[24:27], s34 offen")
    a.label("L_end")
    a("s_endpgm")
    if Cfg.stamps:
        out, roles = [], 0
        armed = True
        for ln in a.lines:
            out.append(ln)
            if ln in ("M_entry:", "M_loader:", "M_first:", "F_entry:"):
                armed = True
            if armed and ln == "s_waitcnt lgkmcnt(0)":
                out.append("v_writelane_b32 v127, s98, 0")
                armed = False
        a.lines = out
    s = HEADER
    s += "; cfg " + " ".join(sys.argv[2:]) + "\n"
    s += DOC
    s += f"; @launch grid=({NWG},1,1) block=(512,1,1) lds={LDS_BYTES}\n"
    s += '.amdgcn_target "amdgcn-amd-amdhsa--gfx950"\n'
    s += kernel_head(NAME) + a.finalize(True) + kernel_desc(NAME, 128)
    return s


if __name__ == "__main__":
    out = sys.argv[1]
    for kv in sys.argv[2:]:
        k, v = kv.split("=")
        setattr(Cfg, k, type(getattr(Cfg, k))(int(v)) if not isinstance(getattr(Cfg, k), str) else v.replace("+", " "))
    open(out, "w").write(build())
```

```python
import sys, math
sys.path.insert(0, 'tools')
from asmlib import *

NAME = 'recurrent_scan__spectral_fnet__moe_arch_mod__prompt_kernel'
HEADER = open('recurrent_scan__spectral_fnet__moe_arch_mod__prompt.s.ref').read().split('; Override')[0]
WS_BYTES = 268435456
WS_RES = 4096
WS_KY = 8192
WS_ST = WS_KY + 16384
WS_KB = WS_ST + 16384
WS_LD = 131072
WS_H1 = 262144
WS_H2 = WS_H1 + 229376
NBASE = WS_H2 + 229376 if "hwarm=0" not in sys.argv else 131072
WS_N1 = NBASE
WS_N2 = NBASE + 32768
WS_V = 1 << 20
VB = 129 * 128
VU = 8192 + 128
WS_TS = 16 << 20
SPIN_CAP = 200000
NWG = 480

L_X = 0
L_Z = 32768
L_WR = 41216
L_T = 43520
L_U = 32768
L_C = 56832
M_XS = 0
M_ONE = 512
M_H = 1024
M_F = 1152
M_G = 1280
M_U = M_G + 32768
LDS_BYTES = M_U + 32768 + 256

LOG2E = math.log2(math.e)
DOC = """; Generated by tools/gen_v16.py.  out = x + Re(DFT2(LN x)) * silu(LN x + routed-token FFN).
"""


class Cfg:
    stamps = False
    smask = 0xffff
    thr = 12
    thr2 = 28
    g2 = 5
    thr3 = 24
    g3 = 99
    out_flag = "nt"
    wfl = ""
    early_b2 = True
    xpos = 5
    prio = 3
    kprio = 2
    revpos = 4
    hint1 = False
    gfirst = True
    pk0 = 8
    sdelay = 0
    nrep = 8
    brep = 32
    kmap = True
    diag = 0
    pf = 1
    scan2 = True
    h1d = 0
    h1s = 0
    h2s = 0
    xdel = 0
    psl = 5
    ramp = 0
    stag = 4
    n1 = 14
    n2 = 2
    n2p = 20
    h2d = 0
    rdel = 0
    hyb = False
    exact = True
    sfirst = 0
    dxor = 1
    lut = True
    lprio = 3
    pre = True
    vdel = 0
    dprog = True
    noack = 0
    jswap = True
    fin2 = True
    midg = True
    drain = 99
    fastk = False
    lfirst = True
    spos = 0
    edel = 0
    sdel = 0
    ltail = False
    latex = True
    gate = 0
    gsl = 3
    eh = True
    scan3 = True
    ssl = 2
    nopois = False
    fpf = 0
    fboth = False
    hpf = 0
    nohop = False
    ru = 0
    pf2 = True
    thrn = 0
    nostat = False
    allpre = False
    hwarm = True
    kwarm = 0
    resn = 64
    late = 0
    latej = 0
    kgrp = False
    tlo = 0
    tev = 20
    tcnt = 7
    nsl = 1
    skipg = 0
    halfxp = False
    sfloor = 0
    trim = 2
    agent = 2
    gprog = True
    pp = False
    pstat = False
    vfull = 2
    early = 0
    lprof = 0
    pfn = 0
    e1 = 0
    e1v = 0
    mpos = 0
    wsl = 0
    wsn = 4
    pad = 0
    pad2 = 0
    pad3 = 0
    e2 = 0
    tlbw = 0
    own1 = 0
    fullout = 0
    nostst = 0
    ldg = 0
    ldcap = 6
    epfl = ""
    finfl = ""
    sep = 0
    hybst = 0


def srd(a, d, b, nbytes):
    a(f"s_mov_b32 s{d}, s{b}")
    a(f"s_and_b32 s{d+1}, s{b+1}, 0xffff")
    a(f"s_mov_b32 s{d+2}, {nbytes}")
    a(f"s_mov_b32 s{d+3}, 0x20000")


def vr(b, n):
    return f"v[{b}:{b+n-1}]"


def stamp(a, i):
    if Cfg.stamps and (Cfg.smask >> i) & 1:
        a("s_memrealtime s[100:101]")
        a("s_waitcnt lgkmcnt(0)")
        a(f"v_writelane_b32 v127, s100, {i}")


def estamp(a, i):
    if Cfg.stamps and Cfg.early:
        a("s_memrealtime s[100:101]")
        a("s_waitcnt lgkmcnt(0)")
        a(f"v_writelane_b32 v127, s100, {i}")


def lstamp(a, i):
    if Cfg.stamps and Cfg.ltail:
        a("s_memrealtime s[100:101]")
        a("s_waitcnt lgkmcnt(0)")
        a(f"v_writelane_b32 v127, s100, {i}")


def lgk(a, n):
    a(f"s_waitcnt lgkmcnt({n})")


def round_bf16(a, v):
    a(f"v_cvt_pk_bf16_f32 v{v}, v{v}, v{v}")
    a(f"v_lshlrev_b32 v{v}, 16, v{v}")


def gen_cs(a, dc, ds, ang, step, t, neg_s):
    sg = "-" if neg_s else ""
    for p in range(4):
        a(f"v_cos_f32 v{t}, v{ang}")
        a(f"v_sin_f32 v{t+1}, v{ang}")
        a(f"v_add_f32 v{ang}, v{ang}, v{step}")
        a(f"v_cos_f32 v{t+2}, v{ang}")
        a(f"v_sin_f32 v{t+3}, v{ang}")
        if p < 3:
            a(f"v_add_f32 v{ang}, v{ang}, v{step}")
        a(f"v_cvt_pk_f16_f32 v{dc+p}, v{t}, v{t+2}")
        a(f"v_cvt_pk_f16_f32 v{ds+p}, {sg}v{t+1}, {sg}v{t+3}")


def silu(a, v, n, tmp):
    for j in range(n):
        a(f"v_mul_f32 v{tmp+j}, {f2u(-LOG2E)}, v{v+j}")
    for j in range(n):
        a(f"v_exp_f32 v{tmp+j}, v{tmp+j}")
    for j in range(n):
        a(f"v_add_f32 v{tmp+j}, 1.0, v{tmp+j}")
    for j in range(n):
        a(f"v_rcp_f32 v{tmp+j}, v{tmp+j}")
    for j in range(n):
        a(f"v_mul_f32 v{v+j}, v{v+j}, v{tmp+j}")


def wave_max_u32(a, v, s):
    for r in (8, 4, 2, 1):
        a(f"v_max_u32_dpp v{v}, v{v}, v{v} row_ror:{r} row_mask:0xf bank_mask:0xf")
    a(f"v_max_u32_dpp v{v}, v{v}, v{v} row_bcast:15 row_mask:0xa bank_mask:0xf")
    a(f"v_max_u32_dpp v{v}, v{v}, v{v} row_bcast:31 row_mask:0xc bank_mask:0xf")
    a(f"v_readlane_b32 s{s}, v{v}, 63")


def round_pairs(a, regs, tmp):
    for p in range(len(regs) // 2):
        a(f"v_cvt_pk_bf16_f32 v{tmp+p}, v{regs[2*p]}, v{regs[2*p+1]}")
    for p in range(len(regs) // 2):
        a(f"v_lshlrev_b32 v{regs[2*p]}, 16, v{tmp+p}")
        a(f"v_and_b32 v{regs[2*p+1]}, 0xffff0000, v{tmp+p}")


def spin_tail(a, label, done, cnt="s62", sleep=1, glob=True):
    a(f"s_add_u32 {cnt}, {cnt}, 1")
    a(f"s_cbranch_vccz {done}")
    if sleep:
        a(f"s_sleep {sleep}")
    a(f"s_cmp_lt_u32 {cnt}, {SPIN_CAP if glob else 5*SPIN_CAP}")
    a(f"s_cbranch_scc1 {label}")


def lds_wait(a, name, off, val, tv, sleep=1):
    a(f"v_mov_b32 v{tv}, {off}")
    a("s_mov_b32 s62, 0")
    a.label(name)
    a(f"ds_read_b32 v{tv+1}, v{tv}")
    a("s_waitcnt lgkmcnt(0)")
    a(f"v_cmp_gt_u32 vcc, {val}, v{tv+1}")
    spin_tail(a, name, name + "_d", sleep=sleep, glob=False)
    a.label(name + "_d")


def sspin_tail(a, label, done, sleep=2):
    a(f"s_cbranch_scc1 {done}")
    a("s_add_u32 s62, s62, 1")
    if sleep:
        a(f"s_sleep {sleep}")
    a(f"s_cmp_lt_u32 s62, {SPIN_CAP}")
    a(f"s_cbranch_scc1 {label}")


def key_wait(a, name):
    a("s_mov_b32 s62, 0")
    a.label(name)
    a("ds_read_b64 v[8:9], v7 offset:16")
    a("s_waitcnt lgkmcnt(0)")
    a("v_cmp_gt_u32 vcc, 7, v9")
    spin_tail(a, name, name + "_d", sleep=0, glob=False)
    a.label(name + "_d")
    a("v_readfirstlane_b32 s48, v8")


def moe_unit(a):
    if Cfg.lut:
        a("s_lshr_b32 s29, s28, 1")
        a("s_xor_b32 s29, s29, s28")
        a("s_and_b32 s29, s29, 8")
        a("s_mul_i32 s29, s29, 3")
        a("s_xor_b32 s28, s28, s29")
    a("s_lshr_b32 s29, s28, 2")
    a("s_and_b32 s30, s28, 3")
    if Cfg.dxor:
        a("s_xor_b32 s30, s30, 1")


def stat_req(a):
    a("s_and_b32 s50, s48, 7")
    a("s_bfe_u32 s34, s48, 0x40003")
    a("s_lshl4_add_u32 s50, s50, s34")
    a("s_bfe_u32 s34, s48, 0x40007")
    a("s_lshl4_add_u32 s50, s50, s34")
    a(f"s_lshl3_add_u32 s50, s50, {WS_ST}")
    a("s_load_dwordx2 s[52:53], s[10:11], s50")


def stat_use(a):
    a("s_mov_b32 s62, 0")
    a.label("M_sta")
    a("s_cmp_eq_u32 s53, s33")
    a("s_cbranch_scc1 M_sta_d" if not Cfg.nostst else "s_branch M_sta_d")
    a("s_load_dwordx2 s[52:53], s[10:11], s50 glc")
    a("s_add_u32 s62, s62, 1")
    a(f"s_cmp_lt_u32 s62, {SPIN_CAP}")
    a("s_waitcnt lgkmcnt(0)")
    a("s_cbranch_scc1 M_sta")
    a.label("M_sta_d")
    a("s_lshl_b32 s54, s52, 16")
    a("s_and_b32 s52, s52, 0xffff0000")
    a(f"v_mov_b32 v124, {f2u(1e-5)}")
    a("v_add_f32 v124, s52, v124")
    round_bf16(a, 124)
    a("v_sqrt_f32 v124, v124")
    round_bf16(a, 124)
    a("v_rcp_f32 v124, v124")


def nonce(a):
    a("s_mul_i32 s33, s33, 0x9e3779b1")
    a("s_add_u32 s33, s33, 0x7f4a7c15")


def fft_role(a):
    PA, PB, WR = 8, 16, 24
    F1C, F1S, R8R, R8I, F2C, F2N, F2S, TWC, TWS = range(32, 68, 4)
    SEL = 68
    DA_, DB_ = 76, 92
    T0 = 108
    AZW, AZR, AVS, AO, K32, VROW, ATB = 120, 121, 122, 123, 124, 125, 126
    AX = DB_
    AY = SEL + 4
    PQ = WR
    def m_first():
        a.label("M_first")
        a("s_cmp_lg_u32 s3, 0")
        a("s_cbranch_scc1 M_entry")
        a(f"s_setprio {Cfg.lprio}")
        a("s_lshr_b32 s29, s2, 1")
        a("s_xor_b32 s29, s29, s2")
        a("s_and_b32 s29, s29, 8")
        a("s_mul_i32 s29, s29, 3")
        a("s_xor_b32 s28, s2, s29")
        a("s_bitset0_b32 s28, 8")
        a("v_mul_u32_u24 v8, 7168, v4")
        a("v_lshlrev_b32 v9, 1, v4")
        a("v_xor_b32 v9, v9, v3")
        a("v_lshl_add_u32 v8, v9, 4, v8")
        a("s_and_b32 s34, s28, 7")
        a(f"s_mulk_i32 s34, {128*28}")
        a("s_lshr_b32 s35, s28, 3")
        a("s_add_u32 s34, s34, s35")
        a("s_lshl_b32 s34, s34, 8")
        a("s_mov_b32 s14, 7340032")
        a("s_mov_b32 s15, 0x20000")
        a(f"s_movk_i32 s46, {M_G}")
        a("s_mov_b32 s45, s34")
        a("s_waitcnt lgkmcnt(0)")
        a("s_mov_b64 s[12:13], s[38:39]")
        stamp(a, 2)
        a.label("M_burst")
        a("s_mov_b32 m0, s46")
        a("s_addk_i32 s46, 1024")
        a(f"buffer_load_dwordx4 v8, s[12:15], s45 offen {Cfg.wfl} lds")
        a(f"s_addk_i32 s45, {4*7168}")
        a("v_xor_b32 v8, 128, v8")
        a(f"s_cmpk_lt_u32 s46, {M_G + 1024*Cfg.thr}")
        a("s_cbranch_scc1 M_burst")
        a("s_branch M_loader2")

    def code_prefetch():
        n = 128 // Cfg.pfn
        a(f"s_cmp_ge_u32 s3, {max(1, n // 64)}")
        a("s_cbranch_scc1 L_nopf")
        a("s_getpc_b64 s[6:7]")
        a.label("L_pc")
        a(f"s_mov_b32 m0, {LDS_BYTES - 256}")
        a(f"s_bfe_u32 s34, s2, {hex(3 + ((Cfg.pfn.bit_length() - 1) << 16))}" if Cfg.pfn > 1 else "s_mov_b32 s34, 0")
        a(f"s_mul_i32 s34, s34, {n*128}")
        a("v_lshl_add_u32 v8, v0, 7, s34")
        a("v_min_u32 v8, L_end-L_pc, v8")
        a("v_mov_b32 v9, s7")
        a("v_add_co_u32 v8, vcc, s6, v8")
        a("v_addc_co_u32 v9, vcc, 0, v9, vcc")
        if n < 64:
            a(f"s_mov_b64 exec, {hex((1 << n) - 1)}")
        a("global_load_lds_dword v[8:9], off")
        if n < 64:
            a("s_mov_b64 exec, -1")
        a.label("L_nopf")

    def row_requests():
        a(f"s_mov_b32 m0, {L_WR}")
        a("s_cmp_lg_u32 s3, 0")
        a("s_waitcnt lgkmcnt(0)")
        stamp(a, 1)
        a("s_mov_b64 s[12:13], s[4:5]")
        a("s_load_dword s33, s[10:11], 0")
        a("s_cbranch_scc1 F_nowr")
        a("s_mov_b64 s[16:17], s[36:37]")
        a("buffer_load_dwordx4 v5, s[16:19], 0 offen lds")
        a("buffer_load_dwordx4 v5, s[16:19], 0 offen offset:1024 lds")
        a.label("F_nowr")
        a("s_mov_b32 m0, s53")
        a("s_mov_b64 s[24:25], s[10:11]")
        a(f"buffer_load_dwordx4 v5, s[12:15], s49 offen lds")
        a(f"buffer_load_dwordx4 v5, s[12:15], s49 offen offset:1024 lds")

    def poison():
        a(f"s_mov_b32 s26, {WS_BYTES}")
        a("s_mov_b32 s27, 0x20000")
        a(f"v_lshlrev_b32 v{8 if Cfg.e1 else 7}, 2, v0")
        a("s_lshl_b32 s34, s2, 11")
        a(f"s_add_u32 s34, s34, {WS_H1}")
        a(f"v_mov_b32 v{9 if Cfg.e1 else 6}, -1")
        if Cfg.nopois:
            a("s_mov_b64 exec, 1")
        if Cfg.e1:
            a("buffer_store_dword v9, v8, s[24:27], s34 offen sc1")
        else:
            a("buffer_store_dword v6, v7, s[24:27], s34 offen sc1" if not Cfg.nopois else "buffer_load_dword v1, v7, s[12:15], 0 offen")
        if Cfg.nopois:
            a("s_mov_b64 exec, -1")
    if Cfg.e1:
        assert Cfg.pfn and Cfg.revpos == 4 and not Cfg.fastk
        if Cfg.mpos == 0:
            m_first()
            a.label("F_entry")
        code_prefetch()
    a("s_and_b32 s28, s2, 7")
    a("s_bfe_u32 s44, s2, 0x10003")
    a("s_lshr_b32 s45, s2, 4")
    a("s_xor_b32 s30, s45, 15")
    a("s_lshl3_add_u32 s30, s30, s28")
    a("s_cmp_eq_u32 s30, 0")
    a("s_cselect_b32 s46, 1, 0")
    a("s_cmp_eq_u32 s2, 248")
    a("s_cselect_b32 s30, 128, s30")
    a("s_lshl_b32 s31, s3, 8")
    a("s_add_u32 s31, s31, s30")
    a("s_sub_u32 s32, 0, s31")
    a("s_and_b32 s32, s32, 2047")
    a("s_cmp_eq_u32 s44, 0")
    a("s_cselect_b32 s47, s31, s32")
    a("s_cselect_b32 s48, s32, s31")
    a("s_lshl_b32 s49, s47, 11")
    a("s_lshl_b32 s48, s48, 11")
    a("v_lshrrev_b32 v5, 3, v2")
    a("v_and_b32 v5, 2, v5")
    a("v_xor_b32 v5, v5, v2")
    a("v_lshlrev_b32 v5, 4, v5")
    a("s_lshl_b32 s53, s3, 12")
    a("s_mov_b32 s14, 4194304")
    a("s_mov_b32 s15, 0x20000")
    a("s_mov_b32 s18, 2048")
    a("s_mov_b32 s19, 0x20000")
    if not Cfg.e1:
        row_requests()
        if Cfg.lfirst:
            a("s_branch F_go")
            m_first()
            a.label("F_go")
        poison()

    def rev_loads():
        a("s_add_u32 m0, s53, 2048")
        a(f"buffer_load_dwordx4 v5, s[12:15], s48 offen lds")
        a(f"buffer_load_dwordx4 v5, s[12:15], s48 offen offset:1024 lds")
    if Cfg.revpos == 3:
        rev_loads()
    UN, ANG, AJ = T0+8, T0+9, T0+11
    a(f"v_lshlrev_b32 v{ATB}, 4, v2")
    a("s_and_b32 s34, s3, 1")
    a("s_lshr_b32 s35, s3, 1")
    a(f"v_lshl_add_u32 v{AJ}, s34, 3, v{ATB}")
    a("s_cmp_eq_u32 s35, 3")
    a("s_cbranch_scc1 F_jobr8")
    a("s_lshl4_add_u32 s54, s44, 1")
    a("s_cmp_eq_u32 s35, 2")
    a("s_cselect_b32 s54, 0, s54")
    a("s_cselect_b32 s57, 4096, 0")
    a("s_cmp_eq_u32 s35, 1")
    a(f"s_cselect_b32 s55, {f2u(1/1024)}, 0")
    a("s_cselect_b32 s58, s46, 0")
    a("s_cselect_b32 s57, 7168, s57")
    a(f"s_cselect_b32 s55, s55, {f2u(1/32)}")
    a("s_lshl_b32 s34, s34, 4")
    a(f"v_lshl_add_u32 v{T0+1}, v4, 2, s34")
    a(f"v_cvt_f32_u32 v{T0+1}, v{T0+1}")
    a(f"v_add_u32 v{AJ}, s57, v{AJ}")
    a.label("F_job")
    a(f"v_add_u32 v{UN}, s54, v3")
    a(f"v_cvt_f32_u32 v{UN}, v{UN}")
    a(f"v_mul_f32 v{UN}, s55, v{UN}")
    a(f"v_mul_f32 v{ANG}, v{UN}, v{T0+1}")
    CS = DA_
    for j in range(4):
        a(f"v_cos_f32 v{CS+j}, v{ANG}")
        a(f"v_sin_f32 v{CS+4+j}, v{ANG}")
        if j < 3:
            a(f"v_add_f32 v{ANG}, v{ANG}, v{UN}")
    a("s_cmp_eq_u32 s35, 0")
    a("s_cbranch_scc1 F_jobf1")
    for p in range(2):
        a(f"v_cvt_pk_f16_f32 v{CS+8+p}, v{CS+2*p}, v{CS+2*p+1}")
    for p in range(2):
        a(f"v_cvt_pk_f16_f32 v{CS+10+p}, v{CS+4+2*p}, v{CS+4+2*p+1}")
    for p in range(2):
        a(f"v_xor_b32 v{CS+12+p}, 0x80008000, v{CS+10+p}")
    a(f"ds_write2st64_b64 v{AJ}, {vr(CS+8,2)}, {vr(CS+10,2)} offset0:{L_T//512} offset1:{L_T//512+2}")
    a(f"ds_write_b64 v{AJ}, {vr(CS+12,2)} offset:{L_T+2048}")
    a("s_cmp_eq_u32 s58, 0")
    a("s_cbranch_scc1 F_jobd")
    a("s_mov_b32 s58, 0")
    a("s_xor_b32 s54, s54, 16")
    a(f"v_add_u32 v{AJ}, 3072, v{AJ}")
    a("s_branch F_job")
    a.label("F_jobf1")
    for p in range(2):
        a(f"v_cvt_pk_bf16_f32 v{CS+8+p}, v{CS+2*p}, v{CS+2*p+1}")
    for p in range(2):
        a(f"v_cvt_pk_bf16_f32 v{CS+10+p}, -v{CS+4+2*p}, -v{CS+4+2*p+1}")
    a(f"ds_write2st64_b64 v{AJ}, {vr(CS+8,2)}, {vr(CS+10,2)} offset0:{L_T//512} offset1:{L_T//512+2}")
    a("s_branch F_jobd")
    a.label("F_jobr8")
    STP = T0+10
    a(f"v_and_b32 v{STP}, 7, v3")
    a(f"v_cvt_f32_u32 v{STP}, v{STP}")
    a(f"v_mul_f32 v{STP}, {f2u(1/8)}, v{STP}")
    a(f"v_and_b32 v{ANG}, 1, v4")
    a(f"v_lshl_add_u32 v{ANG}, v{ANG}, 1, s34")
    a(f"v_cvt_f32_u32 v{ANG}, v{ANG}")
    a(f"v_mul_f32 v{ANG}, v{ANG}, v{STP}")
    a(f"v_add_f32 v{ANG}, v{ANG}, v{ANG}")
    a(f"v_add_f32 v{STP}, v{ANG}, v{STP}")
    a(f"v_cos_f32 v{CS}, v{ANG}")
    a(f"v_sin_f32 v{CS+1}, v{ANG}")
    a(f"v_cos_f32 v{CS+2}, v{STP}")
    a(f"v_sin_f32 v{CS+3}, v{STP}")
    a(f"v_lshrrev_b32 v{UN}, 2, v2")
    a(f"v_xor_b32 v{UN}, v{UN}, v2")
    a(f"v_bfe_u32 v{UN}, v{UN}, 3, 1")
    a(f"v_add_u32 v{UN}, -1, v{UN}")
    a("s_lshl_b32 s34, s44, 31")
    for jj in range(2):
        a(f"v_cvt_pk_f16_f32 v{CS+8+jj}, v{CS+2*jj}, v{CS+2*jj+1}")
        a(f"v_cvt_pk_f16_f32 v{CS+10+jj}, -v{CS+2*jj+1}, v{CS+2*jj}")
    for r in range(4):
        a(f"v_bitop3_b32 v{CS+8+r}, v{CS+8+r}, s34, v{UN} bitop3:0x28")
    a(f"ds_write2st64_b64 v{AJ}, {vr(CS+8,2)}, {vr(CS+10,2)} offset0:{L_T//512+4} offset1:{L_T//512+6}")
    a.label("F_jobd")
    QA, QB, DW = range(T0, T0+3)
    val = []
    for r in range(4):
        val.append(f"v_mov_b32 v{T0+r}, 0")
    val.append(f"v_mov_b32 v7, {L_C}")
    val.append(f"ds_write_b128 v7, {vr(T0,4)}")
    val += [
        f"v_and_b32 v{AX+4}, 60, v2",
        f"v_and_b32 v{AX+5}, 3, v2",
        f"v_lshl_add_u32 v{AX+4}, v{AX+4}, 1, v{AX+5}",
        f"v_bfe_u32 v{AX+5}, v2, 4, 1",
        f"v_lshl_add_u32 v{AX+4}, v{AX+5}, 2, v{AX+4}",
        f"v_lshlrev_b32 v{AX+4}, 3, v{AX+4}",
        f"v_xor_b32 v{AX+5}, 32, v{AX+4}",
        f"v_add_u32 v{AX}, s53, v{AX+4}",
        f"v_xor_b32 v{AX+1}, 32, v{AX}",
        f"v_xor_b32 v{AX+2}, 0x3d8, v{AX}",
        f"v_xor_b32 v{AX+3}, 0x3f8, v{AX}",
        f"v_and_b32 v{AY}, 0x3d8, v{AX+4}",
        f"v_sub_u32 v{AY}, 1024, v{AY}",
        f"v_add_u32 v{AY+1}, -32, v{AY}",
        f"v_lshrrev_b32 v{AY+2}, 3, v{AY}",
        f"v_lshrrev_b32 v{AY+3}, 3, v{AY+1}",
        f"v_bitop3_b32 v{AY}, v{AY}, v{AY+2}, 32 bitop3:0x78",
        f"v_bitop3_b32 v{AY+1}, v{AY+1}, v{AY+3}, 32 bitop3:0x78",
        f"v_add_u32 v{AY}, s53, v{AY}",
        f"v_add_u32 v{AY+1}, s53, v{AY+1}",
        f"v_xor_b32 v{AY+2}, 1024, v{AY}",
    ]
    for r in range(4):
        val.append(f"v_mov_b32 v{SEL+r}, 0x3f803f80")
    val += [
        f"v_bfe_u32 v{AZW}, v3, 1, 2",
        f"v_xor_b32 v{AZW}, v{AZW}, v4",
        f"v_lshl_add_u32 v{AZW}, v3, 2, v{AZW}",
        f"v_lshl_add_u32 v{AZW}, v{AZW}, 4, s58",
        f"v_xor_b32 v{AZR}, s59, v3",
        f"v_lshrrev_b32 v{T0+4}, 1, v4",
        f"v_lshl_add_u32 v{AZR}, v{T0+4}, 4, v{AZR}",
        f"v_and_b32 v{T0+4}, 1, v4",
        f"v_mul_u32_u24 v{T0+4}, 1040, v{T0+4}",
        f"v_add_lshl_u32 v{AZR}, v{AZR}, v{T0+4}, 2",
        f"v_and_b32 v{T0+5}, 7, v3",
        f"v_lshrrev_b32 v{T0+4}, 3, v3",
        *([f"v_mul_u32_u24 v{AVS}, {128 if Cfg.vfull == 2 else 16*VB}, v{T0+5}",
           f"v_lshl_add_u32 v{AVS}, v{T0+4}, 6, v{AVS}"] if Cfg.vfull else
          [f"v_lshl_add_u32 v{AVS}, v{T0+5}, 4, v{T0+4}",
           f"v_mul_u32_u24 v{AVS}, {VB}, v{AVS}"]),
        f"v_lshl_add_u32 v{AVS}, v4, 4, v{AVS}",
        "v_bfe_u32 v6, v2, 2, 2",
        "v_lshl_add_u32 v6, v6, 2, v4",
        "v_and_b32 v1, 3, v2",
        "v_lshlrev_b32 v1, 4, v1",
        "v_lshl_add_u32 v6, v6, 18, v1",
        f"v_lshlrev_b32 v{AO}, 14, v{T0+4}",
        f"v_lshl_add_u32 v{AO}, v4, 20, v{AO}",
        f"v_lshl_add_u32 v{AO}, v{T0+5}, 3, v{AO}",
        f"v_add_u32 v{K32}, 1, v3",
        f"v_bfe_i32 v{K32}, v{K32}, 4, 1",
        f"v_and_b32 v{K32}, s63, v{K32}",
        f"v_mov_b32 v{VROW}, s47",
        f"v_mov_b32 v{T0+10}, 1",
        f"v_mov_b32 v{T0+11}, 0",
    ]
    sal = [
        "s_lshr_b32 s58, s3, 2", "s_lshl4_add_u32 s58, s3, s58", "s_lshl_b32 s58, s58, 6",
        "s_and_b32 s59, s3, 3", "s_lshl3_add_u32 s59, s3, s59", "s_lshl_b32 s59, s59, 2",
        *(["s_mov_b32 s34, 0x71605432", "s_mov_b32 s35, 0x98fedcba", "s_lshl_b32 s56, s45, 2", "s_lshr_b64 s[34:35], s[34:35], s56",
           "s_and_b32 s34, s34, 15", "s_xor_b32 s45, s45, 8", "s_cmp_eq_u32 s44, 0", "s_cselect_b32 s45, s45, s34"] if Cfg.lut else
          ["s_mul_i32 s34, s44, 14", "s_xor_b32 s34, s34, 8", "s_xor_b32 s45, s45, s34"]),
        *(["s_sub_u32 s34, 0, s28", "s_and_b32 s34, s34, 7", "s_lshr_b32 s35, s45, 1", "s_cmp_lt_u32 s35, s44",
           "s_cselect_b32 s28, s34, s28"] if Cfg.jswap else []),
        "s_sub_u32 s34, 0, s28", "s_and_b32 s34, s34, 7", "s_sub_u32 s35, 31, s45", "s_cmp_eq_u32 s44, 0",
        "s_cselect_b32 s56, s28, s34", "s_cselect_b32 s57, s45, s35", f"s_cselect_b32 s63, 0, {f2u(-32.0)}",
        "s_and_b32 s34, s30, 15", "s_sub_u32 s35, 16, s34", "s_and_b32 s50, s34, 7", "s_cmp_gt_u32 s34, 8",
        "s_cselect_b32 s50, s35, s50",
        "s_and_b32 s34, s34, 8", "s_lshl4_add_u32 s50, s50, s34", "s_lshr_b32 s34, s30, 4", "s_add_u32 s50, s50, s34",
        "s_cmp_eq_u32 s30, 128", "s_cselect_b32 s50, 128, s50", "s_lshl1_add_u32 s29, s50, s44",
        *([f"s_mul_i32 s50, s29, {VU}", "s_lshl_b32 s34, s3, 10"] if Cfg.vfull == 2 else
          ["s_lshl_b32 s50, s50, 7", "s_lshl1_add_u32 s34, s3, s44", f"s_mul_i32 s34, s34, {VB}"] if Cfg.vfull else
          ["s_lshl_b32 s50, s29, 6", f"s_mul_i32 s34, s3, {2*VB}"]),
        "s_add_u32 s50, s50, s34", f"s_add_u32 s50, s50, {WS_V}",
        "s_and_b32 s29, s29, 255", f"s_lshl2_add_u32 s29, s29, {WS_KB}",
        "s_and_b32 s51, s47, 7", "s_bfe_u32 s34, s47, 0x40003", "s_lshl4_add_u32 s51, s51, s34",
        "s_lshr_b32 s34, s47, 7", "s_lshl4_add_u32 s51, s51, s34", f"s_lshl3_add_u32 s51, s51, {WS_ST}",
        "s_lshl_b32 s52, s46, 23", f"s_sub_u32 s52, {f2u(1/8)}, s52",
        "s_lshl4_add_u32 s64, s3, s56", "s_lshl_b32 s64, s64, 11", "s_lshl_b32 s34, s57, 6", "s_add_u32 s64, s64, s34",
        "s_add_u32 s65, s64, 262144", "s_add_u32 s66, s64, 524288", "s_add_u32 s67, s64, 786432",
        "s_mov_b32 s60, 0x80000000", "s_mov_b32 s61, 0xfffff800",
        "s_mov_b64 s[20:21], s[8:9]", "s_mov_b32 s22, 4194304", "s_mov_b32 s23, 0x20000",
    ]
    mid_v, mid_s, post_v, post_s = [], [], [], []
    if Cfg.e2:
        assert Cfg.lut and Cfg.jswap and Cfg.vfull == 2 and not Cfg.fastk
        TA, TB = PB, PB + 1
        mid_v = [
            f"v_xor_b32 v{AX+2}, 0x3d8, v{AX}",
            f"v_xor_b32 v{AX+3}, 0x3f8, v{AX}",
            f"v_and_b32 v{AY}, 0x3d8, v{AX+4}",
            f"v_sub_u32 v{AY}, 1024, v{AY}",
            f"v_add_u32 v{AY+1}, -32, v{AY}",
            f"v_lshrrev_b32 v{AY+2}, 3, v{AY}",
            f"v_lshrrev_b32 v{AY+3}, 3, v{AY+1}",
            f"v_bitop3_b32 v{AY}, v{AY}, v{AY+2}, 32 bitop3:0x78",
            f"v_bitop3_b32 v{AY+1}, v{AY+1}, v{AY+3}, 32 bitop3:0x78",
            f"v_add_u32 v{AY}, s53, v{AY}",
            f"v_add_u32 v{AY+1}, s53, v{AY+1}",
            f"v_xor_b32 v{AY+2}, 1024, v{AY}",
            f"v_bfe_u32 v{AZW}, v3, 1, 2",
            f"v_xor_b32 v{AZW}, v{AZW}, v4",
            f"v_lshl_add_u32 v{AZW}, v3, 2, v{AZW}",
            f"v_lshl_add_u32 v{AZW}, v{AZW}, 4, s58",
            f"v_xor_b32 v{AZR}, s59, v3",
            f"v_lshrrev_b32 v{TA}, 1, v4",
            f"v_lshl_add_u32 v{AZR}, v{TA}, 4, v{AZR}",
            f"v_and_b32 v{TA}, 1, v4",
            f"v_mul_u32_u24 v{TA}, 1040, v{TA}",
            f"v_add_lshl_u32 v{AZR}, v{AZR}, v{TA}, 2",
            f"v_and_b32 v{TB}, 7, v3",
            f"v_lshrrev_b32 v{TA}, 3, v3",
            f"v_mul_u32_u24 v{AVS}, 128, v{TB}",
            f"v_lshl_add_u32 v{AVS}, v{TA}, 6, v{AVS}",
            f"v_lshl_add_u32 v{AVS}, v4, 4, v{AVS}",
            f"v_add_u32 v{K32}, 1, v3",
            f"v_bfe_i32 v{K32}, v{K32}, 4, 1",
            f"v_and_b32 v{K32}, s35, v{K32}",
        ]
        mid_s = [
            "s_lshr_b32 s58, s3, 2", "s_lshl4_add_u32 s58, s3, s58", "s_lshl_b32 s58, s58, 6",
            "s_and_b32 s59, s3, 3", "s_lshl3_add_u32 s59, s3, s59", "s_lshl_b32 s59, s59, 2",
            "s_and_b32 s34, s30, 15", "s_sub_u32 s35, 16, s34", "s_and_b32 s50, s34, 7", "s_cmp_gt_u32 s34, 8",
            "s_cselect_b32 s50, s35, s50",
            "s_and_b32 s34, s34, 8", "s_lshl4_add_u32 s50, s50, s34", "s_lshr_b32 s34, s30, 4", "s_add_u32 s50, s50, s34",
            "s_cmp_eq_u32 s30, 128", "s_cselect_b32 s50, 128, s50", "s_lshl1_add_u32 s29, s50, s44",
            f"s_mul_i32 s50, s29, {VU}", "s_lshl_b32 s34, s3, 10",
            "s_add_u32 s50, s50, s34", f"s_add_u32 s50, s50, {WS_V}",
            "s_and_b32 s29, s29, 255", f"s_lshl2_add_u32 s29, s29, {WS_KB}",
            "s_cmp_eq_u32 s44, 0", f"s_cselect_b32 s35, 0, {f2u(-32.0)}",
        ]
        post_v = [
            "v_bfe_u32 v6, v2, 2, 2",
            "v_lshl_add_u32 v6, v6, 2, v4",
            "v_and_b32 v1, 3, v2",
            "v_lshlrev_b32 v1, 4, v1",
            "v_lshl_add_u32 v6, v6, 18, v1",
            f"v_lshrrev_b32 v{T0}, 3, v3",
            f"v_and_b32 v{T0+1}, 7, v3",
            f"v_lshlrev_b32 v{AO}, 14, v{T0}",
            f"v_lshl_add_u32 v{AO}, v4, 20, v{AO}",
            f"v_lshl_add_u32 v{AO}, v{T0+1}, 3, v{AO}",
        ]
        if Cfg.fullout:
            post_v[-3:] = [f"v_lshlrev_b32 v{AO}, 3, v3", f"v_lshl_add_u32 v{AO}, v4, 20, v{AO}", f"v_mov_b32 v{T0}, 0"]
        post_s = [
            "s_mov_b32 s34, 0x71605432", "s_mov_b32 s35, 0x98fedcba", "s_lshl_b32 s56, s45, 2", "s_lshr_b64 s[34:35], s[34:35], s56",
            "s_and_b32 s34, s34, 15", "s_xor_b32 s45, s45, 8", "s_cmp_eq_u32 s44, 0", "s_cselect_b32 s45, s45, s34",
            "s_sub_u32 s34, 0, s28", "s_and_b32 s34, s34, 7", "s_lshr_b32 s35, s45, 1", "s_cmp_lt_u32 s35, s44",
            "s_cselect_b32 s28, s34, s28",
            "s_sub_u32 s34, 0, s28", "s_and_b32 s34, s34, 7", "s_sub_u32 s35, 31, s45", "s_cmp_eq_u32 s44, 0",
            "s_cselect_b32 s56, s28, s34", "s_cselect_b32 s57, s45, s35",
            "s_lshl4_add_u32 s64, s3, s56", "s_lshl_b32 s64, s64, 11", "s_lshl_b32 s34, s57, 6", "s_add_u32 s64, s64, s34",
            "s_add_u32 s65, s64, 262144", "s_add_u32 s66, s64, 524288", "s_add_u32 s67, s64, 786432",
            "s_mov_b64 s[20:21], s[8:9]", "s_mov_b32 s22, 4194304", "s_mov_b32 s23, 0x20000",
        ]
        val = [f"v_mov_b32 v{T0+r}, 0" for r in range(4)] + [f"v_mov_b32 v7, {L_C}", f"ds_write_b128 v7, {vr(T0,4)}",
            f"v_and_b32 v{AX+4}, 60, v2",
            f"v_and_b32 v{AX+5}, 3, v2",
            f"v_lshl_add_u32 v{AX+4}, v{AX+4}, 1, v{AX+5}",
            f"v_bfe_u32 v{AX+5}, v2, 4, 1",
            f"v_lshl_add_u32 v{AX+4}, v{AX+5}, 2, v{AX+4}",
            f"v_lshlrev_b32 v{AX+4}, 3, v{AX+4}",
            f"v_xor_b32 v{AX+5}, 32, v{AX+4}",
            f"v_add_u32 v{AX}, s53, v{AX+4}",
            f"v_xor_b32 v{AX+1}, 32, v{AX}"] + [f"v_mov_b32 v{SEL+r}, 0x3f803f80" for r in range(4)] + [
            f"v_mov_b32 v{VROW}, s47", f"v_mov_b32 v{T0+10}, 1", f"v_mov_b32 v{T0+11}, 0"]
        sal = ["s_and_b32 s51, s47, 7", "s_bfe_u32 s34, s47, 0x40003", "s_lshl4_add_u32 s51, s51, s34",
               "s_lshr_b32 s34, s47, 7", "s_lshl4_add_u32 s51, s51, s34", f"s_lshl3_add_u32 s51, s51, {WS_ST}",
               "s_lshl_b32 s52, s46, 23", f"s_sub_u32 s52, {f2u(1/8)}, s52",
               "s_mov_b32 s60, 0x80000000", "s_mov_b32 s61, 0xfffff800", "s_mov_b32 s71, 0"]

    def inter(sl, vl):
        for k in range(max(len(sl), len(vl))):
            if k < len(sl):
                a(sl[k])
            if k < len(vl):
                a(vl[k])

    def pairs(lo, hi):
        for k in range(lo, hi):
            if k < len(sal):
                a(sal[k])
            if k < len(val):
                a(val[k])

    def table_reads():
        for k in range(9):
            a(f"ds_read_b128 {vr(F1C+4*k,4)}, v{ATB} offset:{L_T+1024*k}")
    SW, S = DB_ + 8, DB_ + 12

    def ror(v, r):
        a(f"v_add_f32_dpp v{v}, v{v}, v{v} row_ror:{r} row_mask:0xf bank_mask:0xf")
    npairs = max(len(val), len(sal))
    if Cfg.e1:
        late = [x for x in sal if "s[8:9]" in x]
        sal = [x for x in sal if "s[8:9]" not in x]
        pairs(0, Cfg.e1v)
        row_requests()
        if Cfg.mpos == 1:
            a("s_branch F_go")
            m_first()
            a.label("F_go")
        a("s_barrier")
        table_reads()
        poison()
        pairs(Cfg.e1v, npairs)
        for x in late:
            a(x)
        estamp(a, 9)
        a("s_waitcnt vmcnt(3) lgkmcnt(0)")
        estamp(a, 10)
        a("s_barrier")
        stamp(a, 2)
        for be in range(2):
            for u2 in range(2):
                a(f"ds_read_b64_tr_b16 {vr(WR+4*be+2*u2,2)}, v{AX+4+be} offset:{L_WR+1024*u2}")
        nonce(a)
        a(f"s_mov_b32 s63, {f2u(1/1024)}")
        a(f"v_mov_b32 v{T0+9}, s33")
        if Cfg.kprio:
            a(f"s_setprio {Cfg.kprio}")
        a("s_waitcnt vmcnt(1)")
        estamp(a, 11)
    else:
        pairs(0, npairs)
        for k in range(Cfg.pad):
            a(f"v_lshlrev_b32 v{DA_ + k % 8}, 1, v2")
        if Cfg.revpos == 0:
            rev_loads()
        estamp(a, 9)
        a(f"s_waitcnt vmcnt({5 if Cfg.revpos in (0, 3) else 3}) lgkmcnt(0)")
        estamp(a, 10)
        a("s_barrier")
        if Cfg.revpos == 1:
            rev_loads()
        stamp(a, 2)
        for be in range(2):
            for u2 in range(2):
                a(f"ds_read_b64_tr_b16 {vr(WR+4*be+2*u2,2)}, v{AX+4+be} offset:{L_WR+1024*u2}")
        if not Cfg.fastk:
            table_reads()
        if Cfg.revpos == 2:
            rev_loads()
        nonce(a)
        a(f"s_mov_b32 s63, {f2u(1/1024)}")
        a(f"v_mov_b32 v{T0+9}, s33")
        lgk(a, 0 if Cfg.fastk else 9)
        a(f"v_mfma_f32_16x16x32_bf16 {vr(SW,4)}, {vr(SEL,4)}, {vr(WR,4)}, 0")
        a(f"v_mfma_f32_16x16x32_bf16 {vr(SW,4)}, {vr(SEL,4)}, {vr(WR+4,4)}, {vr(SW,4)}")
        if not Cfg.fastk:
            for r in (8, 4, 2, 1):
                ror(SW, r)
        stamp(a, 3)
        if Cfg.kprio:
            a(f"s_setprio {Cfg.kprio}")
        if Cfg.revpos == 4:
            a("s_waitcnt vmcnt(1) lgkmcnt(0)")
            estamp(a, 11)
            if not Cfg.fastk:
                rev_loads()
        else:
            a("s_waitcnt vmcnt(3) lgkmcnt(0)")
    for be in range(2):
        for u2 in range(2):
            a(f"ds_read_b64_tr_b16 {vr(PA+4*be+2*u2,2)}, v{AX+be} offset:{1024*u2}")

    def xp_load(h):
        if h == 0:
            a("s_mov_b32 m0, s53")
            a("s_add_u32 s35, s64, 16384")
            a("buffer_load_dwordx4 v6, s[12:15], s64 offen lds")
        else:
            a("s_add_u32 m0, s53, 1152")
            a("s_add_u32 s35, s64, 16384")
            if Cfg.halfxp:
                a("s_mov_b64 exec, 1")
            a("buffer_load_dwordx4 v6, s[12:15], s35 offen lds")
            if Cfg.halfxp:
                a("s_mov_b64 exec, -1")

    def bc15(v):
        a(f"v_add_f32_dpp v{v}, v{v}, v{v} row_bcast:15 row_mask:0xa bank_mask:0xf")

    def s1(D, P):
        for c, F1 in enumerate((F1C, F1S)):
            for b in range(2):
                a(f"v_mfma_f32_16x16x32_bf16 {vr(D+8*c+4*b,4)}, {vr(P+4*b,4)}, {vr(F1,4)}, 0")
    if (Cfg.fastk or Cfg.e1) and Cfg.revpos == 4:
        rev_loads()
    if Cfg.e1:
        lgk(a, 4)
        a(f"v_mfma_f32_16x16x32_bf16 {vr(SW,4)}, {vr(SEL,4)}, {vr(WR,4)}, 0")
        a(f"v_mfma_f32_16x16x32_bf16 {vr(SW,4)}, {vr(SEL,4)}, {vr(WR+4,4)}, {vr(SW,4)}")
    lgk(a, 2)
    a(f"v_mfma_f32_16x16x32_bf16 {vr(S,4)}, {vr(SEL,4)}, {vr(PA,4)}, 0")
    for j in range(8):
        if j == 4:
            lgk(a, 0)
            a(f"v_mfma_f32_16x16x32_bf16 {vr(S,4)}, {vr(SEL,4)}, {vr(PA+4,4)}, {vr(S,4)}")
        a(f"v_dot2_f32_bf16 v{DW}, v{PA+j}, v{WR+j}, v{DW}")
        a(f"v_dot2_f32_bf16 v{QA}, v{PA+j}, v{PA+j}, v{QA}")
    M, RS, CC = T0+4, T0+3, T0+5
    sw = (lambda r: ror(SW, r)) if (Cfg.fastk or Cfg.e1) else (lambda r: None)
    ror(S, 8)
    sw(8)
    a(f"v_permlane32_swap_b32 v{QA}, v{DW}")
    ror(S, 4)
    a(f"v_add_f32 v{QA}, v{QA}, v{DW}")
    sw(4)
    ror(S, 2)
    ror(QA, 8)
    sw(2)
    ror(S, 1)
    ror(QA, 4)
    sw(1)
    a(f"v_mul_f32 v{M}, {f2u(1/1024)}, v{S}")
    ror(QA, 2)
    a(f"v_mul_f32 v{CC}, -v{M}, v{M}")
    ror(QA, 1)
    a(f"v_mul_f32 v{DW}, v{M}, v{SW}")
    bc15(QA)
    a(f"v_readlane_b32 s34, v{QA}, 48")
    a(f"v_fmamk_f32 v{QA}, v{QA}, {f2u(1/1024)}, v{CC}")
    a(f"v_max_f32 v{QA}, 0, v{QA}")
    a(f"v_add_f32 v{RS}, {f2u(1e-5)}, v{QA}")
    a(f"v_rsq_f32 v{RS}, v{RS}")
    a(f"v_sub_f32 v{DW}, s34, v{DW}")
    a(f"v_mul_f32 v{DW}, v{DW}, v{RS}")
    a(f"v_ashrrev_i32 v{T0+7}, 31, v{DW}")
    a(f"v_bitop3_b32 v{T0+7}, v{DW}, v{T0+7}, s60 bitop3:0x1e")
    a(f"v_and_or_b32 v{T0+7}, v{T0+7}, s61, v{VROW}")
    estamp(a, 13)
    a("s_mov_b64 exec, 0x10000")
    a("s_waitcnt vmcnt(2)")
    if Cfg.stamps and Cfg.early:
        a("s_mov_b64 exec, -1")
        estamp(a, 15)
        a("s_mov_b64 exec, 0x10000")
    a(f"ds_max_u32 v7, v{T0+7}")
    a(f"ds_add_rtn_u32 v{T0+10}, v7, v{T0+10} offset:8")
    a(f"v_cvt_pk_bf16_f32 v{T0+8}, v{M}, v{QA}")
    if Cfg.nostst:
        a(f"s_lshl3_add_u32 s34, s2, s3")
        a(f"s_lshl_b32 s34, s34, 7")
        a(f"s_add_u32 s34, s34, {8 << 20}")
    a(f"buffer_store_dwordx2 {vr(T0+8,2)}, v{T0+11}, s[24:27], {'s34' if Cfg.nostst else 's51'} offen sc1")
    a("s_mov_b64 exec, -1")
    a(f"ds_read_b32 v{T0+6}, v7")
    if Cfg.fastk:
        table_reads()
    a(f"v_mul_f32 v{RS}, s52, v{RS}")
    a(f"v_mul_f32 v{CC}, v{M}, v{RS}")
    a(f"v_readlane_b32 s54, v{RS}, 16")
    a(f"v_readlane_b32 s70, v{CC}, 16")
    if not Cfg.fastk:
        s1(DA_, PA)
    lgk(a, 9 if Cfg.fastk else 0)
    a(f"v_readlane_b32 s34, v{T0+10}, 16")
    a("s_cmp_lg_u32 s34, 7")
    a("s_cbranch_scc0 F_key")
    if Cfg.fastk:
        a.label("F_nokey")
        if Cfg.kprio:
            a("s_setprio 0")
        lgk(a, 7)
        s1(DA_, PA)
        a("s_cmp_lg_u32 s34, 7")
        a("s_waitcnt vmcnt(2) lgkmcnt(0)")
        a("s_cbranch_scc0 F_nokey2")
    estamp(a, 12)
    if Cfg.e2:
        a.label("F_nokey")
        if Cfg.kprio:
            a("s_setprio 0")
        inter(mid_s, mid_v)
        a("s_cmp_lg_u32 s71, 0")
        a("s_cbranch_scc1 F_wkey")
        a("s_waitcnt vmcnt(1)")
        a.label("F_wkey_r")
    else:
        a("s_waitcnt vmcnt(1)")
        a.label("F_nokey2" if Cfg.fastk else "F_nokey")
    if Cfg.diag == 2:
        a("s_branch L_fin")
    if Cfg.kprio and not Cfg.fastk and not Cfg.e2:
        a("s_setprio 0")
    stamp(a, 4)
    for be in range(2):
        for u2 in range(2):
            a(f"ds_read_b64_tr_b16 {vr(PQ+4*be+2*u2,2)}, v{AX+2+be} offset:{2048+1024*(1-u2)}")
    a(f"ds_read_b64_tr_b16 {vr(PB,2)}, v{AY+2} offset:2048")
    a(f"ds_read_b64_tr_b16 {vr(PB+2,2)}, v{AY} offset:2048")
    a(f"ds_read_b64_tr_b16 {vr(PB+4,2)}, v{AY+1} offset:3072")
    a(f"ds_read_b64_tr_b16 {vr(PB+6,2)}, v{AY+1} offset:2048")
    lgk(a, 6)
    a(f"v_mfma_f32_16x16x32_bf16 {vr(S,4)}, {vr(SEL,4)}, {vr(PQ,4)}, 0")
    for j in range(8):
        if j == 4:
            lgk(a, 4)
            a(f"v_mfma_f32_16x16x32_bf16 {vr(S,4)}, {vr(SEL,4)}, {vr(PQ+4,4)}, {vr(S,4)}")
        a(f"v_dot2_f32_bf16 v{QB}, v{PQ+j}, v{PQ+j}, v{QB}")
    a("s_mov_b32 exec_lo, 0xeeeeeeee")
    a("s_mov_b32 exec_hi, 0xeeeeeeee")
    lgk(a, 0)
    for j in range(8):
        a(f"v_mov_b32_dpp v{PB+j}, v{PQ+j} quad_perm:[0,3,2,1] row_mask:0xf bank_mask:0xf")
    a("s_mov_b64 exec, -1")
    if Cfg.xpos in (7, 8):
        xp_load(0)
    if Cfg.xpos == 7:
        xp_load(1)
    a(f"v_add_f32_dpp v{M}, v{S}, v{S} row_ror:8 row_mask:0xf bank_mask:0xf")
    mf = [f"v_mfma_f32_16x16x32_bf16 {vr(DB_+8*c+4*b,4)}, {vr(PB+4*b,4)}, {vr(F1,4)}, 0"
          for c, F1 in enumerate((F1C, F1S)) for b in range(2)]
    ror(QB, 8)
    a(mf[0])
    for k, r in enumerate((4, 2, 1)):
        ror(M, r)
        ror(QB, r)
        a(mf[1+k])
    a(f"v_mul_f32 v{M}, {f2u(1/1024)}, v{M}")
    bc15(QB)
    a(f"v_fmaak_f32 v{CC}, v{M}, v{M}, {f2u(-1e-5)}")
    CV = T0+8
    a(f"v_mul_f32 v{CV}, s70, v{K32}")
    a(f"v_add_f32_dpp v{QB}, v{QB}, v{QB} row_bcast:31 row_mask:0xc bank_mask:0xf")
    a(f"v_fma_f32 v{QB}, v{QB}, s63, -v{CC}")
    a(f"v_max_f32 v{QB}, {f2u(1e-5)}, v{QB}")
    a(f"v_rsq_f32 v{QB}, v{QB}")
    for r in range(8, 16, 2):
        a(f"v_pk_mul_f32 {vr(DA_+r,2)}, {vr(DA_+r,2)}, s[54:55] op_sel:[0,0] op_sel_hi:[1,0]")
        if r == 8:
            a(f"v_mul_f32 v{QB}, s52, v{QB}")
        if r == 10:
            a(f"v_readlane_b32 s55, v{QB}, 48")
    a(f"v_mul_f32 v{M}, s55, v{M}")
    a(f"v_fmac_f32 v{CV}, v{M}, v{K32}")
    a.label("F_pass")
    T, TP, D2, Z = WR, SEL, DB_, WR
    for r in range(0, 8, 2):
        a(f"v_pk_fma_f32 {vr(DA_+r,2)}, {vr(DA_+r,2)}, s[54:55], {vr(CV,2)} op_sel:[0,0,0] op_sel_hi:[1,0,0]")
    for r in range(0, 16, 2):
        a(f"v_pk_fma_f32 {vr(DA_+r,2)}, {vr(DB_+r,2)}, s[54:55], {vr(DA_+r,2)} op_sel:[0,1,0] op_sel_hi:[1,1,1]")
    for r in range(8):
        a(f"v_cvt_pk_f16_f32 v{T+r}, v{DA_+2*r}, v{DA_+2*r+1}")
    for i in range(4):
        a(f"v_pk_mul_f16 v{TP+i}, v{T+i}, v{TWC+i}")
    for i in range(4):
        a(f"v_pk_fma_f16 v{TP+i}, v{T+4+i}, v{TWS+i}, v{TP+i}")
    for i in range(4):
        a(f"v_pk_mul_f16 v{TP+4+i}, v{T+4+i}, v{TWC+i}")
    a(f"v_mfma_f32_16x16x32_f16 {vr(D2,4)}, {vr(TP,4)}, {vr(F2C,4)}, 0")
    a(f"v_mfma_f32_16x16x32_f16 {vr(D2+4,4)}, {vr(TP,4)}, {vr(F2S,4)}, 0")
    for i in range(4):
        a(f"v_pk_fma_f16 v{TP+4+i}, v{T+i}, v{TWS+i}, v{TP+4+i} neg_lo:[1,0,0] neg_hi:[1,0,0]")
    a(f"v_mfma_f32_16x16x32_f16 {vr(D2,4)}, {vr(TP+4,4)}, {vr(F2N,4)}, {vr(D2,4)}")
    a(f"v_mfma_f32_16x16x32_f16 {vr(D2+4,4)}, {vr(TP+4,4)}, {vr(F2C,4)}, {vr(D2+4,4)}")
    for i in range(4):
        a(f"v_cvt_pk_f16_f32 v{Z+i}, v{D2+i}, v{D2+4+i}")
    a(f"ds_write_b128 v{AZW}, {vr(Z,4)} offset:{L_Z}")
    if Cfg.xpos == 9:
        xp_load(0)
    if Cfg.xpos in (8, 9):
        xp_load(1)
    stamp(a, 6)
    a("s_waitcnt lgkmcnt(0)")
    a("s_barrier")
    a(f"ds_read2st64_b32 {vr(Z+4,2)}, v{AZR} offset0:{L_Z//256} offset1:{L_Z//256+4}")
    a(f"ds_read2st64_b32 {vr(Z+6,2)}, v{AZR} offset0:{L_Z//256+8} offset1:{L_Z//256+12}")
    a("s_waitcnt lgkmcnt(0)")
    a(f"v_mfma_f32_16x16x32_f16 {vr(D2+8,4)}, {vr(Z+4,4)}, {vr(R8R,4)}, 0")
    a(f"v_mfma_f32_16x16x32_f16 {vr(D2+12,4)}, {vr(Z+4,4)}, {vr(R8I,4)}, 0")
    for i in range(4):
        a(f"v_cvt_pk_f16_f32 v{TP+i}, v{D2+8+i}, v{D2+12+i}")
    for k in range(Cfg.pad2):
        a(f"v_lshlrev_b32 v{D2 + k % 4}, 1, v2")
    if Cfg.vdel:
        a("s_cmp_ge_u32 s2, 224")
        a("s_cbranch_scc1 F_nvd")
        a(f"s_sleep {Cfg.vdel}")
        a.label("F_nvd")
    a(f"buffer_store_dwordx4 {vr(TP,4)}, v{AVS}, s[24:27], s50 offen sc1")
    if Cfg.noack:
        a("s_cmp_lg_u32 s3, 7")
        a("s_cbranch_scc1 F_nef")
        a("s_cmp_lg_u32 s46, 0")
        a("s_cbranch_scc1 F_nef")
        a(f"v_mov_b32 v{T0}, s33")
        a(f"v_lshlrev_b32 v{T0+1}, 10, v2")
        a(f"s_mov_b32 exec_lo, {hex((1 << Cfg.brep) - 1)}")
        a("s_mov_b32 exec_hi, 0")
        a(f"buffer_store_dword v{T0}, v{T0+1}, s[24:27], s29 offen sc1")
        a("s_mov_b64 exec, -1")
        a.label("F_nef")
    a("s_cmp_lg_u32 s46, 0")
    a("s_cbranch_scc1 F_second")
    stamp(a, 7)

    if Cfg.diag == 3:
        a("s_branch L_fin")
    XP, ST, CA, CX, CB, V, VX = 8, 24, 32, 40, 44, 48, 56
    XF, G, TMP = 60, 76, 92
    DA = 92
    AV, AUW, AUR, AST, AVX = 120, 121, 122, 124, 125
    if Cfg.xpos == 0:
        xp_load(0)
        xp_load(1)
    if Cfg.e2:
        inter(post_s, post_v)
    if Cfg.own1:
        a("s_mov_b32 s16, 0")
    if Cfg.ldg:
        a("s_lshl_b32 s18, s2, 7")
        a(f"s_add_u32 s18, s18, {WS_LD}")
        a("s_cmp_lt_u32 s2, 224")
        a("s_cselect_b32 s19, -1, 0")
    if Cfg.latex:
        assert Cfg.xpos == 5 and Cfg.gfirst and Cfg.midg
        a("s_lshr_b32 s34, s57, 1")
        a("s_lshl4_add_u32 s34, s56, s34")
        a("s_cmp_eq_u32 s34, 63")
        a("s_cselect_b32 s46, 3, 0")
    def xp_pair(k):
        a("s_lshr_b32 s34, s3, 1")
        a("s_lshl2_add_u32 s34, s46, s34")
        a(f"s_cmp_lg_u32 s34, {k}")
        a(f"s_cbranch_scc1 F_xp{k}")
        xp_load(0)
        xp_load(1)
        a.label(f"F_xp{k}")
    if Cfg.nsl:
        xp_pair(0)
    COL, H, TF, CP, PH, MK = range(T0+2, T0+8)
    ANG, STP = T0+8, T0+9
    a(f"v_and_b32 v{COL}, 31, v2")
    a(f"v_lshrrev_b32 v{H}, 5, v2")
    a("s_lshl_b32 s61, s44, 31")
    a(f"s_xor_b32 s60, s61, {f2u(1/2048)}")
    a(f"v_lshrrev_b32 v{TF}, 1, v{COL}")
    a(f"v_lshl_add_u32 v{TF}, v{TF}, 3, s56")
    a(f"v_cvt_f32_u32 v{TF}, v{TF}")
    a(f"v_mul_f32 v{TF}, s60, v{TF}")
    a(f"v_and_b32 v{CP}, 1, v{COL}")
    a(f"v_cvt_f32_u32 v{PH}, v{CP}")
    a("s_sub_u32 s58, 16, s3")
    a("s_cmp_eq_u32 s3, 0")
    a(f"s_cselect_b32 s34, 0, {f2u(0.25)}")
    a("s_cselect_b32 s35, 0, -1")
    a("s_cselect_b32 s58, 8, s58")
    a(f"v_mul_f32 v{PH}, s34, v{PH}")
    a(f"v_mul_f32 v{STP}, {f2u(32.0)}, v{TF}")
    for sec in range(2):
        a(f"v_lshl_add_u32 v{ANG}, v{H}, 4, {'s3' if sec == 0 else 's58'}")
        a(f"v_cvt_f32_u32 v{ANG}, v{ANG}")
        a(f"v_fma_f32 v{ANG}, v{ANG}, v{TF}, {'' if sec == 0 else '-'}v{PH}")
        for jj in range(4):
            a(f"v_cos_f32 v{T0}, v{ANG}")
            a(f"v_sin_f32 v{T0+1}, v{ANG}")
            a(f"v_add_f32 v{ANG}, v{ANG}, v{STP}")
            a(f"v_cvt_pk_f16_f32 v{CA+4*sec+jj}, v{T0}, v{T0+1}")
        if sec == 0 and Cfg.early_b2:
            break
    def stats_addr():
        a(f"v_lshrrev_b32 v{T0+10}, 3, v3")
        a(f"v_lshlrev_b32 v{AST}, 7, v{T0+10}")
        a(f"v_lshl_add_u32 v{AST}, v4, 5, v{AST}")
        a("s_lshl3_add_u32 s59, s56, s3")
        a("s_lshl_b32 s59, s59, 8")
        a(f"s_add_u32 s59, s59, {WS_ST}")
    if Cfg.spos:
        assert Cfg.xpos >= 7
        stats_addr()
        a(f"buffer_load_dwordx4 {vr(ST,4)}, v{AST}, s[24:27], s59 offen sc1")
        a(f"buffer_load_dwordx4 {vr(ST+4,4)}, v{AST}, s[24:27], s59 offen offset:16 sc1")

    def p2_setup():
        if Cfg.early_b2:
            a(f"v_lshl_add_u32 v{ANG}, v{H}, 4, s58")
            a(f"v_cvt_f32_u32 v{ANG}, v{ANG}")
            a(f"v_fma_f32 v{ANG}, v{ANG}, v{TF}, -v{PH}")
            for jj in range(4):
                a(f"v_cos_f32 v{T0}, v{ANG}")
                a(f"v_sin_f32 v{T0+1}, v{ANG}")
                a(f"v_add_f32 v{ANG}, v{ANG}, v{STP}")
                a(f"v_cvt_pk_f16_f32 v{CA+4+jj}, v{T0}, v{T0+1}")
        a("s_cmp_lg_u32 s3, 0")
        a("s_cbranch_scc1 F_now0")
        a(f"v_mul_f32 v{ANG}, {f2u(128.0)}, v{TF}")
        a(f"v_cos_f32 v{T0}, v{ANG}")
        a(f"v_sin_f32 v{T0+1}, v{ANG}")
        a(f"v_add_u32 v{MK}, -1, v{CP}")
        for jj in range(4):
            a(f"v_and_b32 v{CA+jj}, v{CA+jj}, v{MK}")
            a(f"v_bfi_b32 v{CA+4+jj}, v{MK}, 0, v{CA+4+jj}")
        a(f"v_or_b32 v{MK}, v{CP}, v{H}")
        a(f"v_add_u32 v{MK}, -1, v{MK}")
        a(f"v_cvt_pk_f16_f32 v{CX}, v{T0}, v{T0+1}")
        a(f"v_and_b32 v{CX}, v{CX}, v{MK}")
        for r in range(1, 4):
            a(f"v_mov_b32 v{CX+r}, 0")
            a(f"v_mov_b32 v{VX+r}, 0")
        a.label("F_now0")
        if Cfg.nsl == 1:
            xp_pair(3)
        a(f"s_xor_b32 s60, s61, {f2u(1/16)}")
        a(f"v_cvt_f32_u32 v{STP}, v3")
        a(f"v_mul_f32 v{STP}, s60, v{STP}")
        a(f"v_lshlrev_b32 v{ANG}, 1, v4")
        a(f"v_cvt_f32_u32 v{ANG}, v{ANG}")
        a(f"v_mul_f32 v{ANG}, v{ANG}, v{STP}")
        a(f"v_add_f32 v{STP}, v{ANG}, v{STP}")
        a(f"v_cos_f32 v{T0}, v{ANG}")
        a(f"v_sin_f32 v{T0+1}, v{ANG}")
        a(f"v_cos_f32 v{PH}, v{STP}")
        a(f"v_sin_f32 v{MK}, v{STP}")
        a(f"v_cvt_pk_f16_f32 v{CB}, v{T0}, v{T0+1}")
        a("s_mov_b32 s34, 0x3c003c00")
        a(f"v_cvt_pk_f16_f32 v{CB+1}, v{PH}, v{MK}")
        a("s_mov_b64 exec, 0xffff")
        a(f"v_lshl_or_b32 v{CB}, v3, 31, s34")
        a("s_mov_b64 exec, -1")
        a(f"v_lshl_add_u32 v{AUR}, s3, 1, v{T0+10}")
        a(f"v_mul_u32_u24 v{AUR}, 1280, v{AUR}")
        a(f"v_mul_u32_u24 v{T0}, 272, v4")
        a(f"v_and_b32 v{T0+1}, 7, v3")
        a(f"v_lshlrev_b32 v{T0+1}, 5, v{T0+1}")
        a(f"v_add3_u32 v{AUR}, v{AUR}, v{T0}, v{T0+1}")
        a("s_lshr_b32 s34, s3, 1")
        a("s_mul_i32 s34, s34, 272")
        a("s_and_b32 s35, s3, 1")
        a("s_lshl2_add_u32 s34, s35, s34")
        a(f"v_mul_u32_u24 v{AUW}, 2560, v{H}")
        a(f"v_lshl_add_u32 v{AUW}, v{COL}, 3, v{AUW}")
        a(f"v_add_u32 v{AUW}, s34, v{AUW}")
        a("s_cmp_eq_u32 s44, 0")
        a("s_cselect_b32 s34, 0, 31")
        a("s_cselect_b32 s35, -1, 0")
        a("s_lshl_b32 s60, s45, 5")
        a("s_add_u32 s35, s35, s60")
        a(f"v_xor_b32 v{T0}, s34, v{COL}")
        a(f"v_add_u32 v{T0}, s35, v{T0}")
        a(f"v_max_i32 v{T0}, 0, v{T0}")
        if Cfg.vfull == 2:
            a(f"v_bfe_u32 v{AVX}, v{T0}, 4, 1")
            a(f"v_mul_u32_u24 v{AVX}, {VU}, v{AVX}")
            a(f"v_lshrrev_b32 v{T0+1}, 6, v{T0}")
            a(f"v_lshl_add_u32 v{AVX}, v{T0+1}, 10, v{AVX}")
            a(f"v_bfe_u32 v{T0+1}, v{T0}, 5, 1")
            a(f"v_lshl_add_u32 v{AVX}, v{T0+1}, 6, v{AVX}")
            a(f"v_and_b32 v{T0}, 15, v{T0}")
        elif Cfg.vfull:
            a(f"v_lshrrev_b32 v{T0+1}, 6, v{T0}")
            a(f"v_bfe_u32 v{AVX}, v{T0}, 4, 1")
            a(f"v_lshl_add_u32 v{AVX}, v{T0+1}, 1, v{AVX}")
            a(f"v_mul_u32_u24 v{AVX}, {VB}, v{AVX}")
            a(f"v_bfe_u32 v{T0+1}, v{T0}, 5, 1")
            a(f"v_lshl_add_u32 v{AVX}, v{T0+1}, 6, v{AVX}")
            a(f"v_and_b32 v{T0}, 15, v{T0}")
        else:
            a(f"v_lshrrev_b32 v{AVX}, 5, v{T0}")
            a(f"v_mul_u32_u24 v{AVX}, {VB}, v{AVX}")
            a(f"v_and_b32 v{T0}, 31, v{T0}")
        a(f"v_lshl_add_u32 v{AVX}, v{T0}, 2, v{AVX}")
        if Cfg.vfull == 2:
            a(f"v_mul_u32_u24 v{AV}, {2*VU}, v{H}")
            a(f"v_add_u32 v{AV}, v{AV}, v{AVX}")
            a("s_lshl_b32 s58, s28, 7")
            a(f"s_add_u32 s58, s58, {WS_V}")
            a(f"s_add_u32 s60, s58, {256*VU}")
            a(f"s_mul_i32 s34, s3, {32*VU}")
        else:
            a(f"v_lshl_add_u32 v{AV}, v{H}, 7, v{AVX}")
            a(f"s_mul_i32 s58, s28, {16*VB}")
            a(f"s_add_u32 s58, s58, {WS_V}")
            a("s_add_u32 s60, s58, 16384")
            a("s_lshl_b32 s34, s3, 11")
        a("s_add_u32 s58, s58, s34")
        a("s_lshl4_add_u32 s47, s3, s56")
        a("s_lshl_b32 s48, s57, 7")
        a(f"s_add_u32 s49, s48, {WS_H2}")
        a(f"s_lshl1_add_u32 s48, s48, {WS_N2}")
        a("s_add_u32 s52, s48, 128")
        a(f"s_and_b32 s34, s2, {Cfg.brep-1}")
        a("s_lshl3_add_u32 s34, s34, s3")
        a("s_lshl_b32 s34, s34, 7")
        a(f"s_add_u32 s34, s34, {WS_KB}")
        if Cfg.fpf:
            a("s_mov_b64 s[16:17], s[42:43]")
            a("s_mov_b32 s18, 7340032")
        a("s_add_u32 s42, s10, s34")
        a("s_addc_u32 s43, s11, 0")
        a("s_mov_b32 s40, s33")
        a("s_mov_b32 s41, s33")
        a("s_and_b32 s63, s2, 31")
        a("s_lshl_b32 s63, s63, 7")
        a(f"s_add_u32 s63, s63, {WS_RES}")

    def free_prefetch():
        a("s_cmp_lt_u32 s2, 224")
        a("s_cbranch_scc1 F_npf")
        a("s_cmp_eq_u32 s3, 7")
        a("s_cbranch_scc1 F_npf")
        a("s_bfe_u32 s34, s2, 0x20003")
        a("s_mul_i32 s34, s34, 7")
        a("s_add_u32 s34, s34, s3")
        a("s_and_b32 s35, s2, 7")
        a("s_lshl3_add_u32 s34, s34, s35")
        a("s_and_b32 s35, s34, 3")
        if Cfg.dxor:
            a("s_xor_b32 s35, s35, 1")
        a("s_lshr_b32 s34, s34, 2")
        a("s_lshl_b32 s34, s34, 8")
        a("s_add_u32 s34, s34, s35")
        a("s_lshl_b32 s34, s34, 9")
        a(f"s_mov_b32 m0, {LDS_BYTES - 256}")
        b_ = 1 if Cfg.fboth else 0
        a(f"v_lshrrev_b32 v1, {2+b_}, v2")
        a(f"v_and_b32 v5, {(4 << b_) - 1}, v2")
        a(f"v_lshlrev_b32 v5, {7-b_}, v5")
        a("v_lshl_add_u32 v5, v1, 11, v5")
        for k in range(Cfg.fpf << b_):
            a(f"s_add_u32 s35, s34, {131072 - (k+1)*(32768 >> b_)}")
            a("buffer_load_dword v5, s[16:19], s35 offen lds")
        a.label("F_npf")

    def staggered(name):
        a(f"s_and_b32 s34, s3, {7 if Cfg.xpos == 6 else 3}")
        a.label(name)
        a("s_cmp_eq_u32 s34, 0")
        a(f"s_cbranch_scc1 {name}_d")
        a(f"s_sleep {Cfg.stag}")
        a("s_sub_u32 s34, s34, 1")
        a(f"s_branch {name}")
        a.label(name + "_d")
        xp_load(0)
        xp_load(1)
    if Cfg.noack:
        a("s_barrier")
        if Cfg.xpos == 6:
            if Cfg.xdel:
                a(f"s_sleep {Cfg.xdel}")
            staggered("F_sg6")
    else:
        a(f"v_mov_b32 v{V}, s33")
        a(f"v_lshlrev_b32 v{V+1}, 10, v2")
        if Cfg.xpos == 5:
            a("s_lshl2_add_u32 s34, s46, s3")
            a("s_cmp_ge_u32 s34, 4")
            a("s_cbranch_scc1 F_x5a")
            if Cfg.nsl:
                xp_pair(1)
            else:
                staggered("F_sg0")
            if Cfg.allpre:
                a.label("F_x5a")
                stats_addr()
                p2_setup()
                a("s_lshl2_add_u32 s34, s46, s3")
                a("s_cmp_lt_u32 s34, 4")
                a("s_waitcnt vmcnt(2)")
                a("s_cbranch_scc1 F_x5b")
            else:
                a("s_waitcnt vmcnt(2)")
                a("s_branch F_x5b")
                a.label("F_x5a")
            a("s_waitcnt vmcnt(0)")
            a.label("F_x5b")
        elif Cfg.allpre:
            stats_addr()
            p2_setup()
        a("s_cmp_lg_u32 s3, 7")
        if Cfg.xpos != 5:
            a(f"s_waitcnt vmcnt({2 if Cfg.xpos == 0 or Cfg.spos else 0})")
        a("s_barrier")
        a("s_cbranch_scc1 F_noflag")
        if Cfg.brep < 64:
            a(f"s_mov_b32 exec_lo, {hex((1 << Cfg.brep) - 1)}")
            a("s_mov_b32 exec_hi, 0")
        a(f"buffer_store_dword v{V}, v{V+1}, s[24:27], s29 offen sc1")
        a("s_mov_b64 exec, -1")
        a.label("F_noflag")
    stamp(a, 8)
    if Cfg.diag == 4:
        a("s_branch L_fin")
    if Cfg.xpos == 2:
        xp_load(0)
        xp_load(1)
    if Cfg.xpos == 5:
        a("s_lshr_b32 s34, s3, s46")
        a("s_cmp_lt_u32 s34, 4")
        a("s_cbranch_scc1 F_x5c")
        if Cfg.nsl:
            xp_pair(2)
        else:
            staggered("F_sg1")
        a.label("F_x5c")
    if not Cfg.spos and not Cfg.allpre:
        stats_addr()
    a("s_mov_b32 s62, 0")
    if Cfg.spos:
        a("s_branch F_stats_i")
    a.label("F_stats")
    if Cfg.nostat:
        for r in range(4):
            a(f"v_mov_b32 v{ST+2*r}, 0x3b200000")
            a(f"v_mov_b32 v{ST+2*r+1}, s33")
    else:
        a(f"buffer_load_dwordx4 {vr(ST,4)}, v{AST}, s[24:27], s59 offen sc1")
        a(f"buffer_load_dwordx4 {vr(ST+4,4)}, v{AST}, s[24:27], s59 offen offset:16 sc1")
    a("s_cmp_lg_u32 s62, 0")
    a("s_cbranch_scc1 F_stats_w")
    a.label("F_stats_i")
    if not Cfg.allpre:
        p2_setup()

    def flag_req():
        a("s_load_dwordx16 s[68:83], s[42:43], 0 glc")
        a("s_load_dwordx16 s[84:99], s[42:43], 64 glc")
        if Cfg.ldg:
            a("s_load_dword s17, s[10:11], s18 glc")

    def v_fetch():
        if Cfg.rdel:
            a(f"s_sleep {Cfg.rdel}")
        a("s_mov_b32 s62, 0")
        if Cfg.midg:
            a("s_cmp_eq_u32 s46, 2")
            a("s_cbranch_scc1 F_fetched")
            a("s_branch F_poll_w")
        elif Cfg.pre:
            a("s_branch F_poll_w")
        a.label("F_poll")
        flag_req()
        a.label("F_poll_w")
        a("s_waitcnt lgkmcnt(0)")
        if Cfg.ldg:
            a("s_xor_b32 s17, s17, s33")
            a(f"s_cmp_lt_u32 s62, {Cfg.ldcap}")
            a("s_cselect_b32 s17, s17, 0")
            a("s_and_b32 s17, s17, s19")
        a("s_xor_b64 s[68:69], s[68:69], s[40:41]")
        if Cfg.ldg:
            a("s_or_b32 s68, s68, s17")
        for k in range(1, 16):
            a(f"s_xor_b64 s[{68+2*k}:{69+2*k}], s[{68+2*k}:{69+2*k}], s[40:41]")
            a(f"s_or_b64 s[68:69], s[68:69], s[{68+2*k}:{69+2*k}]")
        a("s_cbranch_scc0 F_rel")
        if Cfg.midg:
            a("s_cmp_lg_u32 s46, 0")
            a("s_cbranch_scc1 F_poll_n")
            a("s_mov_b32 s46, 1")
            flag_req()
            a("s_branch F_mid")
            a.label("F_poll_n")
        if Cfg.hyb:
            a("s_getreg_b32 s34, hwreg(HW_REG_IB_STS, 0, 4)")
            a("s_or_b32 s34, s34, s46")
            a("s_cbranch_scc0 F_early_no")
        a("s_add_u32 s62, s62, 1")
        if Cfg.psl:
            a(f"s_sleep {Cfg.psl}")
        a(f"s_cmp_lt_u32 s62, {SPIN_CAP}")
        a("s_cbranch_scc1 F_poll")
        a.label("F_rel")
        if Cfg.edel:
            a("s_cmp_eq_u32 s62, 0")
            a("s_cbranch_scc1 F_ned")
            a(f"s_sleep {Cfg.edel}")
            a.label("F_ned")
        stamp(a, 11)
        if Cfg.diag == 5:
            a("s_branch L_fin")
        if Cfg.xpos == 3:
            xp_load(0)
            xp_load(1)
        if Cfg.latex:
            a("s_cmp_lg_u32 s46, 3")
            a("s_cbranch_scc1 F_nlx")
            xp_load(0)
            xp_load(1)
            a.label("F_nlx")
        for n in range(8):
            if Cfg.vfull == 2:
                a(f"buffer_load_dword v{V+n}, v{AV}, s[24:27], s58 offen sc1")
                if n < 7:
                    a(f"s_add_u32 s58, s58, {4*VU}")
            else:
                a(f"buffer_load_dword v{V+n}, v{AV}, s[24:27], s58 offen offset:{256*n} sc1")
        if Cfg.gfirst:
            a("s_load_dwordx2 s[36:37], s[10:11], s63")
        a("s_cmp_lg_u32 s3, 0")
        a("s_cbranch_scc1 F_novx")
        a(f"buffer_load_dword v{VX}, v{AVX}, s[24:27], s60 offen sc1")
        a.label("F_novx")
        if Cfg.latex:
            a("s_cmp_eq_u32 s46, 3")
            a("s_cbranch_scc1 F_lx")
        if Cfg.midg:
            a("s_cmp_eq_u32 s46, 0")
            a("s_mov_b32 s46, 2")
            a("s_cbranch_scc1 F_mid")
        if Cfg.hyb:
            a("s_cmp_eq_u32 s46, 0")
            a("s_cbranch_scc1 F_early_ok")
    if Cfg.nsl == 2:
        xp_pair(3)
    a(f"v_mul_u32_u24 v{T0}, 1152, v{T0+10}")
    a(f"v_lshl_add_u32 v{T0}, v4, 6, v{T0}")
    a(f"v_and_b32 v{T0+1}, 7, v3")
    a(f"v_lshlrev_b32 v{T0+1}, 3, v{T0+1}")
    a(f"v_add3_u32 v{T0}, v{T0}, v{T0+1}, s53")
    if Cfg.xpos == 4:
        if Cfg.xdel:
            a(f"s_sleep {Cfg.xdel}")
        xp_load(0)
        xp_load(1)
    if Cfg.gfirst and Cfg.hyb:
        a("s_branch F_fetch")
        a.label("F_early_ok")
        a("s_mov_b32 s46, 2")
        a("s_waitcnt vmcnt(8) lgkmcnt(0)")
        a("s_branch F_early_c")
        a.label("F_early_no")
        a("s_waitcnt vmcnt(0)")
        a.label("F_early_c")
        a("s_mov_b32 s62, 0")
    elif Cfg.gfirst:
        if Cfg.latex:
            a("s_cmp_eq_u32 s46, 3")
            a("s_cbranch_scc1 F_poll")
        a(f"s_waitcnt vmcnt({0 if Cfg.xpos == 4 or Cfg.nsl else 2})")
        a.label("F_xt")
    else:
        v_fetch()
        a("s_mov_b32 s62, 0")
        a("s_waitcnt vmcnt(8)")
    for i in range(4):
        a(f"ds_read_b64 {vr(XP+2*i,2)}, v{T0} offset:{256*i}")
    for i in range(4):
        lgk(a, 3-i)
        for p in range(2):
            a(f"v_lshlrev_b32 v{XF+8*p+i}, 16, v{XP+2*i+p}")
            a(f"v_and_b32 v{XF+8*p+4+i}, 0xffff0000, v{XP+2*i+p}")
    if not Cfg.gfirst:
        a("s_load_dwordx2 s[36:37], s[10:11], s63")
    if not Cfg.gfirst or Cfg.hyb:
        a("s_branch F_stats_c")
    if Cfg.spos:
        a("s_cmp_eq_u32 s3, 7")
        a("s_waitcnt vmcnt(1)")
        a("s_cbranch_scc1 F_stats_c")
    a.label("F_stats_w")
    if not Cfg.nostat:
        a("s_waitcnt vmcnt(0)")
    a.label("F_stats_c")
    a(f"v_xor_b32 v{T0}, s33, v{ST+1}")
    a(f"v_xor_b32 v{T0+1}, s33, v{ST+3}")
    a(f"v_xor_b32 v{T0+2}, s33, v{ST+5}")
    a(f"v_xor_b32 v{T0+3}, s33, v{ST+7}")
    a(f"v_or3_b32 v{T0}, v{T0}, v{T0+1}, v{T0+2}")
    a(f"v_or_b32 v{T0}, v{T0}, v{T0+3}")
    a(f"v_cmp_ne_u32 vcc, 0, v{T0}")
    spin_tail(a, "F_stats", "F_stats_d", sleep=4)
    a.label("F_stats_d")
    if Cfg.fpf:
        free_prefetch()
    if Cfg.pf2:
        a("s_cmp_lt_u32 s2, 224")
        a("s_cbranch_scc1 F_npf2")
        a("s_cmp_gt_u32 s3, 1")
        a("s_cbranch_scc1 F_npf2")
        a("s_getpc_b64 s[6:7]")
        a.label("L_pc2")
        a(f"s_mov_b32 m0, {LDS_BYTES - 256}")
        a(f"v_lshlrev_b32 v{T0+2}, 7, v0")
        a(f"v_min_u32 v{T0+2}, L_end-L_pc2, v{T0+2}")
        a(f"v_mov_b32 v{T0+3}, s7")
        a(f"v_add_co_u32 v{T0+2}, vcc, s6, v{T0+2}")
        a(f"v_addc_co_u32 v{T0+3}, vcc, 0, v{T0+3}, vcc")
        a(f"global_load_lds_dword {vr(T0+2,2)}, off sc1")
        a.label("F_npf2")
    if Cfg.pre:
        a("s_cmp_eq_u32 s46, 2")
        a("s_cbranch_scc1 F_npre")
        flag_req()
        a.label("F_npre")
    stamp(a, 9)
    RC = 16
    a(f"s_mov_b32 s34, {f2u(-LOG2E/8)}")
    a(f"v_mov_b32 v{T0}, {f2u(1e-5/64)}")
    for i in range(4):
        a(f"v_and_b32 v{RC+i}, 0xffff0000, v{ST+2*i}")
        a(f"v_fmamk_f32 v{RC+i}, v{RC+i}, {f2u(1/64)}, v{T0}")
    for i in range(4):
        a(f"v_rsq_f32 v{RC+i}, v{RC+i}")
        a(f"v_lshlrev_b32 v{RC+4+i}, 16, v{ST+2*i}")
    for i in range(0, 4, 2):
        a(f"v_pk_mul_f32 {vr(RC+4+i,2)}, {vr(RC+4+i,2)}, {vr(RC+i,2)} neg_lo:[1,0] neg_hi:[1,0]")
    for i in range(0, 8, 2):
        a(f"v_pk_mul_f32 {vr(ST+i,2)}, {vr(RC+i,2)}, s[34:35] op_sel:[0,0] op_sel_hi:[1,0]")
    for r in range(0, 16, 2):
        i = r % 4
        a(f"v_pk_fma_f32 {vr(TMP+r,2)}, {vr(XF+r,2)}, {vr(ST+i,2)}, {vr(ST+4+i,2)}")
    for r in range(16):
        a(f"v_exp_f32 v{TMP+r}, v{TMP+r}")
        if r % 2 == 1:
            i = (r-1) % 4
            a(f"v_pk_fma_f32 {vr(G+r-1,2)}, {vr(XF+r-1,2)}, {vr(RC+i,2)}, {vr(RC+4+i,2)}")
    if Cfg.midg:
        a("s_mov_b32 s62, 0")
        a("s_cmp_lg_u32 s46, 2")
        a("s_cbranch_scc1 F_poll_w")
        a.label("F_mid")
    for r in range(0, 16, 2):
        a(f"v_pk_add_f32 {vr(TMP+r,2)}, {vr(TMP+r,2)}, 1.0 op_sel_hi:[1,0]")
    for r in range(16):
        a(f"v_rcp_f32 v{TMP+r}, v{TMP+r}")
    for r in range(0, 16, 2):
        a(f"v_pk_mul_f32 {vr(G+r,2)}, {vr(G+r,2)}, {vr(TMP+r,2)}")
    stamp(a, 10)
    if Cfg.gfirst and Cfg.hyb:
        a("s_cmp_eq_u32 s46, 2")
        a("s_cbranch_scc1 F_fetched")
        a("s_mov_b32 s46, 1")
        a.label("F_fetch")
    if Cfg.gfirst:
        v_fetch()
        a.label("F_fetched")
    if Cfg.gate:
        a("s_load_dwordx16 s[68:83], s[42:43], 32768 glc")
        a("s_load_dwordx16 s[84:99], s[42:43], 32832 glc")
    a("s_cmp_lg_u32 s3, 0")
    a("s_cbranch_scc1 F_A")
    a("s_waitcnt vmcnt(0)")
    a(f"v_mfma_f32_32x32x16_f16 {vr(DA,16)}, {vr(CX,4)}, {vr(VX,4)}, 0")
    a(f"v_mfma_f32_32x32x16_f16 {vr(DA,16)}, {vr(CA,4)}, {vr(V,4)}, {vr(DA,16)}")
    a("s_branch F_A2")
    a.label("F_A")
    a("s_waitcnt vmcnt(4)")
    a(f"v_mfma_f32_32x32x16_f16 {vr(DA,16)}, {vr(CA,4)}, {vr(V,4)}, 0")
    a("s_waitcnt vmcnt(0)")
    a.label("F_A2")
    stamp(a, 12)
    a(f"v_mfma_f32_32x32x16_f16 {vr(DA,16)}, {vr(CA+4,4)}, {vr(V+4,4)}, {vr(DA,16)}")
    if Cfg.eh:
        a("s_waitcnt lgkmcnt(0)")
        a("s_and_b32 s34, s36, 0x77")
        a("s_cmp_eq_u32 s34, s47")
        a("s_cbranch_scc1 F_eh")
        a.label("F_eh_r")
    for rho in range(0, 8, 2):
        a(f"v_cvt_pk_f16_f32 v{V+rho}, v{DA+2*rho}, v{DA+2*rho+1}")
        a(f"v_cvt_pk_f16_f32 v{V+rho+1}, v{DA+2*rho+2}, v{DA+2*rho+3}")
        o = L_U//256 + 20*(rho >> 1)
        a(f"ds_write2st64_b32 v{AUW}, v{V+rho}, v{V+rho+1} offset0:{o} offset1:{o+5}")
    if Cfg.sdel:
        a("s_cmp_eq_u32 s62, 0")
        a("s_cbranch_scc1 F_nsd")
        a(f"s_sleep {Cfg.sdel}")
        a.label("F_nsd")
    if Cfg.gate:
        a("s_mov_b32 s62, 0")
        a("s_cmp_eq_u32 s3, 7")
        a("s_cbranch_scc1 F_gate_d")
        a.label("F_gate")
        a("s_waitcnt lgkmcnt(0)")
        a("s_xor_b64 s[68:69], s[68:69], s[40:41]")
        for k in range(1, 16):
            a(f"s_xor_b64 s[{68+2*k}:{69+2*k}], s[{68+2*k}:{69+2*k}], s[40:41]")
            a(f"s_or_b64 s[68:69], s[68:69], s[{68+2*k}:{69+2*k}]")
        a("s_cbranch_scc0 F_gate_d")
        if Cfg.gsl:
            a(f"s_sleep {Cfg.gsl}")
        a("s_load_dwordx16 s[68:83], s[42:43], 32768 glc")
        a("s_load_dwordx16 s[84:99], s[42:43], 32832 glc")
        a("s_add_u32 s62, s62, 1")
        a("s_cmp_lt_u32 s62, 64")
        a("s_cbranch_scc1 F_gate")
        a.label("F_gate_d")
    a("s_waitcnt lgkmcnt(0)")
    a("s_barrier")
    a(f"ds_read_b128 {vr(V,4)}, v{AUR} offset:{L_U}")
    a(f"ds_read_b128 {vr(V+4,4)}, v{AUR} offset:{L_U+16}")
    Y = DA
    lgk(a, 1)
    for x in range(4):
        if x == 2:
            lgk(a, 0)
        a(f"v_mfma_f32_16x16x16_f16 {vr(Y+4*x,4)}, {vr(CB,2)}, {vr(V+2*x,2)}, 0")
    if Cfg.diag == 6:
        a("s_branch L_fin")
    a("s_and_b32 s34, s36, 0x77")
    a("s_cmp_lg_u32 s34, s47")
    a("s_cbranch_scc1 F_noh")
    if Cfg.eh:
        a("s_mul_i32 s50, s33, 28")
        for k in list(range(68, 82)) + list(range(84, 98)):
            a(f"s_sub_u32 s50, s50, s{k}")
        a("s_cmp_eq_u32 s50, 0")
        a("s_cbranch_scc1 F_own" if Cfg.own1 else "s_cbranch_scc1 F_noh")
    if Cfg.n2:
        a("s_load_dwordx16 s[68:83], s[10:11], s48 glc")
        a("s_load_dwordx16 s[84:99], s[10:11], s52 glc")
    a.label("F_noh")
    a("s_cmp_eq_u32 s57, 0")
    a("s_cbranch_scc1 F_zero")
    a.label("F_nz")
    O = 32
    for ih in range(0, 4, 2):
        for x in range(4):
            r = 4*x + ih
            a(f"v_pk_fma_f32 {vr(XF+r,2)}, {vr(Y+r,2)}, {vr(G+r,2)}, {vr(XF+r,2)}")
        for i in (ih, ih+1):
            for p in range(2):
                a(f"v_cvt_pk_bf16_f32 v{O+2*i+p}, v{XF+8*p+i}, v{XF+8*p+4+i}")
            if Cfg.fullout and i == 0:
                a("s_lshr_b32 s34, s57, 1")
                a("s_lshl_b32 s34, s34, 7")
                a("s_and_b32 s35, s57, 1")
                a("s_lshl_b32 s35, s35, 14")
                a("s_add_u32 s34, s34, s35")
                a("s_lshl4_add_u32 s35, s3, s56")
                a("s_lshl_b32 s35, s35, 11")
                a("s_add_u32 s34, s34, s35")
                for q_ in range(4):
                    a(f"s_add_u32 s{64+q_}, s34, {262144*q_}")
            a(f"buffer_store_dwordx2 {vr(O+2*i,2)}, v{AO}, s[20:23], s{64+i} offen {Cfg.out_flag}")
    stamp(a, 13)
    if Cfg.diag == 1:
        a("s_branch L_fin")
    a("s_mov_b32 s62, 0")
    if Cfg.own1:
        a("s_cmp_lg_u32 s16, 0")
        a("s_cbranch_scc1 F_own2")
    a.label("F_res")
    a("s_cmp_eq_u32 s37, s33")
    a("s_cbranch_scc1 F_res_d")
    a("s_load_dwordx2 s[36:37], s[10:11], s63 glc")
    a("s_add_u32 s62, s62, 1")
    a(f"s_cmp_lt_u32 s62, {SPIN_CAP}")
    a("s_waitcnt lgkmcnt(0)")
    a("s_cbranch_scc1 F_res")
    a.label("F_res_d")
    a("s_and_b32 s34, s36, 0x77")
    a("s_cmp_lg_u32 s34, s47")
    a("s_cbranch_scc1 L_fin")
    P, YS, Q, AG, SG, XV, XN, YV, AS = 60, 40, 88, T0, T0+1, T0+2, T0+3, T0+4, T0+5
    AW = T0 + 6
    PL = [8, 12, 24, 28, 48, 52, 56] if Cfg.own1 else [P + 4*k for k in range(7)]

    def gather_addr():
        a(f"v_lshrrev_b32 v{AG}, 3, v2")
        a(f"v_lshlrev_b32 v{AG}, 12, v{AG}")
        a(f"v_and_b32 v{SG}, 0x70, v{ATB}")
        a(f"v_add_u32 v{AG}, v{AG}, v{SG}")

    def gather_req():
        a("s_mov_b32 s34, s49")
        for k in range(7):
            a(f"buffer_load_dwordx4 {vr(PL[k],4)}, v{AG}, s[24:27], s34 offen sc1")
            if k < 6:
                a("s_add_u32 s34, s34, 32768")

    def prep():
        a("s_bfe_u32 s38, s36, 0x20007")
        a("s_bfe_u32 s39, s36, 0x20009")
        a("s_bfe_u32 s51, s36, 0x10003")
        a("s_set_gpr_idx_on s38, 1")
        for x in range(4):
            a(f"v_mov_b32 v{YS+x}, v{Y+4*x}")
        a(f"v_mov_b32 v{YS+4}, v{RC}")
        a(f"v_mov_b32 v{YS+5}, v{RC+4}")
        a("s_set_gpr_idx_off")
        a("s_lshl1_add_u32 s34, s39, s51")
        a("s_lshl_b32 s44, s34, 3")
        a(f"v_add_u32 v{AW}, s53, v{ATB}")
        a(f"ds_write_b128 v{AW}, {vr(YS,4)} offset:2560")
        a(f"v_and_b32 v{AS}, 7, v2")
        a(f"v_lshl_add_u32 v{AS}, v{AS}, 2, v4")
        a("s_lshl4_add_u32 s34, s44, s53")
        a(f"v_lshl_add_u32 v{YV}, v{AS}, 2, s34")
        a(f"ds_read_b32 v{YV}, v{YV} offset:2560")
        a("s_lshl2_add_u32 s34, s38, s39")
        a("s_lshl_b32 s34, s34, 6")
        a("s_mul_i32 s35, s51, 1152")
        a("s_add_u32 s34, s34, s35")
        a("s_add_u32 s34, s34, s53")
        a(f"v_lshlrev_b32 v{AS}, 1, v{AS}")
        a(f"v_add_u32 v{XV}, s34, v{AS}")
        a(f"ds_read_u16 v{XV}, v{XV}")
        a(f"v_readlane_b32 s45, v{YS+4}, s44")
        a(f"v_readlane_b32 s46, v{YS+5}, s44")
    if not Cfg.fin2:
        prep()
    gather_addr()
    if Cfg.eh:
        a("s_cmp_eq_u32 s50, 0")
        a("s_cbranch_scc1 F_n2_d")
    a("s_mul_i32 s50, s33, 28")
    a("s_mov_b32 s62, 0")
    a.label("F_n2")
    a("s_waitcnt lgkmcnt(0)")
    if Cfg.n2:
        for k in list(range(68, 82)) + list(range(85, 98)):
            a(f"s_add_u32 s84, s84, s{k}")
        a("s_cmp_eq_u32 s84, s50")
        a("s_cbranch_scc1 F_n2_d")
        a("s_load_dwordx16 s[68:83], s[10:11], s48 glc")
        a("s_load_dwordx16 s[84:99], s[10:11], s52 glc")
        a("s_add_u32 s62, s62, 1")
        a(f"s_cmp_lt_u32 s62, {SPIN_CAP}")
        a("s_cbranch_scc1 F_n2")
        a.label("F_n2_d")
    if Cfg.stamps and (Cfg.smask >> 15) & 1:
        a("s_memrealtime s[100:101]")
        a("s_waitcnt lgkmcnt(0)")
        a("v_writelane_b32 v127, s100, 2")
    if Cfg.h2d:
        a(f"s_sleep {Cfg.h2d}")
    a("s_mov_b32 s62, 0")
    a.label("F_h2")
    gather_req()
    a("s_cmp_lg_u32 s62, 0")
    a("s_cbranch_scc1 F_h2_w")
    if Cfg.own1:
        a.label("F_own2")
    if Cfg.fin2:
        prep()
    a("s_and_b32 s34, s36, 0xfffff800")
    a("s_ashr_i32 s35, s34, 31")
    a("s_orn2_b32 s35, 0x80000000, s35")
    a("s_xor_b32 s34, s34, s35")
    a(f"v_mov_b32 v{SG}, {f2u(-LOG2E)}")
    a(f"v_mul_f32 v{SG}, s34, v{SG}")
    a(f"v_exp_f32 v{SG}, v{SG}")
    a("s_waitcnt lgkmcnt(0)")
    a(f"v_lshlrev_b32 v{XV}, 16, v{XV}")
    a(f"v_mov_b32 v{XN}, s46")
    a(f"v_add_f32 v{SG}, 1.0, v{SG}")
    a(f"v_rcp_f32 v{SG}, v{SG}")
    a(f"v_fmac_f32 v{XN}, s45, v{XV}")
    a(f"v_mul_f32 v{SG}, {f2u(8.0)}, v{SG}")
    a("s_and_b32 s38, s36, 2047")
    a("s_lshl_b32 s38, s38, 11")
    a("s_lshl_b32 s34, s57, 6")
    a("s_add_u32 s38, s38, s34")

    def h2_req(B):
        a("s_mov_b32 s34, s49")
        for k in range(7):
            a(f"buffer_load_dwordx4 {vr(B+4*k,4)}, v{AG}, s[24:27], s34 offen sc1")
            if k < 6:
                a("s_add_u32 s34, s34, 32768")

    def h2_sum(B, extra):
        R = PL if B == P else [B + 4*k for k in range(7)]
        for k in range(1, 7):
            if extra is not None:
                a(f"s_waitcnt vmcnt({6-k+extra})")
            for x in range(0, 4, 2):
                a(f"v_pk_add_f32 {vr(Q+x,2)}, {vr((R[0] if k == 1 else Q)+x,2)}, {vr(R[k]+x,2)}")
        a(f"v_permlane16_swap_b32 v{Q}, v{Q+1}")
        a(f"v_permlane16_swap_b32 v{Q+2}, v{Q+3}")
        a(f"v_add_f32 v{Q}, v{Q}, v{Q+1}")
        a(f"v_add_f32 v{Q+2}, v{Q+2}, v{Q+3}")
        a(f"v_permlane32_swap_b32 v{Q}, v{Q+2}")
        a(f"v_add_f32 v{Q}, v{Q}, v{Q+2}")
        a(f"v_add_f32_dpp v{Q}, v{Q}, v{Q} row_ror:8 row_mask:0xf bank_mask:0xf")
        a(f"v_cmp_u_f32 vcc, v{Q}, v{Q}")
        a(f"v_fma_f32 v{Q}, v{Q}, v{SG}, v{XN}")
    if Cfg.own1:
        assert not Cfg.pp and Cfg.eh and Cfg.fin2
        a("s_cmp_eq_u32 s16, 0")
        a("s_cbranch_scc1 F_h2_w")
        a("s_waitcnt vmcnt(4)")
        h2_sum(P, None)
        a("s_cbranch_vccz F_h2_d")
        a("s_branch F_h2_x")
    if Cfg.pp:
        P2 = 8
        a.label("F_pp")
        h2_req(P2)
        h2_sum(P, 7)
        a("s_cbranch_vccz F_h2_d")
        h2_req(P)
        h2_sum(P2, 7)
        a("s_cbranch_vccz F_h2_d")
        a("s_add_u32 s62, s62, 1")
        a("s_cmp_lt_u32 s62, 8")
        a("s_cbranch_scc1 F_pp")
    a.label("F_h2_w")
    h2_sum(P, 0)
    a("s_cbranch_vccnz F_h2_x")
    a.label("F_h2_d")
    stamp(a, 15)
    if Cfg.stamps and (Cfg.smask >> 15) & 1:
        a("v_readlane_b32 s34, v127, 0")
        a("s_mul_i32 s35, s62, 100")
        a("s_add_u32 s34, s34, s35")
        a("v_writelane_b32 v127, s34, 1")
    a(f"v_mul_f32 v{Q+1}, {f2u(-LOG2E/8)}, v{Q}")
    a(f"v_exp_f32 v{Q+1}, v{Q+1}")
    a(f"v_mul_f32 v{Q}, v{Q}, v{YV}")
    a(f"v_add_f32 v{Q+1}, 1.0, v{Q+1}")
    a(f"v_rcp_f32 v{Q+1}, v{Q+1}")
    a("s_mov_b32 exec_lo, 0x00ff00ff")
    a("s_mov_b32 exec_hi, 0x00ff00ff")
    a(f"v_fmac_f32 v{XV}, v{Q}, v{Q+1}")
    a(f"v_cvt_pk_bf16_f32 v{XV}, v{XV}, v{XV}")
    a(f"buffer_store_short v{XV}, v{AS}, s[20:23], s38 offen {Cfg.finfl or Cfg.out_flag}")
    a("s_cmp_lg_u32 s57, 0")
    a("s_cbranch_scc1 L_fin")
    a("s_mov_b64 exec, 1")
    a(f"v_mov_b32 v{T0}, 0")
    a(f"v_mov_b32 v{T0+1}, s33")
    a(f"buffer_store_dword v{T0+1}, v{T0}, s[24:27], 0 offen {Cfg.epfl}")
    a("s_branch L_fin")
    if Cfg.latex:
        a.label("F_lx")
        a("s_mov_b32 s46, 2")
        a("s_mov_b32 s62, 0")
        a("s_waitcnt vmcnt(8) lgkmcnt(0)")
        a("s_branch F_xt")
    if Cfg.own1:
        a.label("F_own")
        a("s_cmp_lg_u32 s37, s33")
        a("s_cbranch_scc1 F_noh")
        gather_addr()
        gather_req()
        a("s_mov_b32 s16, 1")
        a("s_branch F_noh")
    if Cfg.eh:
        a.label("F_eh")
        a("s_load_dwordx16 s[68:83], s[10:11], s48 glc")
        a("s_load_dwordx16 s[84:99], s[10:11], s52 glc")
        a("s_branch F_eh_r")
    a.label("F_h2_x")
    PR = [PL[k] + x for k in range(7) for x in range(4)]
    a(f"v_max3_u32 v{Q+1}, v{PR[0]}, v{PR[1]}, v{PR[2]}")
    for r in range(3, 27, 2):
        a(f"v_max3_u32 v{Q+1}, v{Q+1}, v{PR[r]}, v{PR[r+1]}")
    a(f"v_max_u32 v{Q+1}, v{Q+1}, v{PR[27]}")
    a(f"v_cmp_eq_u32 vcc, -1, v{Q+1}")
    spin_tail(a, "F_h2", "F_h2_d", sleep=Cfg.h2s)
    a("s_branch F_h2_d")
    a.label("F_zero")
    a("s_mov_b32 exec_lo, 0x01010101")
    a("s_mov_b32 exec_hi, 0x01010101")
    a("s_nop 2")
    for i in range(4):
        a(f"v_mov_b32 v{Y+i}, 0")
    a("s_mov_b64 exec, -1")
    a("s_branch F_nz")
    a.label("F_second")
    a(f"ds_read_b128 {vr(TWC,4)}, v{ATB} offset:{L_T+10240}")
    a(f"ds_read_b128 {vr(TWS,4)}, v{ATB} offset:{L_T+11264}")
    a("s_mov_b32 s46, 0")
    if Cfg.vfull:
        a(f"s_mul_i32 s34, s44, {2*(VU if Cfg.vfull == 2 else VB)}")
        a(f"s_add_u32 s50, s50, {VU if Cfg.vfull == 2 else VB}")
        a("s_sub_u32 s50, s50, s34")
    else:
        a("s_xor_b32 s50, s50, 64")
    a(f"v_add_u32 v{T0+5}, 1, v3")
    a(f"v_bfe_i32 v{T0+5}, v{T0+5}, 4, 1")
    a(f"v_and_b32 v{T0+5}, {f2u(-32.0)}, v{T0+5}")
    a(f"v_xor_b32 v{K32}, v{T0+5}, v{K32}")
    for p in range(8):
        a(f"v_xor_b32 v{F1C+p}, 0x80000000, v{F1C+p}")
    a(f"v_mul_f32 v{CV}, s70, v{K32}")
    a(f"v_fmac_f32 v{CV}, v{M}, v{K32}")
    s1(DA_, PA)
    s1(DB_, PB)
    for r in range(8, 16, 2):
        a(f"v_pk_mul_f32 {vr(DA_+r,2)}, {vr(DA_+r,2)}, s[54:55] op_sel:[0,0] op_sel_hi:[1,0]")
    a("s_waitcnt lgkmcnt(0)")
    a("s_barrier")
    a.settle()
    a("s_branch F_pass")
    a.label("F_key")
    a(f"v_mov_b32 v{T0+7}, s33")
    a(f"v_lshlrev_b32 v{T0}, 11, v2")
    if Cfg.kgrp:
        a("s_and_b32 s35, s2, 7")
        a("s_lshl_b32 s35, s35, 8")
        a("s_andn2_b32 s62, s2, 7")
        a("s_add_u32 s35, s35, s62")
        a(f"s_add_u32 s35, s35, {WS_KY}")
    else:
        a(f"s_lshl3_add_u32 s35, s2, {WS_KY}")
    km = (1 << (Cfg.nrep + Cfg.ru)) - 1
    a(f"s_mov_b32 exec_lo, {hex(km & 0xffffffff)}")
    a(f"s_mov_b32 exec_hi, {hex(km >> 32)}")
    a(f"buffer_store_dwordx2 {vr(T0+6,2)}, v{T0}, s[24:27], s35 offen sc1")
    a("s_mov_b64 exec, -1")
    stamp(a, 5)
    if Cfg.e2:
        a("s_mov_b32 s71, 1")
        a("s_branch F_nokey")
        a.label("F_wkey")
        a("s_waitcnt vmcnt(2)")
        a("s_branch F_wkey_r")
        return
    if not Cfg.fastk:
        a("s_waitcnt vmcnt(2)")
    a("s_branch F_nokey")


def moe_role(a):
    a.label("M_entry")
    if Cfg.diag == 1:
        a("s_endpgm")
    a("s_sub_u32 s28, s2, 256")
    moe_unit(a)
    if Cfg.prio:
        a(f"s_setprio {Cfg.prio}")
    a(f"v_mov_b32 v7, {M_F}")
    a(f"s_mov_b32 s26, {WS_BYTES}")
    a("s_mov_b32 s27, 0x20000")
    if not Cfg.lfirst:
        a("s_cmp_eq_u32 s3, 0")
        a("s_cbranch_scc1 M_loader")
    a("v_mov_b32 v8, 0")
    a("v_mov_b32 v9, 0")
    a("v_mov_b32 v10, 0")
    a("v_mov_b32 v11, 0")
    a("v_mov_b32 v114, 0")
    a("ds_write_b128 v7, v[8:11]")
    a("ds_write_b128 v7, v[8:11] offset:16")
    a("ds_write_b128 v7, v[8:11] offset:32")
    a("v_mov_b32 v8, 0x3f803f80")
    a("v_mov_b32 v9, 0x3f803f80")
    a("v_lshlrev_b32 v10, 3, v2")
    a(f"ds_write_b64 v10, v[8:9] offset:{M_ONE}")
    a("s_waitcnt lgkmcnt(0)")
    stamp(a, 1)
    a("s_load_dword s16, s[10:11], 0")
    a("s_mul_i32 s12, s3, 320")
    a("s_min_u32 s12, s12, 2048")
    a(f"s_add_u32 s18, s12, {WS_KY - 320}")
    a(f"s_and_b32 s13, s28, {Cfg.nrep-1}")
    a("s_lshl_b32 s13, s13, 11")
    a("s_add_u32 s12, s12, s13")
    a(f"s_add_u32 s12, s12, {WS_KY - 320}")
    a("s_add_u32 s12, s10, s12")
    a("s_addc_u32 s13, s11, 0")
    a("s_barrier")
    a("s_waitcnt lgkmcnt(0)")
    a("s_mul_i32 s16, s16, 0x9e3779b1")
    a("s_add_u32 s16, s16, 0x7f4a7c15")
    a("s_mul_i32 s15, s16, 40")
    a("s_mov_b32 s17, 0")
    if Cfg.kwarm:
        a("s_mul_i32 s14, s28, 7")
        a("s_add_u32 s14, s14, s3")
        a("s_lshl_b32 s14, s14, 6")
        a(f"s_add_u32 s14, s14, {WS_RES - 64}")
        a(f"s_sleep {Cfg.kwarm}")
        a("s_load_dword s19, s[10:11], s14 glc")
    if Cfg.sfloor:
        a(f"s_sleep {Cfg.sfloor}")
    if Cfg.tlbw:
        a("s_cmp_lt_u32 s3, 6")
        a("s_cbranch_scc1 M_ntw")
        if Cfg.tlbw == 1:
            a("s_cmp_eq_u32 s3, 6")
            a("s_cselect_b32 s20, s40, s42")
            a("s_cselect_b32 s21, s41, s43")
            for k in range(4):
                a(f"s_mov_b32 s34, {k << 21}")
                a(f"s_load_dword s{56+k}, s[20:21], s34")
            a("s_mov_b32 s34, 0x200000")
            a("s_load_dword s60, s[8:9], 0")
            a("s_load_dword s61, s[8:9], s34")
        else:
            a("s_and_b32 s34, s28, 7")
            a(f"s_mul_i32 s34, s34, {128*7168}")
            a("s_lshr_b32 s35, s28, 3")
            a("s_xor_b32 s35, s35, 2")
            a("s_lshl_b32 s35, s35, 8")
            a("s_add_u32 s34, s34, s35")
            a("s_cmp_eq_u32 s3, 6")
            a("s_cbranch_scc0 M_tw7")
            for k in range(15):
                a(f"s_load_dword s{40+16+k}, s[40:41], s34")
                a(f"s_add_u32 s34, s34, {65536 if k < 13 else 127*7168 - 13*65536}")
            a("s_branch M_ntw")
            a.label("M_tw7")
            a("s_lshl_b32 s34, s29, 17")
            for k in range(3):
                a(f"s_load_dword s{56+k}, s[42:43], s34")
                a(f"s_add_u32 s34, s34, {65536 if k < 1 else 65535 - 2047}")
            a("s_mov_b32 s34, 0x200000")
            a("s_load_dword s60, s[8:9], 0")
            a("s_load_dword s61, s[8:9], s34")
        a.label("M_ntw")
    a("s_sub_u32 s31, s3, 2")
    a("s_cmp_lt_u32 s31, 4")
    if Cfg.sfirst == 3:
        a("s_cselect_b32 s9, 0, 1")
    a("s_cbranch_scc1 M_pre")
    if Cfg.wsl:
        lds_wait(a, "M_pg0", M_F, Cfg.wsn, 8, sleep=Cfg.wsl)
    if Cfg.pk0:
        lds_wait(a, "M_pg", M_F, Cfg.pk0, 8)
    a("s_branch M_scan0")

    def comp_addr():
        a("s_lshr_b32 s44, s28, 3")
        a("s_lshr_b32 s34, s31, 1")
        a("s_lshl1_add_u32 s44, s44, s34")
        a("s_lshl4_add_u32 s44, s44, s46")
        a("s_and_b32 s34, s31, 1")
        a("s_lshl1_add_u32 s44, s44, s34")
        a("s_lshl_b32 s44, s44, 7")
        a("v_lshrrev_b32 v114, 5, v2")
        a("v_mul_u32_u24 v114, 0x4800, v114")
        a("v_xor_b32 v114, s44, v114")
        a("v_and_b32 v115, 31, v2")
        a("v_lshl_add_u32 v114, v115, 2, v114")
        a(f"s_mov_b32 s44, {WS_H1}")
        a("s_lshl2_add_u32 s45, s29, s30")
        a("s_lshl_b32 s45, s45, 10")
        a("s_lshl_b32 s34, s31, 8")
        a("s_add_u32 s45, s45, s34")
        a(f"s_add_u32 s45, s45, {WS_H2}")
        a("s_lshl_b32 s34, s31, 6")
        a("v_lshl_add_u32 v113, v2, 2, s34")
    a.label("M_pre")
    if Cfg.trim == 2:
        a("s_and_b32 s46, s28, 7")
        a("s_lshl2_add_u32 s6, s46, s31")
        a("s_lshl_b32 s6, s6, 6")
        comp_addr()
        a("s_mov_b32 s7, s45")
    BG, BU, AX, DG = 16, 48, 80, 96
    a("v_bfe_u32 v8, v2, 2, 2")
    a("v_lshl_add_u32 v9, v4, 2, v8")
    a("v_and_b32 v10, 7, v9")
    a("v_lshlrev_b32 v10, 1, v10")
    a("v_bfe_u32 v11, v2, 1, 1")
    a("s_lshl_b32 s34, s31, 2")
    a("v_or_b32 v12, s34, v11")
    a("v_xor_b32 v12, v12, v10")
    a("v_lshlrev_b32 v12, 4, v12")
    a("v_lshl_add_u32 v12, v9, 8, v12")
    a("v_and_b32 v13, 1, v2")
    a("v_lshl_add_u32 v12, v13, 3, v12")
    a("v_xor_b32 v126, 32, v12")
    a("s_lshl_b32 s34, s31, 3")
    a("v_or_b32 v120, s34, v11")
    a("v_xor_b32 v120, v120, v10")
    a("v_lshlrev_b32 v120, 4, v120")
    a("v_lshl_add_u32 v120, v9, 9, v120")
    a("v_lshl_add_u32 v120, v13, 3, v120")
    for t in range(1, 4):
        a(f"v_xor_b32 v{120+t}, {32*t}, v120")
    a("v_lshlrev_b32 v14, 4, v4")
    a("v_and_b32 v15, 1, v2")
    a("v_lshl_add_u32 v15, v15, 9, v14")

    def gate_reads(sfx=""):
        lds_wait(a, "M_wg" + sfx, M_F, 8, 8)
        stamp(a, 6)
        for n in range(8):
            for u2 in range(2):
                a(f"ds_read_b64_tr_b16 {vr(BG+4*n+2*u2,2)}, v{126 if n >= 4 else 12} offset:{M_G+8192*(n % 4)+4096*u2}")
                if n == 7 and u2 == 0:
                    a("s_waitcnt lgkmcnt(4)")
        a("v_mov_b32 v8, 1")
        a("s_waitcnt lgkmcnt(0)")
        a("s_mov_b64 exec, 1")
        a("ds_add_u32 v7, v8 offset:4")
        a("s_mov_b64 exec, -1")

    def gate_step(ns):
        for n in ns:
            for t in range(2):
                for u2 in range(2):
                    a(f"ds_read_b64_tr_b16 {vr(BG+16*t+4*n+2*u2,2)}, v{126 if t else 12} offset:{M_G+8192*n+4096*u2}")
    if Cfg.gprog:
        assert Cfg.scan3 and not Cfg.sfirst
        if Cfg.wsl:
            lds_wait(a, "M_wg0", M_F, min(Cfg.wsn, 6), 8, sleep=Cfg.wsl)
        lds_wait(a, "M_wg6", M_F, 6, 8)
        gate_step((0, 1, 2))
        a("v_mov_b32 v8, 1")
        a("s_waitcnt lgkmcnt(0)")
        a("s_mov_b64 exec, 1")
        a("ds_add_u32 v7, v8 offset:4")
        a("s_mov_b64 exec, -1")
        lds_wait(a, "M_wg", M_F, max(8, Cfg.pk0), 8)
        stamp(a, 6)
        gate_step((3,))
    elif Cfg.sfirst:
        lds_wait(a, "M_pg2", M_F, Cfg.pk0, 8)
    else:
        gate_reads()
    a.label("M_scan0")
    if Cfg.sdelay:
        a(f"s_sleep {Cfg.sdelay}")
    if Cfg.scan3:
        a("s_lshl_b32 s15, s16, 3")
        a("s_mov_b32 s19, 0")
        a("v_mov_b32 v10, 0")
        for k in range(5):
            a(f"s_load_dwordx16 s[{20+16*k}:{35+16*k}], s[12:13], {64*k}")
        if Cfg.gprog:
            a("v_mov_b32 v8, 1")
            a("s_mov_b64 exec, 1")
            a("s_waitcnt lgkmcnt(0)")
            a("ds_add_u32 v7, v8 offset:24")
            a("s_mov_b64 exec, -1")
            a("s_branch M_scan1")
        a.label("M_scan")
        a("s_waitcnt lgkmcnt(0)")
        a.label("M_scan1")
        for k in range(5):
            b = 20 + 16*k
            a(f"s_add_u32 s14, s{b+1}, s{b+3}")
            for e in range(2, 8):
                a(f"s_add_u32 s14, s14, s{b+2*e+1}")
            a("s_cmp_lg_u32 s14, s15")
            a(f"s_cbranch_scc1 M_sec{k}")
            for e in range(8):
                a(f"v_max_u32 v10, s{b+2*e}, v10")
            a(f"s_bitset1_b32 s19, {k}")
            a(f"s_mov_b32 s{b+1}, 0")
            a.label(f"M_sec{k}")
        a("s_cmp_eq_u32 s19, 31")
        a("s_cbranch_scc1 M_scan_d")
        if Cfg.sfirst == 3:
            a("s_cmp_lg_u32 s9, 0")
            a("s_cbranch_scc1 M_gskip")
            a("s_mov_b32 s9, 1")
            gate_reads("b")
            a.label("M_gskip")
        if Cfg.ru:
            a("s_add_u32 s17, s17, 1")
            a(f"s_and_b32 s14, s2, {Cfg.ru-1}")
            a("s_lshl_b32 s14, s14, 11")
            a("s_add_u32 s14, s14, s18")
            a(f"s_add_u32 s14, s14, {Cfg.nrep*2048}")
            a("s_add_u32 s12, s10, s14")
            a("s_addc_u32 s13, s11, 0")
            if Cfg.ssl:
                a(f"s_sleep {Cfg.ssl}")
            for k in range(5):
                a(f"s_bitcmp1_b32 s19, {k}")
                a(f"s_cbranch_scc1 M_rl{k}")
                a(f"s_load_dwordx16 s[{20+16*k}:{35+16*k}], s[12:13], {64*k} glc")
                a.label(f"M_rl{k}")
        else:
            a("s_add_u32 s17, s17, 1")
            a("s_add_u32 s14, s2, s17")
            a(f"s_and_b32 s14, s14, {Cfg.nrep-1}")
            a("s_lshl_b32 s14, s14, 11")
            a("s_add_u32 s14, s14, s18")
            a("s_add_u32 s12, s10, s14")
            a("s_addc_u32 s13, s11, 0")
            if Cfg.ssl:
                a(f"s_sleep {Cfg.ssl}")
            a(f"s_cmp_ge_u32 s17, {Cfg.nrep}")
            a("s_cbranch_scc1 M_scan_u")
            for g_, nm in (("", "a"), (" glc", "b")):
                if g_:
                    a.label("M_scan_u")
                for k in range(5):
                    a(f"s_bitcmp1_b32 s19, {k}")
                    a(f"s_cbranch_scc1 M_rl{nm}{k}")
                    a(f"s_load_dwordx16 s[{20+16*k}:{35+16*k}], s[12:13], {64*k}{g_}")
                    a.label(f"M_rl{nm}{k}")
                if not g_:
                    a("s_branch M_scan")
        a(f"s_cmp_lt_u32 s17, {SPIN_CAP}")
        a("s_cbranch_scc1 M_scan")
        a("s_waitcnt lgkmcnt(0)")
    else:
        a.label("M_scan")
        if Cfg.scan2:
            a(f"s_cmp_ge_u32 s17, {Cfg.nrep}")
            a("s_cbranch_scc1 M_scan_u")
            for k in range(5):
                a(f"s_load_dwordx16 s[{20+16*k}:{35+16*k}], s[12:13], {64*k}")
            a.label("M_scan_w")
        else:
            for k in range(5):
                a(f"s_load_dwordx16 s[{20+16*k}:{35+16*k}], s[12:13], {64*k} glc")
        a("v_mov_b32 v10, 0")
        a("s_mov_b32 s14, 0")
        a("s_waitcnt lgkmcnt(0)")
        for k in range(40):
            a(f"s_add_u32 s14, s14, s{21+2*k}")
            a(f"v_max_u32 v10, s{20+2*k}, v10")
        a("s_cmp_eq_u32 s14, s15")
        a("s_cbranch_scc1 M_scan_d")
        a("s_add_u32 s17, s17, 1")
        if Cfg.scan2:
            a("s_add_u32 s14, s2, s17")
            a(f"s_and_b32 s14, s14, {Cfg.nrep-1}")
            a("s_lshl_b32 s14, s14, 11")
            a("s_add_u32 s14, s14, s18")
            a("s_add_u32 s12, s10, s14")
            a("s_addc_u32 s13, s11, 0")
            a("s_sleep 4")
        a(f"s_cmp_lt_u32 s17, {SPIN_CAP}")
        a("s_cbranch_scc1 M_scan")
        if Cfg.scan2:
            a("s_branch M_scan_d")
            a.label("M_scan_u")
            for k in range(5):
                a(f"s_load_dwordx16 s[{20+16*k}:{35+16*k}], s[12:13], {64*k} glc")
            a("s_branch M_scan_w")
    a.label("M_scan_d")
    a("v_mov_b32 v8, 1")
    a("s_mov_b64 exec, 1")
    a("ds_max_u32 v7, v10 offset:16")
    a("ds_add_u32 v7, v8 offset:20")
    a("s_mov_b64 exec, -1")
    stamp(a, 10)
    if Cfg.trim == 2:
        a("s_sub_u32 s31, s3, 2")
        a("s_cmp_lt_u32 s31, 4")
        a("s_cbranch_scc1 M_comp")
    a("s_mov_b32 s33, s16")
    a("s_sub_u32 s28, s2, 256")
    moe_unit(a)
    a("s_mov_b64 s[24:25], s[10:11]")
    a(f"s_mov_b32 s26, {WS_BYTES}")
    a("s_mov_b32 s27, 0x20000")
    if Cfg.gate:
        a("s_cmp_eq_u32 s3, 7")
        a("s_cbranch_scc1 M_gate")
    if Cfg.agent:
        a(f"s_cmp_ge_u32 s3, {8 - Cfg.agent}")
        a("s_cbranch_scc1 M_agent")
    a("s_cmp_ge_u32 s3, 6")
    a("s_cbranch_scc1 L_fin")
    a("s_cmp_eq_u32 s3, 1")
    if Cfg.trim == 2:
        a("s_branch M_poller")
    else:
        a("s_cbranch_scc1 M_poller")
        a("s_sub_u32 s31, s3, 2")
        a("s_branch M_comp")
    if Cfg.gate:
        assert Cfg.brep == 32
        a.label("M_gate")
        a("v_lshlrev_b32 v10, 10, v2")
        a("v_mov_b32 v11, s33")
        a(f"s_lshl2_add_u32 s34, s28, {WS_KB + 32768}")
        lds_wait(a, "M_gw", M_F, Cfg.gate, 8)
        a("s_mov_b32 exec_hi, 0")
        a("buffer_store_dword v11, v10, s[24:27], s34 offen sc1")
        a("s_barrier")
        a("s_branch L_fin")
    if Cfg.agent:
        a.label("M_agent")
        a("s_and_b32 s47, s28, 7")
        a("s_lshl_b32 s47, s47, 8")
        a("s_mov_b32 s49, 0")
        a("s_mov_b32 s62, 0")
        a.label("M_ag")
        a("ds_read_b64 v[8:9], v7 offset:16")
        a("s_waitcnt lgkmcnt(0)")
        a("v_readfirstlane_b32 s48, v8")
        a("v_readfirstlane_b32 s46, v9")
        a("s_cmp_ge_u32 s46, 7")
        a("s_cbranch_scc1 M_rep" if Cfg.ldg else "s_cbranch_scc1 L_fin")
        a("s_cmp_eq_u32 s48, s49")
        a("s_cbranch_scc1 M_ag_n")
        a("s_mov_b32 s49, s48")
        a("s_and_b32 s34, s48, 2047")
        a("s_lshl_b32 s34, s34, 11")
        a("s_add_u32 s34, s34, s47")
        for k in range(4):
            a(f"s_load_dword s{54+k}, s[4:5], s34")
            if k < 3:
                a("s_add_u32 s34, s34, 64")
        stat_req(a)
        a.label("M_ag_n")
        a("s_add_u32 s62, s62, 1")
        a(f"s_cmp_lt_u32 s62, {5*SPIN_CAP}")
        a("s_cbranch_scc1 M_ag")
        a("s_branch L_fin")
        if Cfg.ldg:
            a.label("M_rep")
            a("s_cmp_lg_u32 s3, 7")
            a("s_cbranch_scc1 L_fin")
            lds_wait(a, "M_repw", M_F+28, 1, 8, sleep=2)
            a("v_mov_b32 v10, s33")
            a("v_mov_b32 v11, 0")
            a("s_sub_u32 s35, s2, 256")
            a("s_lshl_b32 s35, s35, 7")
            a(f"s_add_u32 s35, s35, {WS_LD}")
            a("s_mov_b64 exec, 1")
            a("buffer_store_dword v10, v11, s[24:27], s35 offen sc1")
            a("s_mov_b64 exec, -1")
            a("s_branch L_fin")
    if Cfg.lfirst:
        a.label("M_loader2")
        if Cfg.lprof:
            a("v_mov_b32 v126, 0")
            a("v_mov_b32 v125, 0")
        a(f"v_mov_b32 v7, {M_F}")
        a(f"s_mov_b32 s26, {WS_BYTES}")
        a("s_mov_b32 s27, 0x20000")
        a("v_xor_b32 v18, 128, v8")
        a("s_lshr_b32 s29, s28, 2")
        a("s_and_b32 s30, s28, 3")
        if Cfg.dxor:
            a("s_xor_b32 s30, s30, 1")
    else:
        a.label("M_loader")
        if Cfg.lprio != Cfg.prio:
            a(f"s_setprio {Cfg.lprio}")
        a("v_mul_u32_u24 v8, 7168, v4")
        a("v_lshlrev_b32 v9, 1, v4")
        a("v_xor_b32 v9, v9, v3")
        a("v_lshl_add_u32 v8, v9, 4, v8")
        a("v_xor_b32 v18, 128, v8")
        a("s_and_b32 s34, s28, 7")
        a(f"s_mul_i32 s34, s34, {128*7168}")
        a("s_lshr_b32 s35, s28, 3")
        a("s_lshl_b32 s35, s35, 8")
        a("s_add_u32 s34, s34, s35")
        a("s_mov_b32 s14, 7340032")
        a("s_mov_b32 s15, 0x20000")
        a(f"s_mov_b32 s46, {M_G}")
        a("s_mov_b32 s45, s34")
        a("s_waitcnt lgkmcnt(0)")
        a("s_mov_b64 s[12:13], s[38:39]")
        stamp(a, 2)
        for n in range(4):
            a("s_mov_b32 m0, s46")
            a("s_add_u32 s46, s46, 1024")
            a(f"buffer_load_dwordx4 v{18 if n % 2 else 8}, s[12:15], s45 offen {Cfg.wfl} lds")
            a(f"s_add_u32 s45, s45, {4*7168}")
    a("s_mov_b64 s[24:25], s[10:11]")
    srd(a, 16, 40, 7340032)
    first = Cfg.thr//4 if Cfg.lfirst else 1
    cuts = sorted(set([first, 8, 16, 24] + [g for g in (Cfg.g2, Cfg.g3) if first < g < 24] + ([22] if Cfg.gprog else []) + ([Cfg.ldg] if Cfg.ldg else [])))
    a(f"s_mov_b32 s47, {cuts[0]}")
    a("s_barrier")
    for g0, g1 in zip(cuts, cuts[1:]):
        mat = g0 // 8
        thr = Cfg.thr3 if g0 >= Cfg.g3 else Cfg.thr2 if g0 >= Cfg.g2 else Cfg.thr
        assert thr % 4 == 0
        if g0 == 8:
            srd(a, 20, 42, 7340032)
            a("v_lshrrev_b32 v9, 5, v2")
            a("v_and_b32 v10, 31, v2")
            for n in range(4):
                a(f"v_add_u32 v11, {2*n}, v9")
                a(f"v_lshlrev_b32 v{12+n}, 1, v11")
                a(f"v_xor_b32 v{12+n}, v{12+n}, v10")
                a(f"v_lshlrev_b32 v{12+n}, 4, v{12+n}")
                a(f"v_lshl_add_u32 v{12+n}, v11, 11, v{12+n}")
            a("s_lshl_b32 s44, s29, 17")
            a("s_lshl_b32 s35, s30, 9")
            a("s_add_u32 s44, s44, s35")
        if g0 == 16:
            if Cfg.drain < Cfg.thr2:
                a("s_mov_b64 exec, 1")
                for left in range(Cfg.thr2//4 - 1, Cfg.drain//4 - 1, -1):
                    a(f"v_mov_b32 v16, {16-left}")
                    a(f"s_waitcnt vmcnt({4*left})")
                    a("ds_max_i32 v7, v16")
                a("s_mov_b64 exec, -1")
            lds_wait(a, "M_wgc", M_F+4, 4, 20)
        if g0 == 22 and Cfg.gprog:
            lds_wait(a, "M_wgd", M_F+24, 7, 20)
        if Cfg.ldg and g0 == Cfg.ldg:
            a("v_mov_b32 v16, 1")
            a("ds_write_b32 v7, v16 offset:28")
        if g0 % 8 == 0:
            stamp(a, 2 + mat)
            if mat == 2 and Cfg.skipg:
                a(f"s_mov_b32 s49, {24 - Cfg.skipg}")
            a(f"s_mov_b32 s46, {M_U if mat == 1 else M_G}")
            if mat < 2:
                a("s_xor_b32 s45, s34, 512")
        if g0 == Cfg.g2 and Cfg.ramp:
            a(f"s_sleep {Cfg.ramp}")
        a.label(f"M_ld{g0}")
        if Cfg.tlo and mat == 2:
            a("s_mov_b32 s62, 0")
            a.label(f"M_tl{g0}")
            a(f"ds_read_b32 v20, v7 offset:{Cfg.tev}")
            a("s_getreg_b32 s35, hwreg(HW_REG_IB_STS)")
            a("s_bfe_u32 s48, s35, 0x20016")
            a("s_and_b32 s35, s35, 15")
            a("s_lshl4_add_u32 s48, s48, s35")
            a("s_add_u32 s35, s48, 3")
            a("s_lshr_b32 s35, s35, 2")
            a("s_sub_u32 s35, s47, s35")
            a("v_mov_b32 v16, s35")
            a("s_mov_b64 exec, 1")
            a("ds_max_i32 v7, v16")
            a("s_mov_b64 exec, -1")
            a(f"s_cmp_le_u32 s48, {Cfg.tlo}")
            a(f"s_cbranch_scc1 M_tl{g0}_d")
            a("s_waitcnt lgkmcnt(0)")
            a(f"v_cmp_gt_u32 vcc, {Cfg.tcnt}, v20")
            spin_tail(a, f"M_tl{g0}", f"M_tl{g0}_d", sleep=0, glob=False)
            a.label(f"M_tl{g0}_d")
        for n in range(4):
            a("s_mov_b32 m0, s46")
            a("s_add_u32 s46, s46, 1024")
            if mat < 2:
                a(f"buffer_load_dwordx4 v{18 if n % 2 else 8}, s[{12+4*mat}:{15+4*mat}], s45 offen {Cfg.wfl} lds")
                a(f"s_add_u32 s45, s45, {4*7168}")
            else:
                a(f"buffer_load_dwordx4 v{12+n}, s[20:23], s44 offen {Cfg.wfl} lds")
            a(f"s_waitcnt vmcnt({thr})")
        if Cfg.thrn and g0 >= Cfg.g2:
            a("s_bitcmp1_b32 s28, 3")
            a(f"s_cbranch_scc1 M_tn{g0}")
            a(f"s_waitcnt vmcnt({Cfg.thrn})")
            a.label(f"M_tn{g0}")
        if mat == 2:
            a("s_add_u32 s44, s44, 16384")
        a("s_add_u32 s47, s47, 1")
        if Cfg.exact:
            a("s_getreg_b32 s35, hwreg(HW_REG_IB_STS)")
            a("s_bfe_u32 s48, s35, 0x20016")
            a("s_and_b32 s35, s35, 15")
            a("s_lshl4_add_u32 s35, s48, s35")
            a("s_add_u32 s35, s35, 3")
            a("s_lshr_b32 s35, s35, 2")
            a("s_sub_u32 s35, s47, s35")
        else:
            a(f"s_sub_u32 s35, s47, {thr//4}")
        a("v_mov_b32 v16, s35")
        a("s_mov_b64 exec, 1")
        a("ds_max_i32 v7, v16")
        a("s_mov_b64 exec, -1")
        if Cfg.lprof:
            a("s_memrealtime s[100:101]")
            a("s_waitcnt lgkmcnt(0)")
            a("s_mov_b32 m0, s47")
            a("s_nop 0")
            a("v_writelane_b32 v126, s100, m0")
            a("s_max_i32 s48, s35, 0")
            a("s_mov_b32 m0, s48")
            a("s_nop 0")
            a("v_writelane_b32 v125, s100, m0")
        a(f"s_cmp_lt_u32 s47, {g1 - (Cfg.skipg if g1 == 24 else 0)}")
        a(f"s_cbranch_scc1 M_ld{g0}")
    if Cfg.ldg == 24:
        a("v_mov_b32 v16, 1")
        a("ds_write_b32 v7, v16 offset:28")
    if Cfg.hpf:
        a("s_sub_u32 s44, s44, 32768")
        a(f"s_xor_b32 s44, s44, {2 << 17}")
        a(f"s_mov_b32 m0, {LDS_BYTES - 256}")
        a("v_lshrrev_b32 v9, 2, v2")
        a("v_and_b32 v10, 3, v2")
        a("v_lshlrev_b32 v10, 7, v10")
        a("v_lshl_add_u32 v10, v9, 11, v10")
        for k in range(Cfg.hpf):
            a("buffer_load_dword v10, s[20:23], s44 offen lds")
            a("s_sub_u32 s44, s44, 32768")
    a("s_mov_b64 exec, 1")
    lstamp(a, 6)
    for left in range(thr//4 - 1, 0, -1):
        a(f"v_mov_b32 v16, {24-left - (Cfg.skipg if left > 3 else 0)}")
        a(f"s_waitcnt vmcnt({4*left + Cfg.hpf})")
        a("ds_max_i32 v7, v16")
        lstamp(a, 13-left)
        if Cfg.lprof:
            a("s_memrealtime s[100:101]")
            a("s_waitcnt lgkmcnt(0)")
            a(f"v_writelane_b32 v126, s100, {32+24-left}")
    a("v_mov_b32 v16, 24")
    a(f"s_waitcnt vmcnt({Cfg.hpf})")
    a("ds_write_b32 v7, v16")
    stamp(a, 5)
    if Cfg.lprof:
        a("s_memrealtime s[100:101]")
        a("s_waitcnt lgkmcnt(0)")
        a("v_writelane_b32 v126, s100, 56")
        a("s_mov_b64 exec, -1")
        a("s_sub_u32 s34, s2, 256")
        a("s_lshl_b32 s34, s34, 9")
        a(f"s_add_u32 s34, s34, {WS_TS + (1 << 20)}")
        a("v_lshlrev_b32 v24, 2, v2")
        a("buffer_store_dword v126, v24, s[24:27], s34 offen")
        a("buffer_store_dword v125, v24, s[24:27], s34 offen offset:256")
    a("s_waitcnt lgkmcnt(0)")
    a("s_barrier")
    a("s_branch L_fin")
    a.label("M_comp")
    if Cfg.sfirst == 1:
        gate_reads()
    if Cfg.sfirst == 3:
        a("s_cmp_lg_u32 s9, 0")
        a("s_cbranch_scc1 M_gdone")
        gate_reads()
        a.label("M_gdone")
    if Cfg.trim != 2:
        a("s_and_b32 s46, s28, 7")
        a("s_lshl2_add_u32 s47, s46, s31")
        a("s_lshl_b32 s47, s47, 6")

    if Cfg.trim == 1:
        comp_addr()
    key_wait(a, "M_box")
    stamp(a, 8)
    a("s_and_b32 s34, s48, 2047")
    a("s_lshl_b32 s34, s34, 11")
    a(f"s_add_u32 s34, s34, {'s6' if Cfg.trim == 2 else 's47'}")
    a("s_load_dwordx16 s[64:79], s[4:5], s34")
    if not Cfg.pstat:
        stat_req(a)
    if not Cfg.trim:
        comp_addr()
    if Cfg.trim == 2:
        a("s_mov_b32 s33, s16")
        a("s_mov_b64 s[24:25], s[10:11]")
        a(f"s_mov_b32 s26, {WS_BYTES}")
        a("s_mov_b32 s27, 0x20000")
        a(f"s_mov_b32 s44, {WS_H1}")
        a("s_mov_b32 s45, s7")
    a("v_mov_b32 v8, 1")
    a("s_waitcnt lgkmcnt(0)")
    for dl in range(16):
        lam = dl >> 1
        lane = 16*(lam >> 3) + 4*(lam & 3) + 2*((lam >> 2) & 1) + (dl & 1)
        a(f"v_writelane_b32 v11, s{64+dl}, {lane}")
    a("s_mov_b64 exec, 0xffff")
    a(f"ds_write_b32 v113, v11 offset:{M_XS}")
    a("s_mov_b64 exec, 1")
    a("ds_add_u32 v7, v8 offset:8")
    a("s_mov_b64 exec, -1")
    stamp(a, 9)
    if Cfg.sfirst == 2:
        gate_reads()
    if not Cfg.pstat and not Cfg.trim:
        stat_use(a)
    a("s_mov_b32 s62, 0")
    a.label("M_wx")
    a("ds_read_b128 v[8:11], v7")
    a("s_waitcnt lgkmcnt(0)")
    a("v_cmp_gt_u32 vcc, 4, v10")
    spin_tail(a, "M_wx", "M_wx_d", sleep=0, glob=False)
    a.label("M_wx_d")
    stamp(a, 2)
    for n in range(4):
        a(f"ds_read_b128 {vr(AX+4*n,4)}, v15 offset:{M_XS+64*n}")
    a("v_readfirstlane_b32 s56, v8")

    def need(name, p):
        a(f"s_cmp_ge_u32 s56, {p}")
        a(f"s_cbranch_scc1 {name}_k")
        a("s_mov_b32 s62, 0")
        a.label(name)
        a("ds_read_b32 v8, v7")
        a("s_waitcnt lgkmcnt(0)")
        a(f"v_cmp_gt_u32 vcc, {p}, v8")
        spin_tail(a, name, name + "_d", sleep=0 if p > 14 else 1, glob=False)
        a.label(name + "_d")
        a("v_readfirstlane_b32 s56, v8")
        a.label(name + "_k")

    def up_mfma(n, t):
        d = DG + 8*t + 4
        a(f"v_mfma_f32_16x16x32_bf16 {vr(d,4)}, {vr(AX+4*n,4)}, {vr(BU+16*t+4*n,4)}, {'0' if n == 0 else vr(d,4)}")
    for n in range(4):
        need(f"M_wu{n}", 10+2*n)
        if n == 3:
            stamp(a, 7)
        for t in range(2):
            for u2 in range(2):
                a(f"ds_read_b64_tr_b16 {vr(BU+16*t+4*n+2*u2,2)}, v{126 if t else 12} offset:{M_U+8192*n+4096*u2}")
        lgk(a, 4)
        if n == 0:
            for k in range(4):
                for t in range(2):
                    d = DG + 8*t
                    a(f"v_mfma_f32_16x16x32_bf16 {vr(d,4)}, {vr(AX+4*k,4)}, {vr(BG+16*t+4*k,4)}, {'0' if k == 0 else vr(d,4)}")
            if Cfg.trim and not Cfg.pstat:
                stat_use(a)
        else:
            up_mfma(n-1, 0)
            up_mfma(n-1, 1)
    if Cfg.pstat:
        a("ds_read_b128 v[116:119], v7 offset:32")
    for t in range(2):
        lgk(a, 2-2*t + (1 if Cfg.pstat else 0))
        up_mfma(3, t)
    if Cfg.pstat:
        a("s_mov_b32 s62, 0")
        a.label("M_ws")
        a("s_waitcnt lgkmcnt(0)")
        a("v_cmp_eq_u32 vcc, 0, v118")
        a("s_cbranch_vccz M_ws_d")
        a("ds_read_b128 v[116:119], v7 offset:32")
        a("s_add_u32 s62, s62, 1")
        a(f"s_cmp_lt_u32 s62, {SPIN_CAP}")
        a("s_cbranch_scc1 M_ws")
        a.label("M_ws_d")
    a("v_mov_b32 v9, 1")
    for q_, d in ((1, DG+8), (2, DG+4), (3, DG+12)):
        for r in range(2):
            a(f"v_mov_b32_dpp v{DG+r}, v{d+r} quad_perm:[0,1,2,3] row_mask:{hex(1 << q_)} bank_mask:0xf")
    a(f"v_fma_f32 v{DG}, -v{DG+1}, {'v116' if Cfg.pstat else 's54'}, v{DG}")
    a(f"v_mul_f32 v{DG}, v{DG}, {'v117' if Cfg.pstat else 'v124'}")
    a(f"buffer_store_dword v{DG}, v114, s[24:27], s44 offen sc1")
    a("s_mov_b64 exec, 1")
    a("ds_add_u32 v7, v9 offset:12")
    a("s_mov_b64 exec, -1")
    stamp(a, 3)
    for n in range(2):
        if Cfg.dprog or n == 0:
            lds_wait(a, f"M_wd{n}", M_F, 20+4*n if Cfg.dprog else 24, 8, sleep=1-n)
        for t in range(4):
            for u2 in range(2):
                a(f"ds_read_b64_tr_b16 {vr(BG+8*t+4*n+2*u2,2)}, v{120+t} offset:{M_G+16384*n+8192*u2}")
                if t == 3 and n == 1 and u2 == 0:
                    a("s_waitcnt lgkmcnt(4)")
    a("v_lshlrev_b32 v8, 2, v2")
    a("s_waitcnt lgkmcnt(0)")
    a("s_barrier")
    stamp(a, 4)
    a(f"ds_read_b128 {vr(AX,4)}, v14 offset:{M_H}")
    a(f"ds_read_b128 {vr(AX+4,4)}, v14 offset:{M_H+64}")
    DD = BU
    for n in range(2):
        lgk(a, 1-n)
        for t in range(4):
            c = "0" if n == 0 else vr(DD+4*t, 4)
            a(f"v_mfma_f32_16x16x32_bf16 {vr(DD+4*t,4)}, {vr(AX+4*n,4)}, {vr(BG+8*t+4*n,4)}, {c}")
    for t in range(1, 4):
        a(f"v_mov_b32_dpp v{DD}, v{DD+4*t} quad_perm:[0,1,2,3] row_mask:{hex(1 << t)} bank_mask:0xf")
    a(f"buffer_store_dword v{DD}, v8, s[24:27], s45 offen sc1")
    stamp(a, 5)
    a("s_branch L_fin")
    a.label("M_poller")
    if Cfg.pstat:
        key_wait(a, "M_pbox")
        stat_req(a)
    a(f"s_cmp_ge_u32 s28, {Cfg.resn}")
    a("s_cbranch_scc1 M_nores")
    if not Cfg.pstat:
        key_wait(a, "M_pbox")
    a("v_mov_b32 v9, s33")
    a("v_mov_b32 v10, 0")
    a("s_lshr_b32 s34, s28, 5")
    a("s_add_u32 s34, s34, s28")
    a("s_and_b32 s34, s34, 31")
    a("s_lshl_b32 s34, s34, 7")
    a(f"s_add_u32 s34, s34, {WS_RES}")
    a("s_mov_b64 exec, 1")
    a("buffer_store_dwordx2 v[8:9], v10, s[24:27], s34 offen sc1")
    a("s_mov_b64 exec, -1")
    a.label("M_nores")
    if Cfg.pstat:
        a("s_waitcnt lgkmcnt(0)")
        stat_use(a)
        a("v_mov_b32 v120, s54")
        a("v_mov_b32 v122, 1")
        a("v_mov_b32 v121, v124")
        a("s_mov_b64 exec, 1")
        a("ds_write_b128 v7, v[120:123] offset:32")
        a("s_mov_b64 exec, -1")
    K = 16
    a("v_lshlrev_b32 v9, 4, v2")
    a("v_and_b32 v12, 8, v2")
    a("v_lshl_add_u32 v12, v12, 2, v4")
    a("v_and_b32 v11, 3, v2")
    a("v_lshl_add_u32 v12, v11, 3, v12")
    a("v_and_b32 v11, 4, v2")
    a("v_add_lshl_u32 v12, v12, v11, 1")
    a("s_lshl_b32 s44, s29, 12")
    a(f"s_add_u32 s44, s44, {WS_H1}")
    a("s_lshl_b32 s46, s28, 7")
    a(f"s_add_u32 s46, s46, {WS_N1}")
    a("s_lshl_b32 s47, s33, 4")
    a("s_lshr_b32 s35, s28, 3")
    a("s_cmp_ge_u32 s35, 14")
    a("s_cselect_b32 s34, 18, 0")
    a("s_add_u32 s35, s35, s34")
    a("s_and_b32 s34, s28, 7")
    a("s_lshl_b32 s34, s34, 8")
    a("s_add_u32 s34, s34, s35")
    a(f"s_lshl2_add_u32 s55, s34, {WS_N2}")
    a("v_lshlrev_b32 v40, 8, v2")
    a("v_mov_b32 v41, s33")
    if Cfg.n1 == 0:
        lds_wait(a, "M_pu", M_F+12, 4, 14)
    else:
        a("s_and_b32 s34, s28, 0xe8")
        a("s_lshl_b32 s34, s34, 5")
        a("s_bfe_u32 s35, s28, 0x10004")
        a("s_lshl3_add_u32 s34, s35, s34")
        a("s_and_b32 s35, s28, 7")
        a("s_add_u32 s34, s34, s35")
        a(f"s_lshl2_add_u32 s54, s34, {WS_N1}")
        a("v_and_b32 v42, 8, v2")
        a("v_add_lshl_u32 v42, v42, v2, 7")
        lds_wait(a, "M_pu", M_F+20, 7, 14)
        lds_wait(a, "M_pv", M_F, Cfg.n1, 14)
        a("s_mov_b64 exec, 0xffff")
        a("buffer_store_dword v41, v42, s[24:27], s54 offen sc1")
        a("s_mov_b64 exec, -1")
        stamp(a, 2)
        a("s_mov_b32 s62, 0")
        a.label("M_hint")
        a("s_load_dwordx16 s[64:79], s[10:11], s46 glc")
        a("s_waitcnt lgkmcnt(0)")
        for k in range(1, 16):
            a(f"s_add_u32 s64, s64, s{64+k}")
        a("s_cmp_eq_u32 s64, s47")
        sspin_tail(a, "M_hint", "M_hint_d", sleep=0)
        a.label("M_hint_d")
    if Cfg.h1d:
        a(f"s_sleep {Cfg.h1d}")
    stamp(a, 3)

    def hint2(p):
        lds_wait(a, "M_pw", M_F, p, 14, sleep=0)
        a("s_mov_b64 exec, 0xf")
        a("buffer_store_dword v41, v40, s[24:27], s55 offen sc1")
        a("s_mov_b64 exec, -1")

    def h1_loads():
        for k in range(4):
            a(f"buffer_load_dwordx4 {vr(K+4*k,4)}, v9, s[24:27], s44 offen offset:{1024*k} sc1")
    if Cfg.n2 == 2:
        h1_loads()
        hint2(Cfg.n2p)
        a("s_mov_b32 s62, 0")
        a("s_waitcnt vmcnt(1)")
        a("s_branch M_ph_c")
    a("s_mov_b32 s62, 0")
    a.label("M_ph")
    h1_loads()
    a("s_waitcnt vmcnt(0)")
    a.label("M_ph_c")
    Q = 32
    for m_ in range(2):
        for x in range(0, 4, 2):
            a(f"v_pk_add_f32 {vr(Q+4*m_+x,2)}, {vr(K+8*m_+x,2)}, {vr(K+8*m_+4+x,2)}")
    for r in range(0, 8, 2):
        a(f"v_permlane16_swap_b32 v{Q+r}, v{Q+r+1}")
    for r in range(0, 8, 2):
        a(f"v_add_f32 v{Q+r}, v{Q+r}, v{Q+r+1}")
    for m_ in range(2):
        a(f"v_permlane32_swap_b32 v{Q+4*m_}, v{Q+4*m_+2}")
    for m_ in range(2):
        a(f"v_add_f32 v{Q+4*m_}, v{Q+4*m_}, v{Q+4*m_+2}")
    a(f"v_cmp_u_f32 vcc, v{Q}, v{Q+4}")
    a(f"v_mul_f32 v{Q+1}, {f2u(-LOG2E)}, v{Q}")
    if Cfg.nohop:
        a(f"v_mov_b32 v{Q}, 1.0")
        a(f"v_mov_b32 v{Q+1}, 1.0")
        a(f"v_mov_b32 v{Q+4}, 1.0")
        a("s_branch M_ph_d")
    a("s_cbranch_vccz M_ph_d")
    a(f"v_max_u32 v{Q+2}, v{K}, v{K+1}")
    for k in range(1, 8):
        a(f"v_max3_u32 v{Q+2}, v{Q+2}, v{K+2*k}, v{K+2*k+1}")
    a(f"v_cmp_eq_u32 vcc, -1, v{Q+2}")
    spin_tail(a, "M_ph", "M_ph_d", sleep=Cfg.h1s)
    a.label("M_ph_d")
    if Cfg.n2 == 1:
        hint2(24)
    stamp(a, 4)
    a(f"v_exp_f32 v{Q+1}, v{Q+1}")
    a(f"v_mul_f32 v{K}, v{Q}, v{Q+4}")
    a(f"v_add_f32 v{Q+1}, 1.0, v{Q+1}")
    a(f"v_rcp_f32 v{Q+1}, v{Q+1}")
    a(f"v_mul_f32 v{K}, v{K}, v{Q+1}")
    a(f"v_cvt_pk_bf16_f32 v{K}, v{K}, v{K}")
    a(f"ds_write_b16 v12, v{K} offset:{M_H}")
    a("s_waitcnt lgkmcnt(0)")
    a("s_barrier")


def build():
    a = Asm()
    a(f"s_cmp_ge_u32 s2, {NWG}")
    a("s_cbranch_scc1 L_end")
    if Cfg.sep:
        a("s_bitcmp1_b32 s2, 7")
        a("s_cbranch_scc1 L_rm")
        a("s_and_b32 s3, s2, 7")
        a("s_bfe_u32 s4, s2, 0x40003")
        a("s_lshl4_add_u32 s3, s4, s3")
        a("s_lshr_b32 s4, s2, 8")
        a("s_lshl3_add_u32 s2, s4, s3")
        a("s_branch L_rd")
        a.label("L_rm")
        a("s_lshr_b32 s4, s2, 8")
        a("s_and_b32 s3, s2, 127")
        a("s_lshl_b32 s4, s4, 7")
        a("s_add_u32 s2, s3, s4")
        a("s_add_u32 s2, s2, 256")
        a.label("L_rd")
    if Cfg.late:
        a("s_and_b32 s3, s2, 7")
        a(f"s_cmp_lg_u32 s3, {Cfg.latej}")
        a("s_cbranch_scc1 L_nl")
        a(f"s_sleep {Cfg.late}")
        a.label("L_nl")
    if Cfg.stamps:
        a("v_mov_b32 v127, 0")
        a("s_memrealtime s[98:99]")
    a("s_load_dwordx2 s[4:5], s[0:1], 0")
    a("s_load_dwordx2 s[10:11], s[0:1], 96")
    a("s_load_dwordx8 s[36:43], s[0:1], 48")
    a("s_load_dwordx2 s[8:9], s[0:1], 80")
    a("v_lshrrev_b32 v1, 6, v0")
    a("v_and_b32 v2, 63, v0")
    a("v_readfirstlane_b32 s3, v1")
    a("v_and_b32 v3, 15, v0")
    a("v_lshrrev_b32 v4, 4, v2")
    if Cfg.e1:
        if Cfg.mpos == 0:
            a("s_cmp_lt_u32 s2, 256")
            a("s_cbranch_scc1 F_entry")
        else:
            a("s_cmp_ge_u32 s2, 256")
            a("s_cbranch_scc1 M_first")
    elif Cfg.pf and Cfg.pfn:
        n = 128 // Cfg.pfn
        a("s_cmp_ge_u32 s2, 256")
        a("s_cbranch_scc1 M_first" if Cfg.lfirst else "s_cbranch_scc1 M_entry")
        a(f"s_cmp_ge_u32 s3, {max(1, n // 64)}")
        a("s_cbranch_scc1 L_nopf")
        a("s_getpc_b64 s[6:7]")
        a.label("L_pc")
        a(f"s_mov_b32 m0, {LDS_BYTES - 256}")
        a(f"s_bfe_u32 s34, s2, {hex(3 + ((Cfg.pfn.bit_length() - 1) << 16))}" if Cfg.pfn > 1 else "s_mov_b32 s34, 0")
        a(f"s_mul_i32 s34, s34, {n*128}")
        a("v_lshl_add_u32 v8, v0, 7, s34")
        a("v_min_u32 v8, L_end-L_pc, v8")
        a("v_mov_b32 v9, s7")
        a("v_add_co_u32 v8, vcc, s6, v8")
        a("v_addc_co_u32 v9, vcc, 0, v9, vcc")
        if n < 64:
            a(f"s_mov_b64 exec, {hex((1 << n) - 1)}")
        a("global_load_lds_dword v[8:9], off")
        if n < 64:
            a("s_mov_b64 exec, -1")
        a.label("L_nopf")
    elif Cfg.pf:
        a("s_cmp_gt_u32 s3, 1")
        a("s_cbranch_scc1 L_nopf")
        a("s_getpc_b64 s[6:7]")
        a.label("L_pc")
        a(f"s_mov_b32 m0, {LDS_BYTES - 256}")
        a("v_lshlrev_b32 v8, 7, v0")
        a("v_min_u32 v8, L_end-L_pc, v8")
        a("v_mov_b32 v9, s7")
        a("v_add_co_u32 v8, vcc, s6, v8")
        a("v_addc_co_u32 v9, vcc, 0, v9, vcc")
        a("global_load_lds_dword v[8:9], off")
        a.label("L_nopf")
    if not Cfg.e1:
        a("s_cmp_ge_u32 s2, 256")
        a("s_cbranch_scc1 M_first" if Cfg.lfirst else "s_cbranch_scc1 M_entry")
    fft_role(a)
    moe_role(a)
    a.label("L_fin")
    if Cfg.stamps:
        a("s_waitcnt vmcnt(0)")
        stamp(a, 14)
        a("s_mov_b64 exec, 0xffff")
        a("s_lshl3_add_u32 s34, s2, s3")
        a("s_lshl_b32 s34, s34, 6")
        a(f"s_add_u32 s34, s34, {WS_TS}")
        a("v_lshlrev_b32 v24, 2, v2")
        a("buffer_store_dword v127, v24, s[24:27], s34 offen")
    a.label("L_end")
    a("s_endpgm")
    if Cfg.stamps:
        out, roles = [], 0
        armed = True
        for ln in a.lines:
            out.append(ln)
            if ln in ("M_entry:", "M_loader:", "M_first:", "F_entry:"):
                armed = True
            if armed and ln == "s_waitcnt lgkmcnt(0)":
                out.append("v_writelane_b32 v127, s98, 0")
                armed = False
        a.lines = out
    s = HEADER
    s += "; cfg " + " ".join(sys.argv[2:]) + "\n"
    s += DOC
    s += f"; @launch grid=({NWG},1,1) block=(512,1,1) lds={LDS_BYTES}\n"
    s += '.amdgcn_target "amdgcn-amd-amdhsa--gfx950"\n'
    s += kernel_head(NAME) + a.finalize(True) + kernel_desc(NAME, 128)
    return s


if __name__ == "__main__":
    out = sys.argv[1]
    for kv in sys.argv[2:]:
        k, v = kv.split("=")
        setattr(Cfg, k, type(getattr(Cfg, k))(int(v)) if not isinstance(getattr(Cfg, k), str) else v.replace("+", " "))
    open(out, "w").write(build())
```

```python
import sys, math
sys.path.insert(0, 'tools')
from asmlib import *

NAME = 'recurrent_scan__spectral_fnet__moe_arch_mod__prompt_kernel'
HEADER = open('recurrent_scan__spectral_fnet__moe_arch_mod__prompt.s.ref').read().split('; Override')[0]
WS_BYTES = 268435456
WS_RES = 4096
WS_KY = 8192
WS_ST = WS_KY + 16384
WS_KB = WS_ST + 16384
WS_LD = 131072
WS_H1 = 262144
WS_H2 = WS_H1 + 229376
NBASE = WS_H2 + 229376 if "hwarm=0" not in sys.argv else 131072
WS_N1 = NBASE
WS_N2 = NBASE + 32768
WS_V = 1 << 20
VB = 129 * 128
VU = 8192 + 128
WS_TS = 16 << 20
SPIN_CAP = 200000
NWG = 480

L_X = 0
L_Z = 32768
L_WR = 41216
L_T = 43520
L_U = 32768
L_C = 56832
M_XS = 0
M_ONE = 512
M_H = 1024
M_F = 1152
M_G = 1280
M_U = M_G + 32768
LDS_BYTES = M_U + 32768 + 256

LOG2E = math.log2(math.e)
DOC = """; Generated by tools/gen_v17.py.  out = x + Re(DFT2(LN x)) * silu(LN x + routed-token FFN).
"""


class Cfg:
    stamps = False
    smask = 0xffff
    thr = 12
    thr2 = 28
    g2 = 5
    thr3 = 24
    g3 = 99
    out_flag = "sc1"
    wfl = "nt"
    early_b2 = True
    xpos = 5
    prio = 3
    kprio = 2
    revpos = 4
    hint1 = False
    gfirst = True
    pk0 = 8
    sdelay = 0
    nrep = 8
    brep = 32
    kmap = True
    diag = 0
    pf = 1
    scan2 = True
    h1d = 0
    h1s = 0
    h2s = 0
    xdel = 0
    psl = 5
    ramp = 0
    stag = 4
    n1 = 14
    n2 = 2
    n2p = 20
    h2d = 0
    rdel = 0
    hyb = False
    exact = True
    sfirst = 0
    dxor = 1
    lut = True
    lprio = 3
    pre = True
    vdel = 0
    dprog = True
    noack = 0
    jswap = True
    fin2 = True
    midg = True
    drain = 99
    fastk = False
    lfirst = True
    spos = 0
    edel = 0
    sdel = 0
    ltail = False
    latex = 1
    gate = 0
    gsl = 3
    eh = True
    scan3 = True
    ssl = 2
    nopois = False
    fpf = 0
    fboth = False
    hpf = 0
    nohop = False
    ru = 0
    pf2 = True
    thrn = 0
    nostat = False
    allpre = False
    hwarm = True
    kwarm = 0
    resn = 64
    late = 0
    latej = 0
    kgrp = False
    tlo = 0
    tev = 20
    tcnt = 7
    nsl = 1
    skipg = 0
    halfxp = False
    sfloor = 0
    trim = 2
    agent = 2
    gprog = True
    pp = False
    pstat = False
    vfull = 2
    early = 0
    lprof = 0
    pfn = 4
    e1 = 0
    e1v = 0
    mpos = 0
    wsl = 0
    wsn = 4
    pad = 0
    pad2 = 0
    pad3 = 0
    e2 = 1
    tlbw = 0
    own1 = 1
    fullout = 0
    nostst = 0
    ldg = 0
    ldcap = 6
    epfl = "sc1"
    finfl = ""
    upre = 0
    mon = 0
    noflag = 0
    xfl = ""
    tau = 1
    swp = 0
    mfront = 0
    tight = 0
    sep = 0
    hybst = 0


def srd(a, d, b, nbytes):
    a(f"s_mov_b32 s{d}, s{b}")
    a(f"s_and_b32 s{d+1}, s{b+1}, 0xffff")
    a(f"s_mov_b32 s{d+2}, {nbytes}")
    a(f"s_mov_b32 s{d+3}, 0x20000")


def vr(b, n):
    return f"v[{b}:{b+n-1}]"


def stamp(a, i):
    if Cfg.stamps and (Cfg.smask >> i) & 1:
        a("s_memrealtime s[100:101]")
        a("s_waitcnt lgkmcnt(0)")
        a(f"v_writelane_b32 v127, s100, {i}")


def estamp(a, i):
    if Cfg.stamps and Cfg.early:
        a("s_memrealtime s[100:101]")
        a("s_waitcnt lgkmcnt(0)")
        a(f"v_writelane_b32 v127, s100, {i}")


def lstamp(a, i):
    if Cfg.stamps and Cfg.ltail:
        a("s_memrealtime s[100:101]")
        a("s_waitcnt lgkmcnt(0)")
        a(f"v_writelane_b32 v127, s100, {i}")


def lgk(a, n):
    a(f"s_waitcnt lgkmcnt({n})")


def round_bf16(a, v):
    a(f"v_cvt_pk_bf16_f32 v{v}, v{v}, v{v}")
    a(f"v_lshlrev_b32 v{v}, 16, v{v}")


def gen_cs(a, dc, ds, ang, step, t, neg_s):
    sg = "-" if neg_s else ""
    for p in range(4):
        a(f"v_cos_f32 v{t}, v{ang}")
        a(f"v_sin_f32 v{t+1}, v{ang}")
        a(f"v_add_f32 v{ang}, v{ang}, v{step}")
        a(f"v_cos_f32 v{t+2}, v{ang}")
        a(f"v_sin_f32 v{t+3}, v{ang}")
        if p < 3:
            a(f"v_add_f32 v{ang}, v{ang}, v{step}")
        a(f"v_cvt_pk_f16_f32 v{dc+p}, v{t}, v{t+2}")
        a(f"v_cvt_pk_f16_f32 v{ds+p}, {sg}v{t+1}, {sg}v{t+3}")


def silu(a, v, n, tmp):
    for j in range(n):
        a(f"v_mul_f32 v{tmp+j}, {f2u(-LOG2E)}, v{v+j}")
    for j in range(n):
        a(f"v_exp_f32 v{tmp+j}, v{tmp+j}")
    for j in range(n):
        a(f"v_add_f32 v{tmp+j}, 1.0, v{tmp+j}")
    for j in range(n):
        a(f"v_rcp_f32 v{tmp+j}, v{tmp+j}")
    for j in range(n):
        a(f"v_mul_f32 v{v+j}, v{v+j}, v{tmp+j}")


def wave_max_u32(a, v, s):
    for r in (8, 4, 2, 1):
        a(f"v_max_u32_dpp v{v}, v{v}, v{v} row_ror:{r} row_mask:0xf bank_mask:0xf")
    a(f"v_max_u32_dpp v{v}, v{v}, v{v} row_bcast:15 row_mask:0xa bank_mask:0xf")
    a(f"v_max_u32_dpp v{v}, v{v}, v{v} row_bcast:31 row_mask:0xc bank_mask:0xf")
    a(f"v_readlane_b32 s{s}, v{v}, 63")


def round_pairs(a, regs, tmp):
    for p in range(len(regs) // 2):
        a(f"v_cvt_pk_bf16_f32 v{tmp+p}, v{regs[2*p]}, v{regs[2*p+1]}")
    for p in range(len(regs) // 2):
        a(f"v_lshlrev_b32 v{regs[2*p]}, 16, v{tmp+p}")
        a(f"v_and_b32 v{regs[2*p+1]}, 0xffff0000, v{tmp+p}")


def spin_tail(a, label, done, cnt="s62", sleep=1, glob=True):
    a(f"s_add_u32 {cnt}, {cnt}, 1")
    a(f"s_cbranch_vccz {done}")
    if sleep:
        a(f"s_sleep {sleep}")
    a(f"s_cmp_lt_u32 {cnt}, {SPIN_CAP if glob else 5*SPIN_CAP}")
    a(f"s_cbranch_scc1 {label}")


def lds_wait(a, name, off, val, tv, sleep=1):
    a(f"v_mov_b32 v{tv}, {off}")
    a("s_mov_b32 s62, 0")
    a.label(name)
    a(f"ds_read_b32 v{tv+1}, v{tv}")
    a("s_waitcnt lgkmcnt(0)")
    a(f"v_cmp_gt_u32 vcc, {val}, v{tv+1}")
    spin_tail(a, name, name + "_d", sleep=sleep, glob=False)
    a.label(name + "_d")


def sspin_tail(a, label, done, sleep=2):
    a(f"s_cbranch_scc1 {done}")
    a("s_add_u32 s62, s62, 1")
    if sleep:
        a(f"s_sleep {sleep}")
    a(f"s_cmp_lt_u32 s62, {SPIN_CAP}")
    a(f"s_cbranch_scc1 {label}")


def key_wait(a, name):
    a("s_mov_b32 s62, 0")
    a.label(name)
    a("ds_read_b64 v[8:9], v7 offset:16")
    a("s_waitcnt lgkmcnt(0)")
    a("v_cmp_gt_u32 vcc, 7, v9")
    spin_tail(a, name, name + "_d", sleep=0, glob=False)
    a.label(name + "_d")
    a("v_readfirstlane_b32 s48, v8")


def moe_unit(a):
    if Cfg.lut:
        a("s_lshr_b32 s29, s28, 1")
        a("s_xor_b32 s29, s29, s28")
        a("s_and_b32 s29, s29, 8")
        a("s_mul_i32 s29, s29, 3")
        a("s_xor_b32 s28, s28, s29")
    down_tile(a)


def down_tile(a):
    if Cfg.tau:
        a("s_lshr_b32 s29, s28, 4")
        a("s_bfe_u32 s30, s28, 0x20001")
        a("s_lshl2_add_u32 s29, s29, s30")
        a("s_and_b32 s30, s28, 1")
        a("s_lshl_b32 s30, s30, 1")
        a("s_bitcmp1_b32 s28, 3")
        a("s_addc_u32 s30, s30, 0")
        return
    a("s_lshr_b32 s29, s28, 2")
    a("s_and_b32 s30, s28, 3")
    if Cfg.dxor:
        a("s_xor_b32 s30, s30, 1")


def stat_req(a):
    a("s_and_b32 s50, s48, 7")
    a("s_bfe_u32 s34, s48, 0x40003")
    a("s_lshl4_add_u32 s50, s50, s34")
    a("s_bfe_u32 s34, s48, 0x40007")
    a("s_lshl4_add_u32 s50, s50, s34")
    a(f"s_lshl3_add_u32 s50, s50, {WS_ST}")
    a("s_load_dwordx2 s[52:53], s[10:11], s50")


def stat_use(a):
    a("s_mov_b32 s62, 0")
    a.label("M_sta")
    a("s_cmp_eq_u32 s53, s33")
    a("s_cbranch_scc1 M_sta_d" if not Cfg.nostst else "s_branch M_sta_d")
    a("s_load_dwordx2 s[52:53], s[10:11], s50 glc")
    a("s_add_u32 s62, s62, 1")
    a(f"s_cmp_lt_u32 s62, {SPIN_CAP}")
    a("s_waitcnt lgkmcnt(0)")
    a("s_cbranch_scc1 M_sta")
    a.label("M_sta_d")
    a("s_lshl_b32 s54, s52, 16")
    a("s_and_b32 s52, s52, 0xffff0000")
    a(f"v_mov_b32 v124, {f2u(1e-5)}")
    a("v_add_f32 v124, s52, v124")
    round_bf16(a, 124)
    a("v_sqrt_f32 v124, v124")
    round_bf16(a, 124)
    a("v_rcp_f32 v124, v124")


def nonce(a):
    a("s_mul_i32 s33, s33, 0x9e3779b1")
    a("s_add_u32 s33, s33, 0x7f4a7c15")


def fft_role(a):
    PA, PB, WR = 8, 16, 24
    F1C, F1S, R8R, R8I, F2C, F2N, F2S, TWC, TWS = range(32, 68, 4)
    SEL = 68
    DA_, DB_ = 76, 92
    T0 = 108
    AZW, AZR, AVS, AO, K32, VROW, ATB = 120, 121, 122, 123, 124, 125, 126
    AX = DB_
    AY = SEL + 4
    PQ = WR
    def m_first():
        a.label("M_first")
        a("s_cmp_lg_u32 s3, 0")
        a("s_cbranch_scc1 M_entry")
        a(f"s_setprio {Cfg.lprio}")
        a("s_lshr_b32 s29, s2, 1")
        a("s_xor_b32 s29, s29, s2")
        a("s_and_b32 s29, s29, 8")
        a("s_mul_i32 s29, s29, 3")
        a("s_xor_b32 s28, s2, s29")
        a("s_bitset0_b32 s28, 8")
        a("v_mul_u32_u24 v8, 7168, v4")
        a("v_lshlrev_b32 v9, 1, v4")
        a("v_xor_b32 v9, v9, v3")
        a("v_lshl_add_u32 v8, v9, 4, v8")
        a("s_and_b32 s34, s28, 7")
        a(f"s_mulk_i32 s34, {128*28}")
        a("s_lshr_b32 s35, s28, 3")
        a("s_add_u32 s34, s34, s35")
        a("s_lshl_b32 s34, s34, 8")
        a("s_mov_b32 s14, 7340032")
        a("s_mov_b32 s15, 0x20000")
        a(f"s_movk_i32 s46, {M_G}")
        if Cfg.swp:
            a("s_and_b32 s35, s35, 3")
            a("s_cmp_eq_u32 s35, 3")
            a("s_cselect_b32 s35, 512, 0")
            a("s_xor_b32 s34, s34, s35")
            a("s_cmp_eq_u32 s35, 512")
        a("s_mov_b32 s45, s34")
        a("s_waitcnt lgkmcnt(0)")
        if Cfg.swp:
            a("s_cselect_b64 s[12:13], s[40:41], s[38:39]")
            a("s_cselect_b64 s[40:41], s[38:39], s[40:41]")
        else:
            a("s_mov_b64 s[12:13], s[38:39]")
        stamp(a, 2)
        a.label("M_burst")
        a("s_mov_b32 m0, s46")
        a("s_addk_i32 s46, 1024")
        a(f"buffer_load_dwordx4 v8, s[12:15], s45 offen {Cfg.wfl} lds")
        a(f"s_addk_i32 s45, {4*7168}")
        a("v_xor_b32 v8, 128, v8")
        a(f"s_cmpk_lt_u32 s46, {M_G + 1024*Cfg.thr}")
        a("s_cbranch_scc1 M_burst")
        a("s_branch M_loader2")

    def code_prefetch():
        n = 128 // Cfg.pfn
        a(f"s_cmp_ge_u32 s3, {max(1, n // 64)}")
        a("s_cbranch_scc1 L_nopf")
        a("s_getpc_b64 s[6:7]")
        a.label("L_pc")
        a(f"s_mov_b32 m0, {LDS_BYTES - 256}")
        a(f"s_bfe_u32 s34, s2, {hex(3 + ((Cfg.pfn.bit_length() - 1) << 16))}" if Cfg.pfn > 1 else "s_mov_b32 s34, 0")
        a(f"s_mul_i32 s34, s34, {n*128}")
        a("v_lshl_add_u32 v8, v0, 7, s34")
        a("v_min_u32 v8, L_end-L_pc, v8")
        a("v_mov_b32 v9, s7")
        a("v_add_co_u32 v8, vcc, s6, v8")
        a("v_addc_co_u32 v9, vcc, 0, v9, vcc")
        if n < 64:
            a(f"s_mov_b64 exec, {hex((1 << n) - 1)}")
        a("global_load_lds_dword v[8:9], off")
        if n < 64:
            a("s_mov_b64 exec, -1")
        a.label("L_nopf")

    def row_requests():
        a(f"s_mov_b32 m0, {L_WR}")
        a("s_cmp_lg_u32 s3, 0")
        a("s_waitcnt lgkmcnt(0)")
        stamp(a, 1)
        a("s_mov_b64 s[12:13], s[4:5]")
        a("s_load_dword s33, s[10:11], 0")
        a("s_cbranch_scc1 F_nowr")
        a("s_mov_b64 s[16:17], s[36:37]")
        a("buffer_load_dwordx4 v5, s[16:19], 0 offen lds")
        a("buffer_load_dwordx4 v5, s[16:19], 0 offen offset:1024 lds")
        a.label("F_nowr")
        a("s_mov_b32 m0, s53")
        a("s_mov_b64 s[24:25], s[10:11]")
        a(f"buffer_load_dwordx4 v5, s[12:15], s49 offen lds")
        a(f"buffer_load_dwordx4 v5, s[12:15], s49 offen offset:1024 lds")

    def poison():
        a(f"s_mov_b32 s26, {WS_BYTES}")
        a("s_mov_b32 s27, 0x20000")
        a(f"v_lshlrev_b32 v{8 if Cfg.e1 else 7}, 2, v0")
        a("s_lshl_b32 s34, s2, 11")
        a(f"s_add_u32 s34, s34, {WS_H1}")
        a(f"v_mov_b32 v{9 if Cfg.e1 else 6}, -1")
        if Cfg.nopois:
            a("s_mov_b64 exec, 1")
        if Cfg.e1:
            a("buffer_store_dword v9, v8, s[24:27], s34 offen sc1")
        else:
            a("buffer_store_dword v6, v7, s[24:27], s34 offen sc1" if not Cfg.nopois else "buffer_load_dword v1, v7, s[12:15], 0 offen")
        if Cfg.nopois:
            a("s_mov_b64 exec, -1")
    if Cfg.e1:
        assert Cfg.pfn and Cfg.revpos == 4 and not Cfg.fastk
        if Cfg.mpos == 0:
            m_first()
            a.label("F_entry")
        code_prefetch()
    elif Cfg.mfront:
        m_first()
        a.label("F_entry")
        code_prefetch()
    a("s_and_b32 s28, s2, 7")
    a("s_bfe_u32 s44, s2, 0x10003")
    a("s_lshr_b32 s45, s2, 4")
    a("s_xor_b32 s30, s45, 15")
    a("s_lshl3_add_u32 s30, s30, s28")
    a("s_cmp_eq_u32 s30, 0")
    a("s_cselect_b32 s46, 1, 0")
    a("s_cmp_eq_u32 s2, 248")
    a("s_cselect_b32 s30, 128, s30")
    a("s_lshl_b32 s31, s3, 8")
    a("s_add_u32 s31, s31, s30")
    a("s_sub_u32 s32, 0, s31")
    a("s_and_b32 s32, s32, 2047")
    a("s_cmp_eq_u32 s44, 0")
    a("s_cselect_b32 s47, s31, s32")
    a("s_cselect_b32 s48, s32, s31")
    a("s_lshl_b32 s49, s47, 11")
    a("s_lshl_b32 s48, s48, 11")
    a("v_lshrrev_b32 v5, 3, v2")
    a("v_and_b32 v5, 2, v5")
    a("v_xor_b32 v5, v5, v2")
    a("v_lshlrev_b32 v5, 4, v5")
    a("s_lshl_b32 s53, s3, 12")
    if Cfg.tight:
        a("s_lshl_b32 s14, 1, 22")
        a("s_mov_b32 s15, 0x20000")
        a("s_movk_i32 s18, 2048")
        a("s_mov_b32 s19, s15")
    else:
        a("s_mov_b32 s14, 4194304")
        a("s_mov_b32 s15, 0x20000")
        a("s_mov_b32 s18, 2048")
        a("s_mov_b32 s19, 0x20000")
    if not Cfg.e1:
        row_requests()
        if Cfg.lfirst and not Cfg.mfront:
            a("s_branch F_go")
            m_first()
            a.label("F_go")
        poison()

    def rev_loads():
        a("s_add_u32 m0, s53, 2048")
        a(f"buffer_load_dwordx4 v5, s[12:15], s48 offen lds")
        a(f"buffer_load_dwordx4 v5, s[12:15], s48 offen offset:1024 lds")
    if Cfg.revpos == 3:
        rev_loads()
    UN, ANG, AJ = T0+8, T0+9, T0+11
    a(f"v_lshlrev_b32 v{ATB}, 4, v2")
    a("s_and_b32 s34, s3, 1")
    a("s_lshr_b32 s35, s3, 1")
    a(f"v_lshl_add_u32 v{AJ}, s34, 3, v{ATB}")
    a("s_cmp_eq_u32 s35, 3")
    a("s_cbranch_scc1 F_jobr8")
    a("s_lshl4_add_u32 s54, s44, 1")
    a("s_cmp_eq_u32 s35, 2")
    a("s_cselect_b32 s54, 0, s54")
    a("s_cselect_b32 s57, 4096, 0")
    a("s_cmp_eq_u32 s35, 1")
    a(f"s_cselect_b32 s55, {f2u(1/1024)}, 0")
    a("s_cselect_b32 s58, s46, 0")
    a("s_cselect_b32 s57, 7168, s57")
    a(f"s_cselect_b32 s55, s55, {f2u(1/32)}")
    a("s_lshl_b32 s34, s34, 4")
    a(f"v_lshl_add_u32 v{T0+1}, v4, 2, s34")
    a(f"v_cvt_f32_u32 v{T0+1}, v{T0+1}")
    a(f"v_add_u32 v{AJ}, s57, v{AJ}")
    a.label("F_job")
    a(f"v_add_u32 v{UN}, s54, v3")
    a(f"v_cvt_f32_u32 v{UN}, v{UN}")
    a(f"v_mul_f32 v{UN}, s55, v{UN}")
    a(f"v_mul_f32 v{ANG}, v{UN}, v{T0+1}")
    CS = DA_
    for j in range(4):
        a(f"v_cos_f32 v{CS+j}, v{ANG}")
        a(f"v_sin_f32 v{CS+4+j}, v{ANG}")
        if j < 3:
            a(f"v_add_f32 v{ANG}, v{ANG}, v{UN}")
    a("s_cmp_eq_u32 s35, 0")
    a("s_cbranch_scc1 F_jobf1")
    for p in range(2):
        a(f"v_cvt_pk_f16_f32 v{CS+8+p}, v{CS+2*p}, v{CS+2*p+1}")
    for p in range(2):
        a(f"v_cvt_pk_f16_f32 v{CS+10+p}, v{CS+4+2*p}, v{CS+4+2*p+1}")
    for p in range(2):
        a(f"v_xor_b32 v{CS+12+p}, 0x80008000, v{CS+10+p}")
    a(f"ds_write2st64_b64 v{AJ}, {vr(CS+8,2)}, {vr(CS+10,2)} offset0:{L_T//512} offset1:{L_T//512+2}")
    a(f"ds_write_b64 v{AJ}, {vr(CS+12,2)} offset:{L_T+2048}")
    a("s_cmp_eq_u32 s58, 0")
    a("s_cbranch_scc1 F_jobd")
    a("s_mov_b32 s58, 0")
    a("s_xor_b32 s54, s54, 16")
    a(f"v_add_u32 v{AJ}, 3072, v{AJ}")
    a("s_branch F_job")
    a.label("F_jobf1")
    for p in range(2):
        a(f"v_cvt_pk_bf16_f32 v{CS+8+p}, v{CS+2*p}, v{CS+2*p+1}")
    for p in range(2):
        a(f"v_cvt_pk_bf16_f32 v{CS+10+p}, -v{CS+4+2*p}, -v{CS+4+2*p+1}")
    a(f"ds_write2st64_b64 v{AJ}, {vr(CS+8,2)}, {vr(CS+10,2)} offset0:{L_T//512} offset1:{L_T//512+2}")
    a("s_branch F_jobd")
    a.label("F_jobr8")
    STP = T0+10
    a(f"v_and_b32 v{STP}, 7, v3")
    a(f"v_cvt_f32_u32 v{STP}, v{STP}")
    a(f"v_mul_f32 v{STP}, {f2u(1/8)}, v{STP}")
    a(f"v_and_b32 v{ANG}, 1, v4")
    a(f"v_lshl_add_u32 v{ANG}, v{ANG}, 1, s34")
    a(f"v_cvt_f32_u32 v{ANG}, v{ANG}")
    a(f"v_mul_f32 v{ANG}, v{ANG}, v{STP}")
    a(f"v_add_f32 v{ANG}, v{ANG}, v{ANG}")
    a(f"v_add_f32 v{STP}, v{ANG}, v{STP}")
    a(f"v_cos_f32 v{CS}, v{ANG}")
    a(f"v_sin_f32 v{CS+1}, v{ANG}")
    a(f"v_cos_f32 v{CS+2}, v{STP}")
    a(f"v_sin_f32 v{CS+3}, v{STP}")
    a(f"v_lshrrev_b32 v{UN}, 2, v2")
    a(f"v_xor_b32 v{UN}, v{UN}, v2")
    a(f"v_bfe_u32 v{UN}, v{UN}, 3, 1")
    a(f"v_add_u32 v{UN}, -1, v{UN}")
    a("s_lshl_b32 s34, s44, 31")
    for jj in range(2):
        a(f"v_cvt_pk_f16_f32 v{CS+8+jj}, v{CS+2*jj}, v{CS+2*jj+1}")
        a(f"v_cvt_pk_f16_f32 v{CS+10+jj}, -v{CS+2*jj+1}, v{CS+2*jj}")
    for r in range(4):
        a(f"v_bitop3_b32 v{CS+8+r}, v{CS+8+r}, s34, v{UN} bitop3:0x28")
    a(f"ds_write2st64_b64 v{AJ}, {vr(CS+8,2)}, {vr(CS+10,2)} offset0:{L_T//512+4} offset1:{L_T//512+6}")
    a.label("F_jobd")
    QA, QB, DW = range(T0, T0+3)
    val = []
    for r in range(4):
        val.append(f"v_mov_b32 v{T0+r}, 0")
    val.append(f"v_mov_b32 v7, {L_C}")
    val.append(f"ds_write_b128 v7, {vr(T0,4)}")
    val += [
        f"v_and_b32 v{AX+4}, 60, v2",
        f"v_and_b32 v{AX+5}, 3, v2",
        f"v_lshl_add_u32 v{AX+4}, v{AX+4}, 1, v{AX+5}",
        f"v_bfe_u32 v{AX+5}, v2, 4, 1",
        f"v_lshl_add_u32 v{AX+4}, v{AX+5}, 2, v{AX+4}",
        f"v_lshlrev_b32 v{AX+4}, 3, v{AX+4}",
        f"v_xor_b32 v{AX+5}, 32, v{AX+4}",
        f"v_add_u32 v{AX}, s53, v{AX+4}",
        f"v_xor_b32 v{AX+1}, 32, v{AX}",
        f"v_xor_b32 v{AX+2}, 0x3d8, v{AX}",
        f"v_xor_b32 v{AX+3}, 0x3f8, v{AX}",
        f"v_and_b32 v{AY}, 0x3d8, v{AX+4}",
        f"v_sub_u32 v{AY}, 1024, v{AY}",
        f"v_add_u32 v{AY+1}, -32, v{AY}",
        f"v_lshrrev_b32 v{AY+2}, 3, v{AY}",
        f"v_lshrrev_b32 v{AY+3}, 3, v{AY+1}",
        f"v_bitop3_b32 v{AY}, v{AY}, v{AY+2}, 32 bitop3:0x78",
        f"v_bitop3_b32 v{AY+1}, v{AY+1}, v{AY+3}, 32 bitop3:0x78",
        f"v_add_u32 v{AY}, s53, v{AY}",
        f"v_add_u32 v{AY+1}, s53, v{AY+1}",
        f"v_xor_b32 v{AY+2}, 1024, v{AY}",
    ]
    for r in range(4):
        val.append(f"v_mov_b32 v{SEL+r}, 0x3f803f80")
    val += [
        f"v_bfe_u32 v{AZW}, v3, 1, 2",
        f"v_xor_b32 v{AZW}, v{AZW}, v4",
        f"v_lshl_add_u32 v{AZW}, v3, 2, v{AZW}",
        f"v_lshl_add_u32 v{AZW}, v{AZW}, 4, s58",
        f"v_xor_b32 v{AZR}, s59, v3",
        f"v_lshrrev_b32 v{T0+4}, 1, v4",
        f"v_lshl_add_u32 v{AZR}, v{T0+4}, 4, v{AZR}",
        f"v_and_b32 v{T0+4}, 1, v4",
        f"v_mul_u32_u24 v{T0+4}, 1040, v{T0+4}",
        f"v_add_lshl_u32 v{AZR}, v{AZR}, v{T0+4}, 2",
        f"v_and_b32 v{T0+5}, 7, v3",
        f"v_lshrrev_b32 v{T0+4}, 3, v3",
        *([f"v_mul_u32_u24 v{AVS}, {128 if Cfg.vfull == 2 else 16*VB}, v{T0+5}",
           f"v_lshl_add_u32 v{AVS}, v{T0+4}, 6, v{AVS}"] if Cfg.vfull else
          [f"v_lshl_add_u32 v{AVS}, v{T0+5}, 4, v{T0+4}",
           f"v_mul_u32_u24 v{AVS}, {VB}, v{AVS}"]),
        f"v_lshl_add_u32 v{AVS}, v4, 4, v{AVS}",
        "v_bfe_u32 v6, v2, 2, 2",
        "v_lshl_add_u32 v6, v6, 2, v4",
        "v_and_b32 v1, 3, v2",
        "v_lshlrev_b32 v1, 4, v1",
        "v_lshl_add_u32 v6, v6, 18, v1",
        f"v_lshlrev_b32 v{AO}, 14, v{T0+4}",
        f"v_lshl_add_u32 v{AO}, v4, 20, v{AO}",
        f"v_lshl_add_u32 v{AO}, v{T0+5}, 3, v{AO}",
        f"v_add_u32 v{K32}, 1, v3",
        f"v_bfe_i32 v{K32}, v{K32}, 4, 1",
        f"v_and_b32 v{K32}, s63, v{K32}",
        f"v_mov_b32 v{VROW}, s47",
        f"v_mov_b32 v{T0+10}, 1",
        f"v_mov_b32 v{T0+11}, 0",
    ]
    sal = [
        "s_lshr_b32 s58, s3, 2", "s_lshl4_add_u32 s58, s3, s58", "s_lshl_b32 s58, s58, 6",
        "s_and_b32 s59, s3, 3", "s_lshl3_add_u32 s59, s3, s59", "s_lshl_b32 s59, s59, 2",
        *(["s_mov_b32 s34, 0x71605432", "s_mov_b32 s35, 0x98fedcba", "s_lshl_b32 s56, s45, 2", "s_lshr_b64 s[34:35], s[34:35], s56",
           "s_and_b32 s34, s34, 15", "s_xor_b32 s45, s45, 8", "s_cmp_eq_u32 s44, 0", "s_cselect_b32 s45, s45, s34"] if Cfg.lut else
          ["s_mul_i32 s34, s44, 14", "s_xor_b32 s34, s34, 8", "s_xor_b32 s45, s45, s34"]),
        *(["s_sub_u32 s34, 0, s28", "s_and_b32 s34, s34, 7", "s_lshr_b32 s35, s45, 1", "s_cmp_lt_u32 s35, s44",
           "s_cselect_b32 s28, s34, s28"] if Cfg.jswap else []),
        "s_sub_u32 s34, 0, s28", "s_and_b32 s34, s34, 7", "s_sub_u32 s35, 31, s45", "s_cmp_eq_u32 s44, 0",
        "s_cselect_b32 s56, s28, s34", "s_cselect_b32 s57, s45, s35", f"s_cselect_b32 s63, 0, {f2u(-32.0)}",
        "s_and_b32 s34, s30, 15", "s_sub_u32 s35, 16, s34", "s_and_b32 s50, s34, 7", "s_cmp_gt_u32 s34, 8",
        "s_cselect_b32 s50, s35, s50",
        "s_and_b32 s34, s34, 8", "s_lshl4_add_u32 s50, s50, s34", "s_lshr_b32 s34, s30, 4", "s_add_u32 s50, s50, s34",
        "s_cmp_eq_u32 s30, 128", "s_cselect_b32 s50, 128, s50", "s_lshl1_add_u32 s29, s50, s44",
        *([f"s_mul_i32 s50, s29, {VU}", "s_lshl_b32 s34, s3, 10"] if Cfg.vfull == 2 else
          ["s_lshl_b32 s50, s50, 7", "s_lshl1_add_u32 s34, s3, s44", f"s_mul_i32 s34, s34, {VB}"] if Cfg.vfull else
          ["s_lshl_b32 s50, s29, 6", f"s_mul_i32 s34, s3, {2*VB}"]),
        "s_add_u32 s50, s50, s34", f"s_add_u32 s50, s50, {WS_V}",
        "s_and_b32 s29, s29, 255", f"s_lshl2_add_u32 s29, s29, {WS_KB}",
        "s_and_b32 s51, s47, 7", "s_bfe_u32 s34, s47, 0x40003", "s_lshl4_add_u32 s51, s51, s34",
        "s_lshr_b32 s34, s47, 7", "s_lshl4_add_u32 s51, s51, s34", f"s_lshl3_add_u32 s51, s51, {WS_ST}",
        "s_lshl_b32 s52, s46, 23", f"s_sub_u32 s52, {f2u(1/8)}, s52",
        "s_lshl4_add_u32 s64, s3, s56", "s_lshl_b32 s64, s64, 11", "s_lshl_b32 s34, s57, 6", "s_add_u32 s64, s64, s34",
        "s_add_u32 s65, s64, 262144", "s_add_u32 s66, s64, 524288", "s_add_u32 s67, s64, 786432",
        "s_mov_b32 s60, 0x80000000", "s_mov_b32 s61, 0xfffff800",
        "s_mov_b64 s[20:21], s[8:9]", "s_mov_b32 s22, 4194304", "s_mov_b32 s23, 0x20000",
    ]
    mid_v, mid_s, post_v, post_s = [], [], [], []
    if Cfg.e2:
        assert Cfg.lut and Cfg.jswap and Cfg.vfull == 2 and not Cfg.fastk
        TA, TB = PB, PB + 1
        mid_v = [
            f"v_xor_b32 v{AX+2}, 0x3d8, v{AX}",
            f"v_xor_b32 v{AX+3}, 0x3f8, v{AX}",
            f"v_and_b32 v{AY}, 0x3d8, v{AX+4}",
            f"v_sub_u32 v{AY}, 1024, v{AY}",
            f"v_add_u32 v{AY+1}, -32, v{AY}",
            f"v_lshrrev_b32 v{AY+2}, 3, v{AY}",
            f"v_lshrrev_b32 v{AY+3}, 3, v{AY+1}",
            f"v_bitop3_b32 v{AY}, v{AY}, v{AY+2}, 32 bitop3:0x78",
            f"v_bitop3_b32 v{AY+1}, v{AY+1}, v{AY+3}, 32 bitop3:0x78",
            f"v_add_u32 v{AY}, s53, v{AY}",
            f"v_add_u32 v{AY+1}, s53, v{AY+1}",
            f"v_xor_b32 v{AY+2}, 1024, v{AY}",
            f"v_bfe_u32 v{AZW}, v3, 1, 2",
            f"v_xor_b32 v{AZW}, v{AZW}, v4",
            f"v_lshl_add_u32 v{AZW}, v3, 2, v{AZW}",
            f"v_lshl_add_u32 v{AZW}, v{AZW}, 4, s58",
            f"v_xor_b32 v{AZR}, s59, v3",
            f"v_lshrrev_b32 v{TA}, 1, v4",
            f"v_lshl_add_u32 v{AZR}, v{TA}, 4, v{AZR}",
            f"v_and_b32 v{TA}, 1, v4",
            f"v_mul_u32_u24 v{TA}, 1040, v{TA}",
            f"v_add_lshl_u32 v{AZR}, v{AZR}, v{TA}, 2",
            f"v_and_b32 v{TB}, 7, v3",
            f"v_lshrrev_b32 v{TA}, 3, v3",
            f"v_mul_u32_u24 v{AVS}, 128, v{TB}",
            f"v_lshl_add_u32 v{AVS}, v{TA}, 6, v{AVS}",
            f"v_lshl_add_u32 v{AVS}, v4, 4, v{AVS}",
            f"v_add_u32 v{K32}, 1, v3",
            f"v_bfe_i32 v{K32}, v{K32}, 4, 1",
            f"v_and_b32 v{K32}, s35, v{K32}",
        ]
        mid_s = [
            "s_lshr_b32 s58, s3, 2", "s_lshl4_add_u32 s58, s3, s58", "s_lshl_b32 s58, s58, 6",
            "s_and_b32 s59, s3, 3", "s_lshl3_add_u32 s59, s3, s59", "s_lshl_b32 s59, s59, 2",
            "s_and_b32 s34, s30, 15", "s_sub_u32 s35, 16, s34", "s_and_b32 s50, s34, 7", "s_cmp_gt_u32 s34, 8",
            "s_cselect_b32 s50, s35, s50",
            "s_and_b32 s34, s34, 8", "s_lshl4_add_u32 s50, s50, s34", "s_lshr_b32 s34, s30, 4", "s_add_u32 s50, s50, s34",
            "s_cmp_eq_u32 s30, 128", "s_cselect_b32 s50, 128, s50", "s_lshl1_add_u32 s29, s50, s44",
            f"s_mul_i32 s50, s29, {VU}", "s_lshl_b32 s34, s3, 10",
            "s_add_u32 s50, s50, s34", f"s_add_u32 s50, s50, {WS_V}",
            "s_and_b32 s29, s29, 255", f"s_lshl2_add_u32 s29, s29, {WS_KB}",
            "s_cmp_eq_u32 s44, 0", f"s_cselect_b32 s35, 0, {f2u(-32.0)}",
        ]
        post_v = [
            "v_bfe_u32 v6, v2, 2, 2",
            "v_lshl_add_u32 v6, v6, 2, v4",
            "v_and_b32 v1, 3, v2",
            "v_lshlrev_b32 v1, 4, v1",
            "v_lshl_add_u32 v6, v6, 18, v1",
            f"v_lshrrev_b32 v{T0}, 3, v3",
            f"v_and_b32 v{T0+1}, 7, v3",
            f"v_lshlrev_b32 v{AO}, 14, v{T0}",
            f"v_lshl_add_u32 v{AO}, v4, 20, v{AO}",
            f"v_lshl_add_u32 v{AO}, v{T0+1}, 3, v{AO}",
        ]
        if Cfg.fullout:
            post_v[-3:] = [f"v_lshlrev_b32 v{AO}, 3, v3", f"v_lshl_add_u32 v{AO}, v4, 20, v{AO}", f"v_mov_b32 v{T0}, 0"]
        post_s = [
            "s_mov_b32 s34, 0x71605432", "s_mov_b32 s35, 0x98fedcba", "s_lshl_b32 s56, s45, 2", "s_lshr_b64 s[34:35], s[34:35], s56",
            "s_and_b32 s34, s34, 15", "s_xor_b32 s45, s45, 8", "s_cmp_eq_u32 s44, 0", "s_cselect_b32 s45, s45, s34",
            "s_sub_u32 s34, 0, s28", "s_and_b32 s34, s34, 7", "s_lshr_b32 s35, s45, 1", "s_cmp_lt_u32 s35, s44",
            "s_cselect_b32 s28, s34, s28",
            "s_sub_u32 s34, 0, s28", "s_and_b32 s34, s34, 7", "s_sub_u32 s35, 31, s45", "s_cmp_eq_u32 s44, 0",
            "s_cselect_b32 s56, s28, s34", "s_cselect_b32 s57, s45, s35",
            "s_lshl4_add_u32 s64, s3, s56", "s_lshl_b32 s64, s64, 11", "s_lshl_b32 s34, s57, 6", "s_add_u32 s64, s64, s34",
            "s_add_u32 s65, s64, 262144", "s_add_u32 s66, s64, 524288", "s_add_u32 s67, s64, 786432",
            "s_mov_b64 s[20:21], s[8:9]", "s_mov_b32 s22, 4194304", "s_mov_b32 s23, 0x20000",
        ]
        val = [f"v_mov_b32 v{T0+r}, 0" for r in range(4)] + [f"v_mov_b32 v7, {L_C}", f"ds_write_b128 v7, {vr(T0,4)}",
            f"v_and_b32 v{AX+4}, 60, v2",
            f"v_and_b32 v{AX+5}, 3, v2",
            f"v_lshl_add_u32 v{AX+4}, v{AX+4}, 1, v{AX+5}",
            f"v_bfe_u32 v{AX+5}, v2, 4, 1",
            f"v_lshl_add_u32 v{AX+4}, v{AX+5}, 2, v{AX+4}",
            f"v_lshlrev_b32 v{AX+4}, 3, v{AX+4}",
            f"v_xor_b32 v{AX+5}, 32, v{AX+4}",
            f"v_add_u32 v{AX}, s53, v{AX+4}",
            f"v_xor_b32 v{AX+1}, 32, v{AX}"] + [f"v_mov_b32 v{SEL+r}, 0x3f803f80" for r in range(4)] + [
            f"v_mov_b32 v{VROW}, s47", f"v_mov_b32 v{T0+10}, 1", f"v_mov_b32 v{T0+11}, 0"]
        sal = ["s_and_b32 s51, s47, 7", "s_bfe_u32 s34, s47, 0x40003", "s_lshl4_add_u32 s51, s51, s34",
               "s_lshr_b32 s34, s47, 7", "s_lshl4_add_u32 s51, s51, s34", f"s_lshl3_add_u32 s51, s51, {WS_ST}",
               "s_lshl_b32 s52, s46, 23", f"s_sub_u32 s52, {f2u(1/8)}, s52",
               "s_mov_b32 s60, 0x80000000", "s_mov_b32 s61, 0xfffff800", "s_mov_b32 s71, 0"]

    def inter(sl, vl):
        for k in range(max(len(sl), len(vl))):
            if k < len(sl):
                a(sl[k])
            if k < len(vl):
                a(vl[k])

    def pairs(lo, hi):
        for k in range(lo, hi):
            if k < len(sal):
                a(sal[k])
            if k < len(val):
                a(val[k])

    def table_reads():
        for k in range(9):
            a(f"ds_read_b128 {vr(F1C+4*k,4)}, v{ATB} offset:{L_T+1024*k}")
    SW, S = DB_ + 8, DB_ + 12

    def ror(v, r):
        a(f"v_add_f32_dpp v{v}, v{v}, v{v} row_ror:{r} row_mask:0xf bank_mask:0xf")
    npairs = max(len(val), len(sal))
    if Cfg.e1:
        late = [x for x in sal if "s[8:9]" in x]
        sal = [x for x in sal if "s[8:9]" not in x]
        pairs(0, Cfg.e1v)
        row_requests()
        if Cfg.mpos == 1:
            a("s_branch F_go")
            m_first()
            a.label("F_go")
        a("s_barrier")
        table_reads()
        poison()
        pairs(Cfg.e1v, npairs)
        for x in late:
            a(x)
        estamp(a, 9)
        a("s_waitcnt vmcnt(3) lgkmcnt(0)")
        estamp(a, 10)
        a("s_barrier")
        stamp(a, 2)
        for be in range(2):
            for u2 in range(2):
                a(f"ds_read_b64_tr_b16 {vr(WR+4*be+2*u2,2)}, v{AX+4+be} offset:{L_WR+1024*u2}")
        nonce(a)
        a(f"s_mov_b32 s63, {f2u(1/1024)}")
        a(f"v_mov_b32 v{T0+9}, s33")
        if Cfg.kprio:
            a(f"s_setprio {Cfg.kprio}")
        a("s_waitcnt vmcnt(1)")
        estamp(a, 11)
    else:
        pairs(0, npairs)
        for k in range(Cfg.pad):
            a(f"v_lshlrev_b32 v{DA_ + k % 8}, 1, v2")
        if Cfg.revpos == 0:
            rev_loads()
        estamp(a, 9)
        a(f"s_waitcnt vmcnt({5 if Cfg.revpos in (0, 3) else 3}) lgkmcnt(0)")
        estamp(a, 10)
        a("s_barrier")
        if Cfg.revpos == 1:
            rev_loads()
        stamp(a, 2)
        for be in range(2):
            for u2 in range(2):
                a(f"ds_read_b64_tr_b16 {vr(WR+4*be+2*u2,2)}, v{AX+4+be} offset:{L_WR+1024*u2}")
        if not Cfg.fastk:
            table_reads()
        if Cfg.revpos == 2:
            rev_loads()
        nonce(a)
        a(f"s_mov_b32 s63, {f2u(1/1024)}")
        a(f"v_mov_b32 v{T0+9}, s33")
        lgk(a, 0 if Cfg.fastk else 9)
        a(f"v_mfma_f32_16x16x32_bf16 {vr(SW,4)}, {vr(SEL,4)}, {vr(WR,4)}, 0")
        a(f"v_mfma_f32_16x16x32_bf16 {vr(SW,4)}, {vr(SEL,4)}, {vr(WR+4,4)}, {vr(SW,4)}")
        if not Cfg.fastk:
            for r in (8, 4, 2, 1):
                ror(SW, r)
        stamp(a, 3)
        if Cfg.kprio:
            a(f"s_setprio {Cfg.kprio}")
        if Cfg.revpos == 4:
            a("s_waitcnt vmcnt(1) lgkmcnt(0)")
            estamp(a, 11)
            if not Cfg.fastk:
                rev_loads()
        else:
            a("s_waitcnt vmcnt(3) lgkmcnt(0)")
    for be in range(2):
        for u2 in range(2):
            a(f"ds_read_b64_tr_b16 {vr(PA+4*be+2*u2,2)}, v{AX+be} offset:{1024*u2}")

    def xp_load(h):
        if h == 0:
            a("s_mov_b32 m0, s53")
            a("s_add_u32 s35, s64, 16384")
            a(f"buffer_load_dwordx4 v6, s[12:15], s64 offen {Cfg.xfl} lds")
        else:
            a("s_add_u32 m0, s53, 1152")
            a("s_add_u32 s35, s64, 16384")
            if Cfg.halfxp:
                a("s_mov_b64 exec, 1")
            a(f"buffer_load_dwordx4 v6, s[12:15], s35 offen {Cfg.xfl} lds")
            if Cfg.halfxp:
                a("s_mov_b64 exec, -1")

    def bc15(v):
        a(f"v_add_f32_dpp v{v}, v{v}, v{v} row_bcast:15 row_mask:0xa bank_mask:0xf")

    def s1(D, P):
        for c, F1 in enumerate((F1C, F1S)):
            for b in range(2):
                a(f"v_mfma_f32_16x16x32_bf16 {vr(D+8*c+4*b,4)}, {vr(P+4*b,4)}, {vr(F1,4)}, 0")
    if (Cfg.fastk or Cfg.e1) and Cfg.revpos == 4:
        rev_loads()
    if Cfg.e1:
        lgk(a, 4)
        a(f"v_mfma_f32_16x16x32_bf16 {vr(SW,4)}, {vr(SEL,4)}, {vr(WR,4)}, 0")
        a(f"v_mfma_f32_16x16x32_bf16 {vr(SW,4)}, {vr(SEL,4)}, {vr(WR+4,4)}, {vr(SW,4)}")
    lgk(a, 2)
    a(f"v_mfma_f32_16x16x32_bf16 {vr(S,4)}, {vr(SEL,4)}, {vr(PA,4)}, 0")
    for j in range(8):
        if j == 4:
            lgk(a, 0)
            a(f"v_mfma_f32_16x16x32_bf16 {vr(S,4)}, {vr(SEL,4)}, {vr(PA+4,4)}, {vr(S,4)}")
        a(f"v_dot2_f32_bf16 v{DW}, v{PA+j}, v{WR+j}, v{DW}")
        a(f"v_dot2_f32_bf16 v{QA}, v{PA+j}, v{PA+j}, v{QA}")
    M, RS, CC = T0+4, T0+3, T0+5
    sw = (lambda r: ror(SW, r)) if (Cfg.fastk or Cfg.e1) else (lambda r: None)
    ror(S, 8)
    sw(8)
    a(f"v_permlane32_swap_b32 v{QA}, v{DW}")
    ror(S, 4)
    a(f"v_add_f32 v{QA}, v{QA}, v{DW}")
    sw(4)
    ror(S, 2)
    ror(QA, 8)
    sw(2)
    ror(S, 1)
    ror(QA, 4)
    sw(1)
    a(f"v_mul_f32 v{M}, {f2u(1/1024)}, v{S}")
    ror(QA, 2)
    a(f"v_mul_f32 v{CC}, -v{M}, v{M}")
    ror(QA, 1)
    a(f"v_mul_f32 v{DW}, v{M}, v{SW}")
    bc15(QA)
    a(f"v_readlane_b32 s34, v{QA}, 48")
    a(f"v_fmamk_f32 v{QA}, v{QA}, {f2u(1/1024)}, v{CC}")
    a(f"v_max_f32 v{QA}, 0, v{QA}")
    a(f"v_add_f32 v{RS}, {f2u(1e-5)}, v{QA}")
    a(f"v_rsq_f32 v{RS}, v{RS}")
    a(f"v_sub_f32 v{DW}, s34, v{DW}")
    a(f"v_mul_f32 v{DW}, v{DW}, v{RS}")
    a(f"v_ashrrev_i32 v{T0+7}, 31, v{DW}")
    a(f"v_bitop3_b32 v{T0+7}, v{DW}, v{T0+7}, s60 bitop3:0x1e")
    a(f"v_and_or_b32 v{T0+7}, v{T0+7}, s61, v{VROW}")
    estamp(a, 13)
    a("s_mov_b64 exec, 0x10000")
    a("s_waitcnt vmcnt(2)")
    if Cfg.stamps and Cfg.early:
        a("s_mov_b64 exec, -1")
        estamp(a, 15)
        a("s_mov_b64 exec, 0x10000")
    a(f"ds_max_u32 v7, v{T0+7}")
    a(f"ds_add_rtn_u32 v{T0+10}, v7, v{T0+10} offset:8")
    a(f"v_cvt_pk_bf16_f32 v{T0+8}, v{M}, v{QA}")
    if Cfg.nostst:
        a(f"s_lshl3_add_u32 s34, s2, s3")
        a(f"s_lshl_b32 s34, s34, 7")
        a(f"s_add_u32 s34, s34, {8 << 20}")
    a(f"buffer_store_dwordx2 {vr(T0+8,2)}, v{T0+11}, s[24:27], {'s34' if Cfg.nostst else 's51'} offen sc1")
    a("s_mov_b64 exec, -1")
    a(f"ds_read_b32 v{T0+6}, v7")
    if Cfg.fastk:
        table_reads()
    a(f"v_mul_f32 v{RS}, s52, v{RS}")
    a(f"v_mul_f32 v{CC}, v{M}, v{RS}")
    a(f"v_readlane_b32 s54, v{RS}, 16")
    a(f"v_readlane_b32 s70, v{CC}, 16")
    if not Cfg.fastk:
        s1(DA_, PA)
    lgk(a, 9 if Cfg.fastk else 0)
    a(f"v_readlane_b32 s34, v{T0+10}, 16")
    a("s_cmp_lg_u32 s34, 7")
    a("s_cbranch_scc0 F_key")
    if Cfg.fastk:
        a.label("F_nokey")
        if Cfg.kprio:
            a("s_setprio 0")
        lgk(a, 7)
        s1(DA_, PA)
        a("s_cmp_lg_u32 s34, 7")
        a("s_waitcnt vmcnt(2) lgkmcnt(0)")
        a("s_cbranch_scc0 F_nokey2")
    estamp(a, 12)
    if Cfg.e2:
        a.label("F_nokey")
        if Cfg.kprio:
            a("s_setprio 0")
        inter(mid_s, mid_v)
        a("s_cmp_lg_u32 s71, 0")
        a("s_cbranch_scc1 F_wkey")
        a("s_waitcnt vmcnt(1)")
        a.label("F_wkey_r")
    else:
        a("s_waitcnt vmcnt(1)")
        a.label("F_nokey2" if Cfg.fastk else "F_nokey")
    if Cfg.diag == 2:
        a("s_branch L_fin")
    if Cfg.kprio and not Cfg.fastk and not Cfg.e2:
        a("s_setprio 0")
    stamp(a, 4)
    for be in range(2):
        for u2 in range(2):
            a(f"ds_read_b64_tr_b16 {vr(PQ+4*be+2*u2,2)}, v{AX+2+be} offset:{2048+1024*(1-u2)}")
    a(f"ds_read_b64_tr_b16 {vr(PB,2)}, v{AY+2} offset:2048")
    a(f"ds_read_b64_tr_b16 {vr(PB+2,2)}, v{AY} offset:2048")
    a(f"ds_read_b64_tr_b16 {vr(PB+4,2)}, v{AY+1} offset:3072")
    a(f"ds_read_b64_tr_b16 {vr(PB+6,2)}, v{AY+1} offset:2048")
    lgk(a, 6)
    a(f"v_mfma_f32_16x16x32_bf16 {vr(S,4)}, {vr(SEL,4)}, {vr(PQ,4)}, 0")
    for j in range(8):
        if j == 4:
            lgk(a, 4)
            a(f"v_mfma_f32_16x16x32_bf16 {vr(S,4)}, {vr(SEL,4)}, {vr(PQ+4,4)}, {vr(S,4)}")
        a(f"v_dot2_f32_bf16 v{QB}, v{PQ+j}, v{PQ+j}, v{QB}")
    a("s_mov_b32 exec_lo, 0xeeeeeeee")
    a("s_mov_b32 exec_hi, 0xeeeeeeee")
    lgk(a, 0)
    for j in range(8):
        a(f"v_mov_b32_dpp v{PB+j}, v{PQ+j} quad_perm:[0,3,2,1] row_mask:0xf bank_mask:0xf")
    a("s_mov_b64 exec, -1")
    if Cfg.xpos in (7, 8):
        xp_load(0)
    if Cfg.xpos == 7:
        xp_load(1)
    a(f"v_add_f32_dpp v{M}, v{S}, v{S} row_ror:8 row_mask:0xf bank_mask:0xf")
    mf = [f"v_mfma_f32_16x16x32_bf16 {vr(DB_+8*c+4*b,4)}, {vr(PB+4*b,4)}, {vr(F1,4)}, 0"
          for c, F1 in enumerate((F1C, F1S)) for b in range(2)]
    ror(QB, 8)
    a(mf[0])
    for k, r in enumerate((4, 2, 1)):
        ror(M, r)
        ror(QB, r)
        a(mf[1+k])
    a(f"v_mul_f32 v{M}, {f2u(1/1024)}, v{M}")
    bc15(QB)
    a(f"v_fmaak_f32 v{CC}, v{M}, v{M}, {f2u(-1e-5)}")
    CV = T0+8
    a(f"v_mul_f32 v{CV}, s70, v{K32}")
    a(f"v_add_f32_dpp v{QB}, v{QB}, v{QB} row_bcast:31 row_mask:0xc bank_mask:0xf")
    a(f"v_fma_f32 v{QB}, v{QB}, s63, -v{CC}")
    a(f"v_max_f32 v{QB}, {f2u(1e-5)}, v{QB}")
    a(f"v_rsq_f32 v{QB}, v{QB}")
    for r in range(8, 16, 2):
        a(f"v_pk_mul_f32 {vr(DA_+r,2)}, {vr(DA_+r,2)}, s[54:55] op_sel:[0,0] op_sel_hi:[1,0]")
        if r == 8:
            a(f"v_mul_f32 v{QB}, s52, v{QB}")
        if r == 10:
            a(f"v_readlane_b32 s55, v{QB}, 48")
    a(f"v_mul_f32 v{M}, s55, v{M}")
    a(f"v_fmac_f32 v{CV}, v{M}, v{K32}")
    a.label("F_pass")
    T, TP, D2, Z = WR, SEL, DB_, WR
    for r in range(0, 8, 2):
        a(f"v_pk_fma_f32 {vr(DA_+r,2)}, {vr(DA_+r,2)}, s[54:55], {vr(CV,2)} op_sel:[0,0,0] op_sel_hi:[1,0,0]")
    for r in range(0, 16, 2):
        a(f"v_pk_fma_f32 {vr(DA_+r,2)}, {vr(DB_+r,2)}, s[54:55], {vr(DA_+r,2)} op_sel:[0,1,0] op_sel_hi:[1,1,1]")
    for r in range(8):
        a(f"v_cvt_pk_f16_f32 v{T+r}, v{DA_+2*r}, v{DA_+2*r+1}")
    for i in range(4):
        a(f"v_pk_mul_f16 v{TP+i}, v{T+i}, v{TWC+i}")
    for i in range(4):
        a(f"v_pk_fma_f16 v{TP+i}, v{T+4+i}, v{TWS+i}, v{TP+i}")
    for i in range(4):
        a(f"v_pk_mul_f16 v{TP+4+i}, v{T+4+i}, v{TWC+i}")
    a(f"v_mfma_f32_16x16x32_f16 {vr(D2,4)}, {vr(TP,4)}, {vr(F2C,4)}, 0")
    a(f"v_mfma_f32_16x16x32_f16 {vr(D2+4,4)}, {vr(TP,4)}, {vr(F2S,4)}, 0")
    for i in range(4):
        a(f"v_pk_fma_f16 v{TP+4+i}, v{T+i}, v{TWS+i}, v{TP+4+i} neg_lo:[1,0,0] neg_hi:[1,0,0]")
    a(f"v_mfma_f32_16x16x32_f16 {vr(D2,4)}, {vr(TP+4,4)}, {vr(F2N,4)}, {vr(D2,4)}")
    a(f"v_mfma_f32_16x16x32_f16 {vr(D2+4,4)}, {vr(TP+4,4)}, {vr(F2C,4)}, {vr(D2+4,4)}")
    for i in range(4):
        a(f"v_cvt_pk_f16_f32 v{Z+i}, v{D2+i}, v{D2+4+i}")
    a(f"ds_write_b128 v{AZW}, {vr(Z,4)} offset:{L_Z}")
    if Cfg.xpos == 9:
        xp_load(0)
    if Cfg.xpos in (8, 9):
        xp_load(1)
    stamp(a, 6)
    a("s_waitcnt lgkmcnt(0)")
    a("s_barrier")
    a(f"ds_read2st64_b32 {vr(Z+4,2)}, v{AZR} offset0:{L_Z//256} offset1:{L_Z//256+4}")
    a(f"ds_read2st64_b32 {vr(Z+6,2)}, v{AZR} offset0:{L_Z//256+8} offset1:{L_Z//256+12}")
    a("s_waitcnt lgkmcnt(0)")
    a(f"v_mfma_f32_16x16x32_f16 {vr(D2+8,4)}, {vr(Z+4,4)}, {vr(R8R,4)}, 0")
    a(f"v_mfma_f32_16x16x32_f16 {vr(D2+12,4)}, {vr(Z+4,4)}, {vr(R8I,4)}, 0")
    for i in range(4):
        a(f"v_cvt_pk_f16_f32 v{TP+i}, v{D2+8+i}, v{D2+12+i}")
    for k in range(Cfg.pad2):
        a(f"v_lshlrev_b32 v{D2 + k % 4}, 1, v2")
    if Cfg.vdel:
        a("s_cmp_ge_u32 s2, 224")
        a("s_cbranch_scc1 F_nvd")
        a(f"s_sleep {Cfg.vdel}")
        a.label("F_nvd")
    a(f"buffer_store_dwordx4 {vr(TP,4)}, v{AVS}, s[24:27], s50 offen sc1")
    if Cfg.noack:
        a("s_cmp_lg_u32 s3, 7")
        a("s_cbranch_scc1 F_nef")
        a("s_cmp_lg_u32 s46, 0")
        a("s_cbranch_scc1 F_nef")
        a(f"v_mov_b32 v{T0}, s33")
        a(f"v_lshlrev_b32 v{T0+1}, 10, v2")
        a(f"s_mov_b32 exec_lo, {hex((1 << Cfg.brep) - 1)}")
        a("s_mov_b32 exec_hi, 0")
        a(f"buffer_store_dword v{T0}, v{T0+1}, s[24:27], s29 offen sc1")
        a("s_mov_b64 exec, -1")
        a.label("F_nef")
    a("s_cmp_lg_u32 s46, 0")
    a("s_cbranch_scc1 F_second")
    stamp(a, 7)

    if Cfg.diag == 3:
        a("s_branch L_fin")
    XP, ST, CA, CX, CB, V, VX = 8, 24, 32, 40, 44, 48, 56
    XF, G, TMP = 60, 76, 92
    DA = 92
    AV, AUW, AUR, AST, AVX = 120, 121, 122, 124, 125
    if Cfg.xpos == 0:
        xp_load(0)
        xp_load(1)
    if Cfg.e2:
        inter(post_s, post_v)
    if Cfg.own1:
        a("s_mov_b32 s16, 0")
    if Cfg.ldg:
        a("s_lshl_b32 s18, s2, 7")
        a(f"s_add_u32 s18, s18, {WS_LD}")
        a("s_cmp_lt_u32 s2, 224")
        a("s_cselect_b32 s19, -1, 0")
    if Cfg.latex:
        assert Cfg.xpos == 5 and Cfg.gfirst and Cfg.midg
        a("s_lshr_b32 s34, s57, 1")
        a("s_lshl4_add_u32 s34, s56, s34")
        a("s_cmp_eq_u32 s34, 63")
        a("s_cselect_b32 s46, 3, 0")
        if Cfg.latex == 2:
            a("s_mov_b32 s46, 3")
        if Cfg.latex == 3:
            a("s_cmp_lt_u32 s2, 224")
            a("s_cselect_b32 s46, 3, s46")
    def xp_pair(k):
        a("s_lshr_b32 s34, s3, 1")
        a("s_lshl2_add_u32 s34, s46, s34")
        a(f"s_cmp_lg_u32 s34, {k}")
        a(f"s_cbranch_scc1 F_xp{k}")
        xp_load(0)
        xp_load(1)
        a.label(f"F_xp{k}")
    if Cfg.nsl:
        xp_pair(0)
    COL, H, TF, CP, PH, MK = range(T0+2, T0+8)
    ANG, STP = T0+8, T0+9
    a(f"v_and_b32 v{COL}, 31, v2")
    a(f"v_lshrrev_b32 v{H}, 5, v2")
    a("s_lshl_b32 s61, s44, 31")
    a(f"s_xor_b32 s60, s61, {f2u(1/2048)}")
    a(f"v_lshrrev_b32 v{TF}, 1, v{COL}")
    a(f"v_lshl_add_u32 v{TF}, v{TF}, 3, s56")
    a(f"v_cvt_f32_u32 v{TF}, v{TF}")
    a(f"v_mul_f32 v{TF}, s60, v{TF}")
    a(f"v_and_b32 v{CP}, 1, v{COL}")
    a(f"v_cvt_f32_u32 v{PH}, v{CP}")
    a("s_sub_u32 s58, 16, s3")
    a("s_cmp_eq_u32 s3, 0")
    a(f"s_cselect_b32 s34, 0, {f2u(0.25)}")
    a("s_cselect_b32 s35, 0, -1")
    a("s_cselect_b32 s58, 8, s58")
    a(f"v_mul_f32 v{PH}, s34, v{PH}")
    a(f"v_mul_f32 v{STP}, {f2u(32.0)}, v{TF}")
    for sec in range(2):
        a(f"v_lshl_add_u32 v{ANG}, v{H}, 4, {'s3' if sec == 0 else 's58'}")
        a(f"v_cvt_f32_u32 v{ANG}, v{ANG}")
        a(f"v_fma_f32 v{ANG}, v{ANG}, v{TF}, {'' if sec == 0 else '-'}v{PH}")
        for jj in range(4):
            a(f"v_cos_f32 v{T0}, v{ANG}")
            a(f"v_sin_f32 v{T0+1}, v{ANG}")
            a(f"v_add_f32 v{ANG}, v{ANG}, v{STP}")
            a(f"v_cvt_pk_f16_f32 v{CA+4*sec+jj}, v{T0}, v{T0+1}")
        if sec == 0 and Cfg.early_b2:
            break
    def stats_addr():
        a(f"v_lshrrev_b32 v{T0+10}, 3, v3")
        a(f"v_lshlrev_b32 v{AST}, 7, v{T0+10}")
        a(f"v_lshl_add_u32 v{AST}, v4, 5, v{AST}")
        a("s_lshl3_add_u32 s59, s56, s3")
        a("s_lshl_b32 s59, s59, 8")
        a(f"s_add_u32 s59, s59, {WS_ST}")
    if Cfg.spos:
        assert Cfg.xpos >= 7
        stats_addr()
        a(f"buffer_load_dwordx4 {vr(ST,4)}, v{AST}, s[24:27], s59 offen sc1")
        a(f"buffer_load_dwordx4 {vr(ST+4,4)}, v{AST}, s[24:27], s59 offen offset:16 sc1")

    def p2_setup():
        if Cfg.early_b2:
            a(f"v_lshl_add_u32 v{ANG}, v{H}, 4, s58")
            a(f"v_cvt_f32_u32 v{ANG}, v{ANG}")
            a(f"v_fma_f32 v{ANG}, v{ANG}, v{TF}, -v{PH}")
            for jj in range(4):
                a(f"v_cos_f32 v{T0}, v{ANG}")
                a(f"v_sin_f32 v{T0+1}, v{ANG}")
                a(f"v_add_f32 v{ANG}, v{ANG}, v{STP}")
                a(f"v_cvt_pk_f16_f32 v{CA+4+jj}, v{T0}, v{T0+1}")
        a("s_cmp_lg_u32 s3, 0")
        a("s_cbranch_scc1 F_now0")
        a(f"v_mul_f32 v{ANG}, {f2u(128.0)}, v{TF}")
        a(f"v_cos_f32 v{T0}, v{ANG}")
        a(f"v_sin_f32 v{T0+1}, v{ANG}")
        a(f"v_add_u32 v{MK}, -1, v{CP}")
        for jj in range(4):
            a(f"v_and_b32 v{CA+jj}, v{CA+jj}, v{MK}")
            a(f"v_bfi_b32 v{CA+4+jj}, v{MK}, 0, v{CA+4+jj}")
        a(f"v_or_b32 v{MK}, v{CP}, v{H}")
        a(f"v_add_u32 v{MK}, -1, v{MK}")
        a(f"v_cvt_pk_f16_f32 v{CX}, v{T0}, v{T0+1}")
        a(f"v_and_b32 v{CX}, v{CX}, v{MK}")
        for r in range(1, 4):
            a(f"v_mov_b32 v{CX+r}, 0")
            a(f"v_mov_b32 v{VX+r}, 0")
        a.label("F_now0")
        if Cfg.nsl == 1:
            xp_pair(3)
        a(f"s_xor_b32 s60, s61, {f2u(1/16)}")
        a(f"v_cvt_f32_u32 v{STP}, v3")
        a(f"v_mul_f32 v{STP}, s60, v{STP}")
        a(f"v_lshlrev_b32 v{ANG}, 1, v4")
        a(f"v_cvt_f32_u32 v{ANG}, v{ANG}")
        a(f"v_mul_f32 v{ANG}, v{ANG}, v{STP}")
        a(f"v_add_f32 v{STP}, v{ANG}, v{STP}")
        a(f"v_cos_f32 v{T0}, v{ANG}")
        a(f"v_sin_f32 v{T0+1}, v{ANG}")
        a(f"v_cos_f32 v{PH}, v{STP}")
        a(f"v_sin_f32 v{MK}, v{STP}")
        a(f"v_cvt_pk_f16_f32 v{CB}, v{T0}, v{T0+1}")
        a("s_mov_b32 s34, 0x3c003c00")
        a(f"v_cvt_pk_f16_f32 v{CB+1}, v{PH}, v{MK}")
        a("s_mov_b64 exec, 0xffff")
        a(f"v_lshl_or_b32 v{CB}, v3, 31, s34")
        a("s_mov_b64 exec, -1")
        a(f"v_lshl_add_u32 v{AUR}, s3, 1, v{T0+10}")
        a(f"v_mul_u32_u24 v{AUR}, 1280, v{AUR}")
        a(f"v_mul_u32_u24 v{T0}, 272, v4")
        a(f"v_and_b32 v{T0+1}, 7, v3")
        a(f"v_lshlrev_b32 v{T0+1}, 5, v{T0+1}")
        a(f"v_add3_u32 v{AUR}, v{AUR}, v{T0}, v{T0+1}")
        a("s_lshr_b32 s34, s3, 1")
        a("s_mul_i32 s34, s34, 272")
        a("s_and_b32 s35, s3, 1")
        a("s_lshl2_add_u32 s34, s35, s34")
        a(f"v_mul_u32_u24 v{AUW}, 2560, v{H}")
        a(f"v_lshl_add_u32 v{AUW}, v{COL}, 3, v{AUW}")
        a(f"v_add_u32 v{AUW}, s34, v{AUW}")
        a("s_cmp_eq_u32 s44, 0")
        a("s_cselect_b32 s34, 0, 31")
        a("s_cselect_b32 s35, -1, 0")
        a("s_lshl_b32 s60, s45, 5")
        a("s_add_u32 s35, s35, s60")
        a(f"v_xor_b32 v{T0}, s34, v{COL}")
        a(f"v_add_u32 v{T0}, s35, v{T0}")
        a(f"v_max_i32 v{T0}, 0, v{T0}")
        if Cfg.vfull == 2:
            a(f"v_bfe_u32 v{AVX}, v{T0}, 4, 1")
            a(f"v_mul_u32_u24 v{AVX}, {VU}, v{AVX}")
            a(f"v_lshrrev_b32 v{T0+1}, 6, v{T0}")
            a(f"v_lshl_add_u32 v{AVX}, v{T0+1}, 10, v{AVX}")
            a(f"v_bfe_u32 v{T0+1}, v{T0}, 5, 1")
            a(f"v_lshl_add_u32 v{AVX}, v{T0+1}, 6, v{AVX}")
            a(f"v_and_b32 v{T0}, 15, v{T0}")
        elif Cfg.vfull:
            a(f"v_lshrrev_b32 v{T0+1}, 6, v{T0}")
            a(f"v_bfe_u32 v{AVX}, v{T0}, 4, 1")
            a(f"v_lshl_add_u32 v{AVX}, v{T0+1}, 1, v{AVX}")
            a(f"v_mul_u32_u24 v{AVX}, {VB}, v{AVX}")
            a(f"v_bfe_u32 v{T0+1}, v{T0}, 5, 1")
            a(f"v_lshl_add_u32 v{AVX}, v{T0+1}, 6, v{AVX}")
            a(f"v_and_b32 v{T0}, 15, v{T0}")
        else:
            a(f"v_lshrrev_b32 v{AVX}, 5, v{T0}")
            a(f"v_mul_u32_u24 v{AVX}, {VB}, v{AVX}")
            a(f"v_and_b32 v{T0}, 31, v{T0}")
        a(f"v_lshl_add_u32 v{AVX}, v{T0}, 2, v{AVX}")
        if Cfg.vfull == 2:
            a(f"v_mul_u32_u24 v{AV}, {2*VU}, v{H}")
            a(f"v_add_u32 v{AV}, v{AV}, v{AVX}")
            a("s_lshl_b32 s58, s28, 7")
            a(f"s_add_u32 s58, s58, {WS_V}")
            a(f"s_add_u32 s60, s58, {256*VU}")
            a(f"s_mul_i32 s34, s3, {32*VU}")
        else:
            a(f"v_lshl_add_u32 v{AV}, v{H}, 7, v{AVX}")
            a(f"s_mul_i32 s58, s28, {16*VB}")
            a(f"s_add_u32 s58, s58, {WS_V}")
            a("s_add_u32 s60, s58, 16384")
            a("s_lshl_b32 s34, s3, 11")
        a("s_add_u32 s58, s58, s34")
        a("s_lshl4_add_u32 s47, s3, s56")
        a("s_lshl_b32 s48, s57, 7")
        a(f"s_add_u32 s49, s48, {WS_H2}")
        a(f"s_lshl1_add_u32 s48, s48, {WS_N2}")
        a("s_add_u32 s52, s48, 128")
        a(f"s_and_b32 s34, s2, {Cfg.brep-1}")
        a("s_lshl3_add_u32 s34, s34, s3")
        a("s_lshl_b32 s34, s34, 7")
        a(f"s_add_u32 s34, s34, {WS_KB}")
        if Cfg.fpf:
            a("s_mov_b64 s[16:17], s[42:43]")
            a("s_mov_b32 s18, 7340032")
        a("s_add_u32 s42, s10, s34")
        a("s_addc_u32 s43, s11, 0")
        a("s_mov_b32 s40, s33")
        a("s_mov_b32 s41, s33")
        a("s_and_b32 s63, s2, 31")
        a("s_lshl_b32 s63, s63, 7")
        a(f"s_add_u32 s63, s63, {WS_RES}")

    def free_prefetch():
        a("s_cmp_lt_u32 s2, 224")
        a("s_cbranch_scc1 F_npf")
        a("s_cmp_eq_u32 s3, 7")
        a("s_cbranch_scc1 F_npf")
        a("s_bfe_u32 s34, s2, 0x20003")
        a("s_mul_i32 s34, s34, 7")
        a("s_add_u32 s34, s34, s3")
        a("s_and_b32 s35, s2, 7")
        a("s_lshl3_add_u32 s34, s34, s35")
        a("s_and_b32 s35, s34, 3")
        if Cfg.dxor:
            a("s_xor_b32 s35, s35, 1")
        a("s_lshr_b32 s34, s34, 2")
        a("s_lshl_b32 s34, s34, 8")
        a("s_add_u32 s34, s34, s35")
        a("s_lshl_b32 s34, s34, 9")
        a(f"s_mov_b32 m0, {LDS_BYTES - 256}")
        b_ = 1 if Cfg.fboth else 0
        a(f"v_lshrrev_b32 v1, {2+b_}, v2")
        a(f"v_and_b32 v5, {(4 << b_) - 1}, v2")
        a(f"v_lshlrev_b32 v5, {7-b_}, v5")
        a("v_lshl_add_u32 v5, v1, 11, v5")
        for k in range(Cfg.fpf << b_):
            a(f"s_add_u32 s35, s34, {131072 - (k+1)*(32768 >> b_)}")
            a("buffer_load_dword v5, s[16:19], s35 offen lds")
        a.label("F_npf")

    def staggered(name):
        a(f"s_and_b32 s34, s3, {7 if Cfg.xpos == 6 else 3}")
        a.label(name)
        a("s_cmp_eq_u32 s34, 0")
        a(f"s_cbranch_scc1 {name}_d")
        a(f"s_sleep {Cfg.stag}")
        a("s_sub_u32 s34, s34, 1")
        a(f"s_branch {name}")
        a.label(name + "_d")
        xp_load(0)
        xp_load(1)
    if Cfg.noack:
        a("s_barrier")
        if Cfg.xpos == 6:
            if Cfg.xdel:
                a(f"s_sleep {Cfg.xdel}")
            staggered("F_sg6")
    else:
        a(f"v_mov_b32 v{V}, s33")
        a(f"v_lshlrev_b32 v{V+1}, 10, v2")
        if Cfg.xpos == 5:
            a("s_lshl2_add_u32 s34, s46, s3")
            a("s_cmp_ge_u32 s34, 4")
            a("s_cbranch_scc1 F_x5a")
            if Cfg.nsl:
                xp_pair(1)
            else:
                staggered("F_sg0")
            if Cfg.allpre:
                a.label("F_x5a")
                stats_addr()
                p2_setup()
                a("s_lshl2_add_u32 s34, s46, s3")
                a("s_cmp_lt_u32 s34, 4")
                a("s_waitcnt vmcnt(2)")
                a("s_cbranch_scc1 F_x5b")
            else:
                a("s_waitcnt vmcnt(2)")
                a("s_branch F_x5b")
                a.label("F_x5a")
            a("s_waitcnt vmcnt(0)")
            a.label("F_x5b")
        elif Cfg.allpre:
            stats_addr()
            p2_setup()
        a("s_cmp_lg_u32 s3, 7")
        if Cfg.xpos != 5:
            a(f"s_waitcnt vmcnt({2 if Cfg.xpos == 0 or Cfg.spos else 0})")
        a("s_barrier")
        a("s_cbranch_scc1 F_noflag")
        if Cfg.brep < 64:
            a(f"s_mov_b32 exec_lo, {hex((1 << Cfg.brep) - 1)}")
            a("s_mov_b32 exec_hi, 0")
        a(f"buffer_store_dword v{V}, v{V+1}, s[24:27], s29 offen sc1")
        a("s_mov_b64 exec, -1")
        a.label("F_noflag")
    stamp(a, 8)
    if Cfg.diag == 4:
        a("s_branch L_fin")
    if Cfg.xpos == 2:
        xp_load(0)
        xp_load(1)
    if Cfg.xpos == 5:
        a("s_lshr_b32 s34, s3, s46")
        a("s_cmp_lt_u32 s34, 4")
        a("s_cbranch_scc1 F_x5c")
        if Cfg.nsl:
            xp_pair(2)
        else:
            staggered("F_sg1")
        a.label("F_x5c")
    if not Cfg.spos and not Cfg.allpre:
        stats_addr()
    a("s_mov_b32 s62, 0")
    if Cfg.spos:
        a("s_branch F_stats_i")
    a.label("F_stats")
    if Cfg.nostat:
        for r in range(4):
            a(f"v_mov_b32 v{ST+2*r}, 0x3b200000")
            a(f"v_mov_b32 v{ST+2*r+1}, s33")
    else:
        a(f"buffer_load_dwordx4 {vr(ST,4)}, v{AST}, s[24:27], s59 offen sc1")
        a(f"buffer_load_dwordx4 {vr(ST+4,4)}, v{AST}, s[24:27], s59 offen offset:16 sc1")
    a("s_cmp_lg_u32 s62, 0")
    a("s_cbranch_scc1 F_stats_w")
    a.label("F_stats_i")
    if not Cfg.allpre:
        p2_setup()

    def flag_req():
        a("s_load_dwordx16 s[68:83], s[42:43], 0 glc")
        a("s_load_dwordx16 s[84:99], s[42:43], 64 glc")
        if Cfg.ldg:
            a("s_load_dword s17, s[10:11], s18 glc")

    def v_fetch():
        if Cfg.rdel:
            a(f"s_sleep {Cfg.rdel}")
        a("s_mov_b32 s62, 0")
        if Cfg.midg:
            a("s_cmp_eq_u32 s46, 2")
            a("s_cbranch_scc1 F_fetched")
            a("s_branch F_poll_w")
        elif Cfg.pre:
            a("s_branch F_poll_w")
        a.label("F_poll")
        flag_req()
        a.label("F_poll_w")
        a("s_waitcnt lgkmcnt(0)")
        if Cfg.ldg:
            a("s_xor_b32 s17, s17, s33")
            a(f"s_cmp_lt_u32 s62, {Cfg.ldcap}")
            a("s_cselect_b32 s17, s17, 0")
            a("s_and_b32 s17, s17, s19")
        a("s_xor_b64 s[68:69], s[68:69], s[40:41]")
        if Cfg.ldg:
            a("s_or_b32 s68, s68, s17")
        for k in range(1, 16):
            a(f"s_xor_b64 s[{68+2*k}:{69+2*k}], s[{68+2*k}:{69+2*k}], s[40:41]")
            a(f"s_or_b64 s[68:69], s[68:69], s[{68+2*k}:{69+2*k}]")
        a("s_cbranch_scc0 F_rel")
        if Cfg.midg:
            a("s_cmp_lg_u32 s46, 0")
            a("s_cbranch_scc1 F_poll_n")
            a("s_mov_b32 s46, 1")
            flag_req()
            a("s_branch F_mid")
            a.label("F_poll_n")
        if Cfg.hyb:
            a("s_getreg_b32 s34, hwreg(HW_REG_IB_STS, 0, 4)")
            a("s_or_b32 s34, s34, s46")
            a("s_cbranch_scc0 F_early_no")
        a("s_add_u32 s62, s62, 1")
        if Cfg.psl:
            a(f"s_sleep {Cfg.psl}")
        a(f"s_cmp_lt_u32 s62, {SPIN_CAP}")
        a("s_cbranch_scc1 F_poll")
        a.label("F_rel")
        if Cfg.edel:
            a("s_cmp_eq_u32 s62, 0")
            a("s_cbranch_scc1 F_ned")
            a(f"s_sleep {Cfg.edel}")
            a.label("F_ned")
        stamp(a, 11)
        if Cfg.diag == 5:
            a("s_branch L_fin")
        if Cfg.xpos == 3:
            xp_load(0)
            xp_load(1)
        if Cfg.latex:
            a("s_cmp_lg_u32 s46, 3")
            a("s_cbranch_scc1 F_nlx")
            xp_load(0)
            xp_load(1)
            a.label("F_nlx")
        for n in range(8):
            if Cfg.vfull == 2:
                a(f"buffer_load_dword v{V+n}, v{AV}, s[24:27], s58 offen sc1")
                if n < 7:
                    a(f"s_add_u32 s58, s58, {4*VU}")
            else:
                a(f"buffer_load_dword v{V+n}, v{AV}, s[24:27], s58 offen offset:{256*n} sc1")
        if Cfg.gfirst:
            a("s_load_dwordx2 s[36:37], s[10:11], s63")
        a("s_cmp_lg_u32 s3, 0")
        a("s_cbranch_scc1 F_novx")
        a(f"buffer_load_dword v{VX}, v{AVX}, s[24:27], s60 offen sc1")
        a.label("F_novx")
        if Cfg.latex:
            a("s_cmp_eq_u32 s46, 3")
            a("s_cbranch_scc1 F_lx")
        if Cfg.midg:
            a("s_cmp_eq_u32 s46, 0")
            a("s_mov_b32 s46, 2")
            a("s_cbranch_scc1 F_mid")
        if Cfg.hyb:
            a("s_cmp_eq_u32 s46, 0")
            a("s_cbranch_scc1 F_early_ok")
    if Cfg.nsl == 2:
        xp_pair(3)
    a(f"v_mul_u32_u24 v{T0}, 1152, v{T0+10}")
    a(f"v_lshl_add_u32 v{T0}, v4, 6, v{T0}")
    a(f"v_and_b32 v{T0+1}, 7, v3")
    a(f"v_lshlrev_b32 v{T0+1}, 3, v{T0+1}")
    a(f"v_add3_u32 v{T0}, v{T0}, v{T0+1}, s53")
    if Cfg.xpos == 4:
        if Cfg.xdel:
            a(f"s_sleep {Cfg.xdel}")
        xp_load(0)
        xp_load(1)
    if Cfg.gfirst and Cfg.hyb:
        a("s_branch F_fetch")
        a.label("F_early_ok")
        a("s_mov_b32 s46, 2")
        a("s_waitcnt vmcnt(8) lgkmcnt(0)")
        a("s_branch F_early_c")
        a.label("F_early_no")
        a("s_waitcnt vmcnt(0)")
        a.label("F_early_c")
        a("s_mov_b32 s62, 0")
    elif Cfg.gfirst:
        if Cfg.latex:
            a("s_cmp_eq_u32 s46, 3")
            a("s_cbranch_scc1 F_poll")
        a(f"s_waitcnt vmcnt({0 if Cfg.xpos == 4 or Cfg.nsl else 2})")
        a.label("F_xt")
    else:
        v_fetch()
        a("s_mov_b32 s62, 0")
        a("s_waitcnt vmcnt(8)")
    for i in range(4):
        a(f"ds_read_b64 {vr(XP+2*i,2)}, v{T0} offset:{256*i}")
    for i in range(4):
        lgk(a, 3-i)
        for p in range(2):
            a(f"v_lshlrev_b32 v{XF+8*p+i}, 16, v{XP+2*i+p}")
            a(f"v_and_b32 v{XF+8*p+4+i}, 0xffff0000, v{XP+2*i+p}")
    if not Cfg.gfirst:
        a("s_load_dwordx2 s[36:37], s[10:11], s63")
    if not Cfg.gfirst or Cfg.hyb:
        a("s_branch F_stats_c")
    if Cfg.spos:
        a("s_cmp_eq_u32 s3, 7")
        a("s_waitcnt vmcnt(1)")
        a("s_cbranch_scc1 F_stats_c")
    a.label("F_stats_w")
    if not Cfg.nostat:
        a("s_waitcnt vmcnt(0)")
    a.label("F_stats_c")
    a(f"v_xor_b32 v{T0}, s33, v{ST+1}")
    a(f"v_xor_b32 v{T0+1}, s33, v{ST+3}")
    a(f"v_xor_b32 v{T0+2}, s33, v{ST+5}")
    a(f"v_xor_b32 v{T0+3}, s33, v{ST+7}")
    a(f"v_or3_b32 v{T0}, v{T0}, v{T0+1}, v{T0+2}")
    a(f"v_or_b32 v{T0}, v{T0}, v{T0+3}")
    a(f"v_cmp_ne_u32 vcc, 0, v{T0}")
    spin_tail(a, "F_stats", "F_stats_d", sleep=4)
    a.label("F_stats_d")
    if Cfg.fpf:
        free_prefetch()
    if Cfg.pf2:
        a("s_cmp_lt_u32 s2, 224")
        a("s_cbranch_scc1 F_npf2")
        a("s_cmp_gt_u32 s3, 1")
        a("s_cbranch_scc1 F_npf2")
        a("s_getpc_b64 s[6:7]")
        a.label("L_pc2")
        a(f"s_mov_b32 m0, {LDS_BYTES - 256}")
        a(f"v_lshlrev_b32 v{T0+2}, 7, v0")
        a(f"v_min_u32 v{T0+2}, L_end-L_pc2, v{T0+2}")
        a(f"v_mov_b32 v{T0+3}, s7")
        a(f"v_add_co_u32 v{T0+2}, vcc, s6, v{T0+2}")
        a(f"v_addc_co_u32 v{T0+3}, vcc, 0, v{T0+3}, vcc")
        a(f"global_load_lds_dword {vr(T0+2,2)}, off sc1")
        a.label("F_npf2")
    if Cfg.noflag:
        a("s_cmp_eq_u32 s46, 2")
        a("s_cbranch_scc1 F_nfl")
        stamp(a, 11)
        for n in range(8):
            a(f"buffer_load_dword v{V+n}, v{AV}, s[24:27], s58 offen sc1")
            if n < 7:
                a(f"s_add_u32 s58, s58, {4*VU}")
        a("s_load_dwordx2 s[36:37], s[10:11], s63")
        a("s_cmp_lg_u32 s3, 0")
        a("s_cbranch_scc1 F_nfx")
        a(f"buffer_load_dword v{VX}, v{AVX}, s[24:27], s60 offen sc1")
        a.label("F_nfx")
        a("s_mov_b32 s46, 2")
        a.label("F_nfl")
    if Cfg.pre:
        a("s_cmp_eq_u32 s46, 2")
        a("s_cbranch_scc1 F_npre")
        flag_req()
        a.label("F_npre")
    stamp(a, 9)
    RC = 16
    a(f"s_mov_b32 s34, {f2u(-LOG2E/8)}")
    a(f"v_mov_b32 v{T0}, {f2u(1e-5/64)}")
    for i in range(4):
        a(f"v_and_b32 v{RC+i}, 0xffff0000, v{ST+2*i}")
        a(f"v_fmamk_f32 v{RC+i}, v{RC+i}, {f2u(1/64)}, v{T0}")
    for i in range(4):
        a(f"v_rsq_f32 v{RC+i}, v{RC+i}")
        a(f"v_lshlrev_b32 v{RC+4+i}, 16, v{ST+2*i}")
    for i in range(0, 4, 2):
        a(f"v_pk_mul_f32 {vr(RC+4+i,2)}, {vr(RC+4+i,2)}, {vr(RC+i,2)} neg_lo:[1,0] neg_hi:[1,0]")
    for i in range(0, 8, 2):
        a(f"v_pk_mul_f32 {vr(ST+i,2)}, {vr(RC+i,2)}, s[34:35] op_sel:[0,0] op_sel_hi:[1,0]")
    for r in range(0, 16, 2):
        i = r % 4
        a(f"v_pk_fma_f32 {vr(TMP+r,2)}, {vr(XF+r,2)}, {vr(ST+i,2)}, {vr(ST+4+i,2)}")
    for r in range(16):
        a(f"v_exp_f32 v{TMP+r}, v{TMP+r}")
        if r % 2 == 1:
            i = (r-1) % 4
            a(f"v_pk_fma_f32 {vr(G+r-1,2)}, {vr(XF+r-1,2)}, {vr(RC+i,2)}, {vr(RC+4+i,2)}")
    if Cfg.midg:
        a("s_mov_b32 s62, 0")
        a("s_cmp_lg_u32 s46, 2")
        a("s_cbranch_scc1 F_poll_w")
        a.label("F_mid")
    for r in range(0, 16, 2):
        a(f"v_pk_add_f32 {vr(TMP+r,2)}, {vr(TMP+r,2)}, 1.0 op_sel_hi:[1,0]")
    for r in range(16):
        a(f"v_rcp_f32 v{TMP+r}, v{TMP+r}")
    for r in range(0, 16, 2):
        a(f"v_pk_mul_f32 {vr(G+r,2)}, {vr(G+r,2)}, {vr(TMP+r,2)}")
    stamp(a, 10)
    if Cfg.gfirst and Cfg.hyb:
        a("s_cmp_eq_u32 s46, 2")
        a("s_cbranch_scc1 F_fetched")
        a("s_mov_b32 s46, 1")
        a.label("F_fetch")
    if Cfg.gfirst:
        v_fetch()
        a.label("F_fetched")
    if Cfg.gate:
        a("s_load_dwordx16 s[68:83], s[42:43], 32768 glc")
        a("s_load_dwordx16 s[84:99], s[42:43], 32832 glc")
    a("s_cmp_lg_u32 s3, 0")
    a("s_cbranch_scc1 F_A")
    a("s_waitcnt vmcnt(0)")
    a(f"v_mfma_f32_32x32x16_f16 {vr(DA,16)}, {vr(CX,4)}, {vr(VX,4)}, 0")
    a(f"v_mfma_f32_32x32x16_f16 {vr(DA,16)}, {vr(CA,4)}, {vr(V,4)}, {vr(DA,16)}")
    a("s_branch F_A2")
    a.label("F_A")
    a("s_waitcnt vmcnt(4)")
    a(f"v_mfma_f32_32x32x16_f16 {vr(DA,16)}, {vr(CA,4)}, {vr(V,4)}, 0")
    a("s_waitcnt vmcnt(0)")
    a.label("F_A2")
    stamp(a, 12)
    a(f"v_mfma_f32_32x32x16_f16 {vr(DA,16)}, {vr(CA+4,4)}, {vr(V+4,4)}, {vr(DA,16)}")
    if Cfg.eh:
        a("s_waitcnt lgkmcnt(0)")
        a("s_and_b32 s34, s36, 0x77")
        a("s_cmp_eq_u32 s34, s47")
        a("s_cbranch_scc1 F_eh")
        a.label("F_eh_r")
    for rho in range(0, 8, 2):
        a(f"v_cvt_pk_f16_f32 v{V+rho}, v{DA+2*rho}, v{DA+2*rho+1}")
        a(f"v_cvt_pk_f16_f32 v{V+rho+1}, v{DA+2*rho+2}, v{DA+2*rho+3}")
        o = L_U//256 + 20*(rho >> 1)
        a(f"ds_write2st64_b32 v{AUW}, v{V+rho}, v{V+rho+1} offset0:{o} offset1:{o+5}")
    if Cfg.sdel:
        a("s_cmp_eq_u32 s62, 0")
        a("s_cbranch_scc1 F_nsd")
        a(f"s_sleep {Cfg.sdel}")
        a.label("F_nsd")
    if Cfg.gate:
        a("s_mov_b32 s62, 0")
        a("s_cmp_eq_u32 s3, 7")
        a("s_cbranch_scc1 F_gate_d")
        a.label("F_gate")
        a("s_waitcnt lgkmcnt(0)")
        a("s_xor_b64 s[68:69], s[68:69], s[40:41]")
        for k in range(1, 16):
            a(f"s_xor_b64 s[{68+2*k}:{69+2*k}], s[{68+2*k}:{69+2*k}], s[40:41]")
            a(f"s_or_b64 s[68:69], s[68:69], s[{68+2*k}:{69+2*k}]")
        a("s_cbranch_scc0 F_gate_d")
        if Cfg.gsl:
            a(f"s_sleep {Cfg.gsl}")
        a("s_load_dwordx16 s[68:83], s[42:43], 32768 glc")
        a("s_load_dwordx16 s[84:99], s[42:43], 32832 glc")
        a("s_add_u32 s62, s62, 1")
        a("s_cmp_lt_u32 s62, 64")
        a("s_cbranch_scc1 F_gate")
        a.label("F_gate_d")
    a("s_waitcnt lgkmcnt(0)")
    a("s_barrier")
    a(f"ds_read_b128 {vr(V,4)}, v{AUR} offset:{L_U}")
    a(f"ds_read_b128 {vr(V+4,4)}, v{AUR} offset:{L_U+16}")
    Y = DA
    lgk(a, 1)
    for x in range(4):
        if x == 2:
            lgk(a, 0)
        a(f"v_mfma_f32_16x16x16_f16 {vr(Y+4*x,4)}, {vr(CB,2)}, {vr(V+2*x,2)}, 0")
    if Cfg.diag == 6:
        a("s_branch L_fin")
    a("s_and_b32 s34, s36, 0x77")
    a("s_cmp_lg_u32 s34, s47")
    a("s_cbranch_scc1 F_noh")
    if Cfg.eh:
        a("s_mul_i32 s50, s33, 28")
        for k in list(range(68, 82)) + list(range(84, 98)):
            a(f"s_sub_u32 s50, s50, s{k}")
        a("s_cmp_eq_u32 s50, 0")
        a("s_cbranch_scc1 F_own" if Cfg.own1 else "s_cbranch_scc1 F_noh")
    if Cfg.n2:
        a("s_load_dwordx16 s[68:83], s[10:11], s48 glc")
        a("s_load_dwordx16 s[84:99], s[10:11], s52 glc")
    a.label("F_noh")
    a("s_cmp_eq_u32 s57, 0")
    a("s_cbranch_scc1 F_zero")
    a.label("F_nz")
    O = 32
    for ih in range(0, 4, 2):
        for x in range(4):
            r = 4*x + ih
            a(f"v_pk_fma_f32 {vr(XF+r,2)}, {vr(Y+r,2)}, {vr(G+r,2)}, {vr(XF+r,2)}")
        for i in (ih, ih+1):
            for p in range(2):
                a(f"v_cvt_pk_bf16_f32 v{O+2*i+p}, v{XF+8*p+i}, v{XF+8*p+4+i}")
            if Cfg.fullout and i == 0:
                a("s_lshr_b32 s34, s57, 1")
                a("s_lshl_b32 s34, s34, 7")
                a("s_and_b32 s35, s57, 1")
                a("s_lshl_b32 s35, s35, 14")
                a("s_add_u32 s34, s34, s35")
                a("s_lshl4_add_u32 s35, s3, s56")
                a("s_lshl_b32 s35, s35, 11")
                a("s_add_u32 s34, s34, s35")
                for q_ in range(4):
                    a(f"s_add_u32 s{64+q_}, s34, {262144*q_}")
            a(f"buffer_store_dwordx2 {vr(O+2*i,2)}, v{AO}, s[20:23], s{64+i} offen {Cfg.out_flag}")
    stamp(a, 13)
    if Cfg.diag == 1:
        a("s_branch L_fin")
    a("s_mov_b32 s62, 0")
    if Cfg.own1:
        a("s_cmp_lg_u32 s16, 0")
        a("s_cbranch_scc1 F_own2")
    a.label("F_res")
    a("s_cmp_eq_u32 s37, s33")
    a("s_cbranch_scc1 F_res_d")
    a("s_load_dwordx2 s[36:37], s[10:11], s63 glc")
    a("s_add_u32 s62, s62, 1")
    a(f"s_cmp_lt_u32 s62, {SPIN_CAP}")
    a("s_waitcnt lgkmcnt(0)")
    a("s_cbranch_scc1 F_res")
    a.label("F_res_d")
    a("s_and_b32 s34, s36, 0x77")
    a("s_cmp_lg_u32 s34, s47")
    a("s_cbranch_scc1 L_fin")
    P, YS, Q, AG, SG, XV, XN, YV, AS = 60, 40, 88, T0, T0+1, T0+2, T0+3, T0+4, T0+5
    AW = T0 + 6
    PL = [8, 12, 24, 28, 48, 52, 56] if Cfg.own1 else [P + 4*k for k in range(7)]

    def gather_addr():
        a(f"v_lshrrev_b32 v{AG}, 3, v2")
        a(f"v_lshlrev_b32 v{AG}, 12, v{AG}")
        a(f"v_and_b32 v{SG}, 0x70, v{ATB}")
        a(f"v_add_u32 v{AG}, v{AG}, v{SG}")

    def gather_req():
        a("s_mov_b32 s34, s49")
        for k in range(7):
            a(f"buffer_load_dwordx4 {vr(PL[k],4)}, v{AG}, s[24:27], s34 offen sc1")
            if k < 6:
                a("s_add_u32 s34, s34, 32768")

    def prep():
        a("s_bfe_u32 s38, s36, 0x20007")
        a("s_bfe_u32 s39, s36, 0x20009")
        a("s_bfe_u32 s51, s36, 0x10003")
        a("s_set_gpr_idx_on s38, 1")
        for x in range(4):
            a(f"v_mov_b32 v{YS+x}, v{Y+4*x}")
        a(f"v_mov_b32 v{YS+4}, v{RC}")
        a(f"v_mov_b32 v{YS+5}, v{RC+4}")
        a("s_set_gpr_idx_off")
        a("s_lshl1_add_u32 s34, s39, s51")
        a("s_lshl_b32 s44, s34, 3")
        a(f"v_add_u32 v{AW}, s53, v{ATB}")
        a(f"ds_write_b128 v{AW}, {vr(YS,4)} offset:2560")
        a(f"v_and_b32 v{AS}, 7, v2")
        a(f"v_lshl_add_u32 v{AS}, v{AS}, 2, v4")
        a("s_lshl4_add_u32 s34, s44, s53")
        a(f"v_lshl_add_u32 v{YV}, v{AS}, 2, s34")
        a(f"ds_read_b32 v{YV}, v{YV} offset:2560")
        a("s_lshl2_add_u32 s34, s38, s39")
        a("s_lshl_b32 s34, s34, 6")
        a("s_mul_i32 s35, s51, 1152")
        a("s_add_u32 s34, s34, s35")
        a("s_add_u32 s34, s34, s53")
        a(f"v_lshlrev_b32 v{AS}, 1, v{AS}")
        a(f"v_add_u32 v{XV}, s34, v{AS}")
        a(f"ds_read_u16 v{XV}, v{XV}")
        a(f"v_readlane_b32 s45, v{YS+4}, s44")
        a(f"v_readlane_b32 s46, v{YS+5}, s44")
    if not Cfg.fin2:
        prep()
    gather_addr()
    if Cfg.eh:
        a("s_cmp_eq_u32 s50, 0")
        a("s_cbranch_scc1 F_n2_d")
    a("s_mul_i32 s50, s33, 28")
    a("s_mov_b32 s62, 0")
    a.label("F_n2")
    a("s_waitcnt lgkmcnt(0)")
    if Cfg.n2:
        for k in list(range(68, 82)) + list(range(85, 98)):
            a(f"s_add_u32 s84, s84, s{k}")
        a("s_cmp_eq_u32 s84, s50")
        a("s_cbranch_scc1 F_n2_d")
        a("s_load_dwordx16 s[68:83], s[10:11], s48 glc")
        a("s_load_dwordx16 s[84:99], s[10:11], s52 glc")
        a("s_add_u32 s62, s62, 1")
        a(f"s_cmp_lt_u32 s62, {SPIN_CAP}")
        a("s_cbranch_scc1 F_n2")
        a.label("F_n2_d")
    if Cfg.stamps and (Cfg.smask >> 15) & 1:
        a("s_memrealtime s[100:101]")
        a("s_waitcnt lgkmcnt(0)")
        a("v_writelane_b32 v127, s100, 2")
    if Cfg.h2d:
        a(f"s_sleep {Cfg.h2d}")
    a("s_mov_b32 s62, 0")
    a.label("F_h2")
    gather_req()
    a("s_cmp_lg_u32 s62, 0")
    a("s_cbranch_scc1 F_h2_w")
    if Cfg.own1:
        a.label("F_own2")
    if Cfg.fin2:
        prep()
    a("s_and_b32 s34, s36, 0xfffff800")
    a("s_ashr_i32 s35, s34, 31")
    a("s_orn2_b32 s35, 0x80000000, s35")
    a("s_xor_b32 s34, s34, s35")
    a(f"v_mov_b32 v{SG}, {f2u(-LOG2E)}")
    a(f"v_mul_f32 v{SG}, s34, v{SG}")
    a(f"v_exp_f32 v{SG}, v{SG}")
    a("s_waitcnt lgkmcnt(0)")
    a(f"v_lshlrev_b32 v{XV}, 16, v{XV}")
    a(f"v_mov_b32 v{XN}, s46")
    a(f"v_add_f32 v{SG}, 1.0, v{SG}")
    a(f"v_rcp_f32 v{SG}, v{SG}")
    a(f"v_fmac_f32 v{XN}, s45, v{XV}")
    a(f"v_mul_f32 v{SG}, {f2u(8.0)}, v{SG}")
    a("s_and_b32 s38, s36, 2047")
    a("s_lshl_b32 s38, s38, 11")
    a("s_lshl_b32 s34, s57, 6")
    a("s_add_u32 s38, s38, s34")

    def h2_req(B):
        a("s_mov_b32 s34, s49")
        for k in range(7):
            a(f"buffer_load_dwordx4 {vr(B+4*k,4)}, v{AG}, s[24:27], s34 offen sc1")
            if k < 6:
                a("s_add_u32 s34, s34, 32768")

    def h2_sum(B, extra):
        R = PL if B == P else [B + 4*k for k in range(7)]
        for k in range(1, 7):
            if extra is not None:
                a(f"s_waitcnt vmcnt({6-k+extra})")
            for x in range(0, 4, 2):
                a(f"v_pk_add_f32 {vr(Q+x,2)}, {vr((R[0] if k == 1 else Q)+x,2)}, {vr(R[k]+x,2)}")
        a(f"v_permlane16_swap_b32 v{Q}, v{Q+1}")
        a(f"v_permlane16_swap_b32 v{Q+2}, v{Q+3}")
        a(f"v_add_f32 v{Q}, v{Q}, v{Q+1}")
        a(f"v_add_f32 v{Q+2}, v{Q+2}, v{Q+3}")
        a(f"v_permlane32_swap_b32 v{Q}, v{Q+2}")
        a(f"v_add_f32 v{Q}, v{Q}, v{Q+2}")
        a(f"v_add_f32_dpp v{Q}, v{Q}, v{Q} row_ror:8 row_mask:0xf bank_mask:0xf")
        a(f"v_cmp_u_f32 vcc, v{Q}, v{Q}")
        a(f"v_fma_f32 v{Q}, v{Q}, v{SG}, v{XN}")
    if Cfg.own1:
        assert not Cfg.pp and Cfg.eh and Cfg.fin2
        a("s_cmp_eq_u32 s16, 0")
        a("s_cbranch_scc1 F_h2_w")
        a("s_waitcnt vmcnt(4)")
        h2_sum(P, None)
        a("s_cbranch_vccz F_h2_d")
        a("s_branch F_h2_x")
    if Cfg.pp:
        P2 = 8
        a.label("F_pp")
        h2_req(P2)
        h2_sum(P, 7)
        a("s_cbranch_vccz F_h2_d")
        h2_req(P)
        h2_sum(P2, 7)
        a("s_cbranch_vccz F_h2_d")
        a("s_add_u32 s62, s62, 1")
        a("s_cmp_lt_u32 s62, 8")
        a("s_cbranch_scc1 F_pp")
    a.label("F_h2_w")
    h2_sum(P, 0)
    a("s_cbranch_vccnz F_h2_x")
    a.label("F_h2_d")
    stamp(a, 15)
    if Cfg.stamps and (Cfg.smask >> 15) & 1:
        a("v_readlane_b32 s34, v127, 0")
        a("s_mul_i32 s35, s62, 100")
        a("s_add_u32 s34, s34, s35")
        a("v_writelane_b32 v127, s34, 1")
    a(f"v_mul_f32 v{Q+1}, {f2u(-LOG2E/8)}, v{Q}")
    a(f"v_exp_f32 v{Q+1}, v{Q+1}")
    a(f"v_mul_f32 v{Q}, v{Q}, v{YV}")
    a(f"v_add_f32 v{Q+1}, 1.0, v{Q+1}")
    a(f"v_rcp_f32 v{Q+1}, v{Q+1}")
    a("s_mov_b32 exec_lo, 0x00ff00ff")
    a("s_mov_b32 exec_hi, 0x00ff00ff")
    a(f"v_fmac_f32 v{XV}, v{Q}, v{Q+1}")
    a(f"v_cvt_pk_bf16_f32 v{XV}, v{XV}, v{XV}")
    a(f"buffer_store_short v{XV}, v{AS}, s[20:23], s38 offen {Cfg.finfl or Cfg.out_flag}")
    a("s_cmp_lg_u32 s57, 0")
    a("s_cbranch_scc1 L_fin")
    a("s_mov_b64 exec, 1")
    a(f"v_mov_b32 v{T0}, 0")
    a(f"v_mov_b32 v{T0+1}, s33")
    a(f"buffer_store_dword v{T0+1}, v{T0}, s[24:27], 0 offen {Cfg.epfl}")
    a("s_branch L_fin")
    if Cfg.latex:
        a.label("F_lx")
        a("s_mov_b32 s46, 2")
        a("s_mov_b32 s62, 0")
        a("s_waitcnt vmcnt(8) lgkmcnt(0)")
        a("s_branch F_xt")
    if Cfg.own1:
        a.label("F_own")
        a("s_cmp_lg_u32 s37, s33")
        a("s_cbranch_scc1 F_noh")
        gather_addr()
        gather_req()
        a("s_mov_b32 s16, 1")
        a("s_branch F_noh")
    if Cfg.eh:
        a.label("F_eh")
        a("s_load_dwordx16 s[68:83], s[10:11], s48 glc")
        a("s_load_dwordx16 s[84:99], s[10:11], s52 glc")
        a("s_branch F_eh_r")
    a.label("F_h2_x")
    PR = [PL[k] + x for k in range(7) for x in range(4)]
    a(f"v_max3_u32 v{Q+1}, v{PR[0]}, v{PR[1]}, v{PR[2]}")
    for r in range(3, 27, 2):
        a(f"v_max3_u32 v{Q+1}, v{Q+1}, v{PR[r]}, v{PR[r+1]}")
    a(f"v_max_u32 v{Q+1}, v{Q+1}, v{PR[27]}")
    a(f"v_cmp_eq_u32 vcc, -1, v{Q+1}")
    spin_tail(a, "F_h2", "F_h2_d", sleep=Cfg.h2s)
    a("s_branch F_h2_d")
    a.label("F_zero")
    a("s_mov_b32 exec_lo, 0x01010101")
    a("s_mov_b32 exec_hi, 0x01010101")
    a("s_nop 2")
    for i in range(4):
        a(f"v_mov_b32 v{Y+i}, 0")
    a("s_mov_b64 exec, -1")
    a("s_branch F_nz")
    a.label("F_second")
    a(f"ds_read_b128 {vr(TWC,4)}, v{ATB} offset:{L_T+10240}")
    a(f"ds_read_b128 {vr(TWS,4)}, v{ATB} offset:{L_T+11264}")
    a("s_mov_b32 s46, 0")
    if Cfg.vfull:
        a(f"s_mul_i32 s34, s44, {2*(VU if Cfg.vfull == 2 else VB)}")
        a(f"s_add_u32 s50, s50, {VU if Cfg.vfull == 2 else VB}")
        a("s_sub_u32 s50, s50, s34")
    else:
        a("s_xor_b32 s50, s50, 64")
    a(f"v_add_u32 v{T0+5}, 1, v3")
    a(f"v_bfe_i32 v{T0+5}, v{T0+5}, 4, 1")
    a(f"v_and_b32 v{T0+5}, {f2u(-32.0)}, v{T0+5}")
    a(f"v_xor_b32 v{K32}, v{T0+5}, v{K32}")
    for p in range(8):
        a(f"v_xor_b32 v{F1C+p}, 0x80000000, v{F1C+p}")
    a(f"v_mul_f32 v{CV}, s70, v{K32}")
    a(f"v_fmac_f32 v{CV}, v{M}, v{K32}")
    s1(DA_, PA)
    s1(DB_, PB)
    for r in range(8, 16, 2):
        a(f"v_pk_mul_f32 {vr(DA_+r,2)}, {vr(DA_+r,2)}, s[54:55] op_sel:[0,0] op_sel_hi:[1,0]")
    a("s_waitcnt lgkmcnt(0)")
    a("s_barrier")
    a.settle()
    a("s_branch F_pass")
    a.label("F_key")
    a(f"v_mov_b32 v{T0+7}, s33")
    a(f"v_lshlrev_b32 v{T0}, 11, v2")
    if Cfg.kgrp:
        a("s_and_b32 s35, s2, 7")
        a("s_lshl_b32 s35, s35, 8")
        a("s_andn2_b32 s62, s2, 7")
        a("s_add_u32 s35, s35, s62")
        a(f"s_add_u32 s35, s35, {WS_KY}")
    else:
        a(f"s_lshl3_add_u32 s35, s2, {WS_KY}")
    km = (1 << (Cfg.nrep + Cfg.ru)) - 1
    a(f"s_mov_b32 exec_lo, {hex(km & 0xffffffff)}")
    a(f"s_mov_b32 exec_hi, {hex(km >> 32)}")
    a(f"buffer_store_dwordx2 {vr(T0+6,2)}, v{T0}, s[24:27], s35 offen sc1")
    a("s_mov_b64 exec, -1")
    stamp(a, 5)
    if Cfg.e2:
        a("s_mov_b32 s71, 1")
        a("s_branch F_nokey")
        a.label("F_wkey")
        a("s_waitcnt vmcnt(2)")
        a("s_branch F_wkey_r")
        return
    if not Cfg.fastk:
        a("s_waitcnt vmcnt(2)")
    a("s_branch F_nokey")


def moe_role(a):
    a.label("M_entry")
    if Cfg.diag == 1:
        a("s_endpgm")
    a("s_sub_u32 s28, s2, 256")
    moe_unit(a)
    if Cfg.prio:
        a(f"s_setprio {Cfg.prio}")
    a(f"v_mov_b32 v7, {M_F}")
    a(f"s_mov_b32 s26, {WS_BYTES}")
    a("s_mov_b32 s27, 0x20000")
    if not Cfg.lfirst:
        a("s_cmp_eq_u32 s3, 0")
        a("s_cbranch_scc1 M_loader")
    a("v_mov_b32 v8, 0")
    a("v_mov_b32 v9, 0")
    a("v_mov_b32 v10, 0")
    a("v_mov_b32 v11, 0")
    a("v_mov_b32 v114, 0")
    a("ds_write_b128 v7, v[8:11]")
    a("ds_write_b128 v7, v[8:11] offset:16")
    a("ds_write_b128 v7, v[8:11] offset:32")
    a("v_mov_b32 v8, 0x3f803f80")
    a("v_mov_b32 v9, 0x3f803f80")
    a("v_lshlrev_b32 v10, 3, v2")
    a(f"ds_write_b64 v10, v[8:9] offset:{M_ONE}")
    if Cfg.mon:
        a("v_mov_b32 v12, 0x7fc1beef")
        a(f"v_mov_b32 v13, {M_U + 32764}")
        a("ds_write_b32 v13, v12")
        a(f"v_mov_b32 v13, {M_U + 16380}")
        a("ds_write_b32 v13, v12")
    a("s_waitcnt lgkmcnt(0)")
    stamp(a, 1)
    a("s_load_dword s16, s[10:11], 0")
    a("s_mul_i32 s12, s3, 320")
    a("s_min_u32 s12, s12, 2048")
    a(f"s_add_u32 s18, s12, {WS_KY - 320}")
    a(f"s_and_b32 s13, s28, {Cfg.nrep-1}")
    a("s_lshl_b32 s13, s13, 11")
    a("s_add_u32 s12, s12, s13")
    a(f"s_add_u32 s12, s12, {WS_KY - 320}")
    a("s_add_u32 s12, s10, s12")
    a("s_addc_u32 s13, s11, 0")
    a("s_barrier")
    a("s_waitcnt lgkmcnt(0)")
    a("s_mul_i32 s16, s16, 0x9e3779b1")
    a("s_add_u32 s16, s16, 0x7f4a7c15")
    a("s_mul_i32 s15, s16, 40")
    a("s_mov_b32 s17, 0")
    if Cfg.kwarm:
        a("s_mul_i32 s14, s28, 7")
        a("s_add_u32 s14, s14, s3")
        a("s_lshl_b32 s14, s14, 6")
        a(f"s_add_u32 s14, s14, {WS_RES - 64}")
        a(f"s_sleep {Cfg.kwarm}")
        a("s_load_dword s19, s[10:11], s14 glc")
    if Cfg.sfloor:
        a(f"s_sleep {Cfg.sfloor}")
    if Cfg.tlbw:
        a("s_cmp_lt_u32 s3, 6")
        a("s_cbranch_scc1 M_ntw")
        if Cfg.tlbw == 1:
            a("s_cmp_eq_u32 s3, 6")
            a("s_cselect_b32 s20, s40, s42")
            a("s_cselect_b32 s21, s41, s43")
            for k in range(4):
                a(f"s_mov_b32 s34, {k << 21}")
                a(f"s_load_dword s{56+k}, s[20:21], s34")
            a("s_mov_b32 s34, 0x200000")
            a("s_load_dword s60, s[8:9], 0")
            a("s_load_dword s61, s[8:9], s34")
        else:
            a("s_and_b32 s34, s28, 7")
            a(f"s_mul_i32 s34, s34, {128*7168}")
            a("s_lshr_b32 s35, s28, 3")
            a("s_xor_b32 s35, s35, 2")
            a("s_lshl_b32 s35, s35, 8")
            a("s_add_u32 s34, s34, s35")
            a("s_cmp_eq_u32 s3, 6")
            a("s_cbranch_scc0 M_tw7")
            for k in range(15):
                a(f"s_load_dword s{40+16+k}, s[40:41], s34")
                a(f"s_add_u32 s34, s34, {65536 if k < 13 else 127*7168 - 13*65536}")
            a("s_branch M_ntw")
            a.label("M_tw7")
            a("s_lshl_b32 s34, s29, 17")
            for k in range(3):
                a(f"s_load_dword s{56+k}, s[42:43], s34")
                a(f"s_add_u32 s34, s34, {65536 if k < 1 else 65535 - 2047}")
            a("s_mov_b32 s34, 0x200000")
            a("s_load_dword s60, s[8:9], 0")
            a("s_load_dword s61, s[8:9], s34")
        a.label("M_ntw")
    a("s_sub_u32 s31, s3, 2")
    a("s_cmp_lt_u32 s31, 4")
    if Cfg.sfirst == 3:
        a("s_cselect_b32 s9, 0, 1")
    a("s_cbranch_scc1 M_pre")
    if Cfg.wsl:
        lds_wait(a, "M_pg0", M_F, Cfg.wsn, 8, sleep=Cfg.wsl)
    if Cfg.pk0:
        lds_wait(a, "M_pg", M_F, Cfg.pk0, 8)
    a("s_branch M_scan0")

    def comp_addr():
        a("s_lshr_b32 s44, s28, 3")
        a("s_lshr_b32 s34, s31, 1")
        a("s_lshl1_add_u32 s44, s44, s34")
        a("s_lshl4_add_u32 s44, s44, s46")
        a("s_and_b32 s34, s31, 1")
        a("s_lshl1_add_u32 s44, s44, s34")
        a("s_lshl_b32 s44, s44, 7")
        a("v_lshrrev_b32 v114, 5, v2")
        a("v_mul_u32_u24 v114, 0x4800, v114")
        a("v_xor_b32 v114, s44, v114")
        if Cfg.swp:
            a("s_bfe_u32 s34, s28, 0x20003")
            a("s_cmp_eq_u32 s34, 3")
            a("s_cselect_b32 s34, 0x4800, 0")
            a("v_xor_b32 v114, s34, v114")
        a("v_and_b32 v115, 31, v2")
        a("v_lshl_add_u32 v114, v115, 2, v114")
        a(f"s_mov_b32 s44, {WS_H1}")
        a("s_lshl2_add_u32 s45, s29, s30")
        a("s_lshl_b32 s45, s45, 10")
        a("s_lshl_b32 s34, s31, 8")
        a("s_add_u32 s45, s45, s34")
        a(f"s_add_u32 s45, s45, {WS_H2}")
        a("s_lshl_b32 s34, s31, 6")
        a("v_lshl_add_u32 v113, v2, 2, s34")
    a.label("M_pre")
    if Cfg.trim == 2:
        a("s_and_b32 s46, s28, 7")
        a("s_lshl2_add_u32 s6, s46, s31")
        a("s_lshl_b32 s6, s6, 6")
        comp_addr()
        a("s_mov_b32 s7, s45")
    BG, BU, AX, DG = 16, 48, 80, 96
    a("v_bfe_u32 v8, v2, 2, 2")
    a("v_lshl_add_u32 v9, v4, 2, v8")
    a("v_and_b32 v10, 7, v9")
    a("v_lshlrev_b32 v10, 1, v10")
    a("v_bfe_u32 v11, v2, 1, 1")
    a("s_lshl_b32 s34, s31, 2")
    a("v_or_b32 v12, s34, v11")
    a("v_xor_b32 v12, v12, v10")
    a("v_lshlrev_b32 v12, 4, v12")
    a("v_lshl_add_u32 v12, v9, 8, v12")
    a("v_and_b32 v13, 1, v2")
    a("v_lshl_add_u32 v12, v13, 3, v12")
    a("v_xor_b32 v126, 32, v12")
    a("s_lshl_b32 s34, s31, 3")
    a("v_or_b32 v120, s34, v11")
    a("v_xor_b32 v120, v120, v10")
    a("v_lshlrev_b32 v120, 4, v120")
    a("v_lshl_add_u32 v120, v9, 9, v120")
    a("v_lshl_add_u32 v120, v13, 3, v120")
    for t in range(1, 4):
        a(f"v_xor_b32 v{120+t}, {32*t}, v120")
    a("v_lshlrev_b32 v14, 4, v4")
    a("v_and_b32 v15, 1, v2")
    a("v_lshl_add_u32 v15, v15, 9, v14")

    def gate_reads(sfx=""):
        lds_wait(a, "M_wg" + sfx, M_F, 8, 8)
        stamp(a, 6)
        for n in range(8):
            for u2 in range(2):
                a(f"ds_read_b64_tr_b16 {vr(BG+4*n+2*u2,2)}, v{126 if n >= 4 else 12} offset:{M_G+8192*(n % 4)+4096*u2}")
                if n == 7 and u2 == 0:
                    a("s_waitcnt lgkmcnt(4)")
        a("v_mov_b32 v8, 1")
        a("s_waitcnt lgkmcnt(0)")
        a("s_mov_b64 exec, 1")
        a("ds_add_u32 v7, v8 offset:4")
        a("s_mov_b64 exec, -1")

    def gate_step(ns):
        for n in ns:
            for t in range(2):
                for u2 in range(2):
                    a(f"ds_read_b64_tr_b16 {vr(BG+16*t+4*n+2*u2,2)}, v{126 if t else 12} offset:{M_G+8192*n+4096*u2}")
    if Cfg.gprog:
        assert Cfg.scan3 and not Cfg.sfirst
        if Cfg.wsl:
            lds_wait(a, "M_wg0", M_F, min(Cfg.wsn, 6), 8, sleep=Cfg.wsl)
        lds_wait(a, "M_wg6", M_F, 6, 8)
        gate_step((0, 1, 2))
        a("v_mov_b32 v8, 1")
        a("s_waitcnt lgkmcnt(0)")
        a("s_mov_b64 exec, 1")
        a("ds_add_u32 v7, v8 offset:4")
        a("s_mov_b64 exec, -1")
        lds_wait(a, "M_wg", M_F, max(8, Cfg.pk0), 8)
        stamp(a, 6)
        gate_step((3,))
    elif Cfg.sfirst:
        lds_wait(a, "M_pg2", M_F, Cfg.pk0, 8)
    else:
        gate_reads()
    a.label("M_scan0")
    if Cfg.sdelay:
        a(f"s_sleep {Cfg.sdelay}")
    if Cfg.scan3:
        a("s_lshl_b32 s15, s16, 3")
        a("s_mov_b32 s19, 0")
        a("v_mov_b32 v10, 0")
        for k in range(5):
            a(f"s_load_dwordx16 s[{20+16*k}:{35+16*k}], s[12:13], {64*k}")
        if Cfg.gprog:
            a("v_mov_b32 v8, 1")
            a("s_mov_b64 exec, 1")
            a("s_waitcnt lgkmcnt(0)")
            a("ds_add_u32 v7, v8 offset:24")
            a("s_mov_b64 exec, -1")
            a("s_branch M_scan1")
        a.label("M_scan")
        a("s_waitcnt lgkmcnt(0)")
        a.label("M_scan1")
        for k in range(5):
            b = 20 + 16*k
            a(f"s_add_u32 s14, s{b+1}, s{b+3}")
            for e in range(2, 8):
                a(f"s_add_u32 s14, s14, s{b+2*e+1}")
            a("s_cmp_lg_u32 s14, s15")
            a(f"s_cbranch_scc1 M_sec{k}")
            for e in range(8):
                a(f"v_max_u32 v10, s{b+2*e}, v10")
            a(f"s_bitset1_b32 s19, {k}")
            a(f"s_mov_b32 s{b+1}, 0")
            a.label(f"M_sec{k}")
        a("s_cmp_eq_u32 s19, 31")
        a("s_cbranch_scc1 M_scan_d")
        if Cfg.sfirst == 3:
            a("s_cmp_lg_u32 s9, 0")
            a("s_cbranch_scc1 M_gskip")
            a("s_mov_b32 s9, 1")
            gate_reads("b")
            a.label("M_gskip")
        if Cfg.ru:
            a("s_add_u32 s17, s17, 1")
            a(f"s_and_b32 s14, s2, {Cfg.ru-1}")
            a("s_lshl_b32 s14, s14, 11")
            a("s_add_u32 s14, s14, s18")
            a(f"s_add_u32 s14, s14, {Cfg.nrep*2048}")
            a("s_add_u32 s12, s10, s14")
            a("s_addc_u32 s13, s11, 0")
            if Cfg.ssl:
                a(f"s_sleep {Cfg.ssl}")
            for k in range(5):
                a(f"s_bitcmp1_b32 s19, {k}")
                a(f"s_cbranch_scc1 M_rl{k}")
                a(f"s_load_dwordx16 s[{20+16*k}:{35+16*k}], s[12:13], {64*k} glc")
                a.label(f"M_rl{k}")
        else:
            a("s_add_u32 s17, s17, 1")
            a("s_add_u32 s14, s2, s17")
            a(f"s_and_b32 s14, s14, {Cfg.nrep-1}")
            a("s_lshl_b32 s14, s14, 11")
            a("s_add_u32 s14, s14, s18")
            a("s_add_u32 s12, s10, s14")
            a("s_addc_u32 s13, s11, 0")
            if Cfg.ssl:
                a(f"s_sleep {Cfg.ssl}")
            a(f"s_cmp_ge_u32 s17, {Cfg.nrep}")
            a("s_cbranch_scc1 M_scan_u")
            for g_, nm in (("", "a"), (" glc", "b")):
                if g_:
                    a.label("M_scan_u")
                for k in range(5):
                    a(f"s_bitcmp1_b32 s19, {k}")
                    a(f"s_cbranch_scc1 M_rl{nm}{k}")
                    a(f"s_load_dwordx16 s[{20+16*k}:{35+16*k}], s[12:13], {64*k}{g_}")
                    a.label(f"M_rl{nm}{k}")
                if not g_:
                    a("s_branch M_scan")
        a(f"s_cmp_lt_u32 s17, {SPIN_CAP}")
        a("s_cbranch_scc1 M_scan")
        a("s_waitcnt lgkmcnt(0)")
    else:
        a.label("M_scan")
        if Cfg.scan2:
            a(f"s_cmp_ge_u32 s17, {Cfg.nrep}")
            a("s_cbranch_scc1 M_scan_u")
            for k in range(5):
                a(f"s_load_dwordx16 s[{20+16*k}:{35+16*k}], s[12:13], {64*k}")
            a.label("M_scan_w")
        else:
            for k in range(5):
                a(f"s_load_dwordx16 s[{20+16*k}:{35+16*k}], s[12:13], {64*k} glc")
        a("v_mov_b32 v10, 0")
        a("s_mov_b32 s14, 0")
        a("s_waitcnt lgkmcnt(0)")
        for k in range(40):
            a(f"s_add_u32 s14, s14, s{21+2*k}")
            a(f"v_max_u32 v10, s{20+2*k}, v10")
        a("s_cmp_eq_u32 s14, s15")
        a("s_cbranch_scc1 M_scan_d")
        a("s_add_u32 s17, s17, 1")
        if Cfg.scan2:
            a("s_add_u32 s14, s2, s17")
            a(f"s_and_b32 s14, s14, {Cfg.nrep-1}")
            a("s_lshl_b32 s14, s14, 11")
            a("s_add_u32 s14, s14, s18")
            a("s_add_u32 s12, s10, s14")
            a("s_addc_u32 s13, s11, 0")
            a("s_sleep 4")
        a(f"s_cmp_lt_u32 s17, {SPIN_CAP}")
        a("s_cbranch_scc1 M_scan")
        if Cfg.scan2:
            a("s_branch M_scan_d")
            a.label("M_scan_u")
            for k in range(5):
                a(f"s_load_dwordx16 s[{20+16*k}:{35+16*k}], s[12:13], {64*k} glc")
            a("s_branch M_scan_w")
    a.label("M_scan_d")
    a("v_mov_b32 v8, 1")
    a("s_mov_b64 exec, 1")
    a("ds_max_u32 v7, v10 offset:16")
    a("ds_add_u32 v7, v8 offset:20")
    a("s_mov_b64 exec, -1")
    stamp(a, 10)
    if Cfg.trim == 2:
        a("s_sub_u32 s31, s3, 2")
        a("s_cmp_lt_u32 s31, 4")
        a("s_cbranch_scc1 M_comp")
    a("s_mov_b32 s33, s16")
    a("s_sub_u32 s28, s2, 256")
    moe_unit(a)
    a("s_mov_b64 s[24:25], s[10:11]")
    a(f"s_mov_b32 s26, {WS_BYTES}")
    a("s_mov_b32 s27, 0x20000")
    if Cfg.gate:
        a("s_cmp_eq_u32 s3, 7")
        a("s_cbranch_scc1 M_gate")
    if Cfg.agent:
        a(f"s_cmp_ge_u32 s3, {8 - Cfg.agent}")
        a("s_cbranch_scc1 M_agent")
    a("s_cmp_ge_u32 s3, 6")
    a("s_cbranch_scc1 L_fin")
    a("s_cmp_eq_u32 s3, 1")
    if Cfg.trim == 2:
        a("s_branch M_poller")
    else:
        a("s_cbranch_scc1 M_poller")
        a("s_sub_u32 s31, s3, 2")
        a("s_branch M_comp")
    if Cfg.gate:
        assert Cfg.brep == 32
        a.label("M_gate")
        a("v_lshlrev_b32 v10, 10, v2")
        a("v_mov_b32 v11, s33")
        a(f"s_lshl2_add_u32 s34, s28, {WS_KB + 32768}")
        lds_wait(a, "M_gw", M_F, Cfg.gate, 8)
        a("s_mov_b32 exec_hi, 0")
        a("buffer_store_dword v11, v10, s[24:27], s34 offen sc1")
        a("s_barrier")
        a("s_branch L_fin")
    if Cfg.agent:
        a.label("M_agent")
        a("s_and_b32 s47, s28, 7")
        a("s_lshl_b32 s47, s47, 8")
        a("s_mov_b32 s49, 0")
        a("s_mov_b32 s62, 0")
        a.label("M_ag")
        a("ds_read_b64 v[8:9], v7 offset:16")
        a("s_waitcnt lgkmcnt(0)")
        a("v_readfirstlane_b32 s48, v8")
        a("v_readfirstlane_b32 s46, v9")
        a("s_cmp_ge_u32 s46, 7")
        a("s_cbranch_scc1 M_mon" if Cfg.mon else "s_cbranch_scc1 M_rep" if Cfg.ldg else "s_cbranch_scc1 L_fin")
        a("s_cmp_eq_u32 s48, s49")
        a("s_cbranch_scc1 M_ag_n")
        a("s_mov_b32 s49, s48")
        a("s_and_b32 s34, s48, 2047")
        a("s_lshl_b32 s34, s34, 11")
        a("s_add_u32 s34, s34, s47")
        for k in range(4):
            a(f"s_load_dword s{54+k}, s[4:5], s34")
            if k < 3:
                a("s_add_u32 s34, s34, 64")
        stat_req(a)
        a.label("M_ag_n")
        a("s_add_u32 s62, s62, 1")
        a(f"s_cmp_lt_u32 s62, {5*SPIN_CAP}")
        a("s_cbranch_scc1 M_ag")
        a("s_branch L_fin")
        if Cfg.mon:
            a.label("M_mon")
            for k, off in enumerate((M_U + 16380, M_U + 32764)):
                a(f"v_mov_b32 v13, {off}")
                a("s_mov_b32 s62, 0")
                a.label(f"M_mon{k}")
                a("ds_read_b32 v12, v13")
                a("s_waitcnt lgkmcnt(0)")
                a("v_cmp_eq_u32 vcc, 0x7fc1beef, v12")
                spin_tail(a, f"M_mon{k}", f"M_mon{k}_d", sleep=1, glob=False)
                a.label(f"M_mon{k}_d")
                stamp(a, 11 + k)
            a("s_branch L_fin")
        if Cfg.ldg:
            a.label("M_rep")
            a("s_cmp_lg_u32 s3, 7")
            a("s_cbranch_scc1 L_fin")
            lds_wait(a, "M_repw", M_F+28, 1, 8, sleep=2)
            a("v_mov_b32 v10, s33")
            a("v_mov_b32 v11, 0")
            a("s_sub_u32 s35, s2, 256")
            a("s_lshl_b32 s35, s35, 7")
            a(f"s_add_u32 s35, s35, {WS_LD}")
            a("s_mov_b64 exec, 1")
            a("buffer_store_dword v10, v11, s[24:27], s35 offen sc1")
            a("s_mov_b64 exec, -1")
            a("s_branch L_fin")
    if Cfg.lfirst:
        a.label("M_loader2")
        if Cfg.lprof:
            a("v_mov_b32 v126, 0")
            a("v_mov_b32 v125, 0")
        a(f"v_mov_b32 v7, {M_F}")
        a(f"s_mov_b32 s26, {WS_BYTES}")
        a("s_mov_b32 s27, 0x20000")
        a("v_xor_b32 v18, 128, v8")
        down_tile(a)
    else:
        a.label("M_loader")
        if Cfg.lprio != Cfg.prio:
            a(f"s_setprio {Cfg.lprio}")
        a("v_mul_u32_u24 v8, 7168, v4")
        a("v_lshlrev_b32 v9, 1, v4")
        a("v_xor_b32 v9, v9, v3")
        a("v_lshl_add_u32 v8, v9, 4, v8")
        a("v_xor_b32 v18, 128, v8")
        a("s_and_b32 s34, s28, 7")
        a(f"s_mul_i32 s34, s34, {128*7168}")
        a("s_lshr_b32 s35, s28, 3")
        a("s_lshl_b32 s35, s35, 8")
        a("s_add_u32 s34, s34, s35")
        a("s_mov_b32 s14, 7340032")
        a("s_mov_b32 s15, 0x20000")
        a(f"s_mov_b32 s46, {M_G}")
        a("s_mov_b32 s45, s34")
        a("s_waitcnt lgkmcnt(0)")
        a("s_mov_b64 s[12:13], s[38:39]")
        stamp(a, 2)
        for n in range(4):
            a("s_mov_b32 m0, s46")
            a("s_add_u32 s46, s46, 1024")
            a(f"buffer_load_dwordx4 v{18 if n % 2 else 8}, s[12:15], s45 offen {Cfg.wfl} lds")
            a(f"s_add_u32 s45, s45, {4*7168}")
    a("s_mov_b64 s[24:25], s[10:11]")
    srd(a, 16, 40, 7340032)
    first = Cfg.thr//4 if Cfg.lfirst else 1
    cuts = sorted(set([first, 8, 16, 24] + [g for g in (Cfg.g2, Cfg.g3) if first < g < 24] + ([22] if Cfg.gprog else []) + ([Cfg.ldg] if Cfg.ldg else [])))
    a(f"s_mov_b32 s47, {cuts[0]}")
    a("s_barrier")
    for g0, g1 in zip(cuts, cuts[1:]):
        mat = g0 // 8
        thr = Cfg.thr3 if g0 >= Cfg.g3 else Cfg.thr2 if g0 >= Cfg.g2 else Cfg.thr
        assert thr % 4 == 0
        if g0 == 8:
            srd(a, 20, 42, 7340032)
            a("v_lshrrev_b32 v9, 5, v2")
            a("v_and_b32 v10, 31, v2")
            for n in range(4):
                a(f"v_add_u32 v11, {2*n}, v9")
                a(f"v_lshlrev_b32 v{12+n}, 1, v11")
                a(f"v_xor_b32 v{12+n}, v{12+n}, v10")
                a(f"v_lshlrev_b32 v{12+n}, 4, v{12+n}")
                a(f"v_lshl_add_u32 v{12+n}, v11, 11, v{12+n}")
            a("s_lshl_b32 s44, s29, 17")
            a("s_lshl_b32 s35, s30, 9")
            a("s_add_u32 s44, s44, s35")
        if g0 == 16:
            if Cfg.drain < Cfg.thr2:
                a("s_mov_b64 exec, 1")
                for left in range(Cfg.thr2//4 - 1, Cfg.drain//4 - 1, -1):
                    a(f"v_mov_b32 v16, {16-left}")
                    a(f"s_waitcnt vmcnt({4*left})")
                    a("ds_max_i32 v7, v16")
                a("s_mov_b64 exec, -1")
            lds_wait(a, "M_wgc", M_F+4, 4, 20)
        if g0 == 22 and Cfg.gprog:
            lds_wait(a, "M_wgd", M_F+24, 7, 20)
        if Cfg.ldg and g0 == Cfg.ldg:
            a("v_mov_b32 v16, 1")
            a("ds_write_b32 v7, v16 offset:28")
        if g0 % 8 == 0:
            stamp(a, 2 + mat)
            if mat == 2 and Cfg.skipg:
                a(f"s_mov_b32 s49, {24 - Cfg.skipg}")
            a(f"s_mov_b32 s46, {M_U if mat == 1 else M_G}")
            if mat < 2:
                a("s_xor_b32 s45, s34, 512")
        if g0 == Cfg.g2 and Cfg.ramp:
            a(f"s_sleep {Cfg.ramp}")
        a.label(f"M_ld{g0}")
        if Cfg.tlo and mat == 2:
            a("s_mov_b32 s62, 0")
            a.label(f"M_tl{g0}")
            a(f"ds_read_b32 v20, v7 offset:{Cfg.tev}")
            a("s_getreg_b32 s35, hwreg(HW_REG_IB_STS)")
            a("s_bfe_u32 s48, s35, 0x20016")
            a("s_and_b32 s35, s35, 15")
            a("s_lshl4_add_u32 s48, s48, s35")
            a("s_add_u32 s35, s48, 3")
            a("s_lshr_b32 s35, s35, 2")
            a("s_sub_u32 s35, s47, s35")
            a("v_mov_b32 v16, s35")
            a("s_mov_b64 exec, 1")
            a("ds_max_i32 v7, v16")
            a("s_mov_b64 exec, -1")
            a(f"s_cmp_le_u32 s48, {Cfg.tlo}")
            a(f"s_cbranch_scc1 M_tl{g0}_d")
            a("s_waitcnt lgkmcnt(0)")
            a(f"v_cmp_gt_u32 vcc, {Cfg.tcnt}, v20")
            spin_tail(a, f"M_tl{g0}", f"M_tl{g0}_d", sleep=0, glob=False)
            a.label(f"M_tl{g0}_d")
        for n in range(4):
            a("s_mov_b32 m0, s46")
            a("s_add_u32 s46, s46, 1024")
            if mat < 2:
                a(f"buffer_load_dwordx4 v{18 if n % 2 else 8}, s[{12+4*mat}:{15+4*mat}], s45 offen {Cfg.wfl} lds")
                a(f"s_add_u32 s45, s45, {4*7168}")
            else:
                a(f"buffer_load_dwordx4 v{12+n}, s[20:23], s44 offen {Cfg.wfl} lds")
            a(f"s_waitcnt vmcnt({thr})")
        if Cfg.thrn and g0 >= Cfg.g2:
            a("s_bitcmp1_b32 s28, 3")
            a(f"s_cbranch_scc1 M_tn{g0}")
            a(f"s_waitcnt vmcnt({Cfg.thrn})")
            a.label(f"M_tn{g0}")
        if mat == 2:
            a("s_add_u32 s44, s44, 16384")
        a("s_add_u32 s47, s47, 1")
        if Cfg.exact:
            a("s_getreg_b32 s35, hwreg(HW_REG_IB_STS)")
            a("s_bfe_u32 s48, s35, 0x20016")
            a("s_and_b32 s35, s35, 15")
            a("s_lshl4_add_u32 s35, s48, s35")
            a("s_add_u32 s35, s35, 3")
            a("s_lshr_b32 s35, s35, 2")
            a("s_sub_u32 s35, s47, s35")
        else:
            a(f"s_sub_u32 s35, s47, {thr//4}")
        a("v_mov_b32 v16, s35")
        a("s_mov_b64 exec, 1")
        a("ds_max_i32 v7, v16")
        a("s_mov_b64 exec, -1")
        if Cfg.lprof:
            a("s_memrealtime s[100:101]")
            a("s_waitcnt lgkmcnt(0)")
            a("s_mov_b32 m0, s47")
            a("s_nop 0")
            a("v_writelane_b32 v126, s100, m0")
            a("s_max_i32 s48, s35, 0")
            a("s_mov_b32 m0, s48")
            a("s_nop 0")
            a("v_writelane_b32 v125, s100, m0")
        a(f"s_cmp_lt_u32 s47, {g1 - (Cfg.skipg if g1 == 24 else 0)}")
        a(f"s_cbranch_scc1 M_ld{g0}")
    if Cfg.ldg == 24:
        a("v_mov_b32 v16, 1")
        a("ds_write_b32 v7, v16 offset:28")
    if Cfg.hpf:
        a("s_sub_u32 s44, s44, 32768")
        a(f"s_xor_b32 s44, s44, {2 << 17}")
        a(f"s_mov_b32 m0, {LDS_BYTES - 256}")
        a("v_lshrrev_b32 v9, 2, v2")
        a("v_and_b32 v10, 3, v2")
        a("v_lshlrev_b32 v10, 7, v10")
        a("v_lshl_add_u32 v10, v9, 11, v10")
        for k in range(Cfg.hpf):
            a("buffer_load_dword v10, s[20:23], s44 offen lds")
            a("s_sub_u32 s44, s44, 32768")
    a("s_mov_b64 exec, 1")
    lstamp(a, 6)
    for left in range(thr//4 - 1, 0, -1):
        a(f"v_mov_b32 v16, {24-left - (Cfg.skipg if left > 3 else 0)}")
        a(f"s_waitcnt vmcnt({4*left + Cfg.hpf})")
        a("ds_max_i32 v7, v16")
        lstamp(a, 13-left)
        if Cfg.lprof:
            a("s_memrealtime s[100:101]")
            a("s_waitcnt lgkmcnt(0)")
            a(f"v_writelane_b32 v126, s100, {32+24-left}")
    a("v_mov_b32 v16, 24")
    a(f"s_waitcnt vmcnt({Cfg.hpf})")
    a("ds_write_b32 v7, v16")
    stamp(a, 5)
    if Cfg.lprof:
        a("s_memrealtime s[100:101]")
        a("s_waitcnt lgkmcnt(0)")
        a("v_writelane_b32 v126, s100, 56")
        a("s_mov_b64 exec, -1")
        a("s_sub_u32 s34, s2, 256")
        a("s_lshl_b32 s34, s34, 9")
        a(f"s_add_u32 s34, s34, {WS_TS + (1 << 20)}")
        a("v_lshlrev_b32 v24, 2, v2")
        a("buffer_store_dword v126, v24, s[24:27], s34 offen")
        a("buffer_store_dword v125, v24, s[24:27], s34 offen offset:256")
    a("s_waitcnt lgkmcnt(0)")
    a("s_barrier")
    a("s_branch L_fin")
    a.label("M_comp")
    if Cfg.sfirst == 1:
        gate_reads()
    if Cfg.sfirst == 3:
        a("s_cmp_lg_u32 s9, 0")
        a("s_cbranch_scc1 M_gdone")
        gate_reads()
        a.label("M_gdone")
    if Cfg.trim != 2:
        a("s_and_b32 s46, s28, 7")
        a("s_lshl2_add_u32 s47, s46, s31")
        a("s_lshl_b32 s47, s47, 6")

    if Cfg.trim == 1:
        comp_addr()
    if Cfg.upre >= 3:
        a("s_mov_b32 s57, 0")
        a("s_mov_b32 s62, 0")
        a.label("M_prl")
        a("ds_read_b32 v8, v7")
        a("ds_read_b64 v[10:11], v7 offset:16")
        a("s_add_u32 s62, s62, 1")
        a("s_waitcnt lgkmcnt(0)")
        a("v_readfirstlane_b32 s56, v8")
        a("v_readfirstlane_b32 s46, v11")
        a("s_cmp_eq_u32 s57, 4")
        a("s_cbranch_scc1 M_prc")
        for n in range(4):
            if n < 3:
                a(f"s_cmp_gt_u32 s57, {n}")
                a(f"s_cbranch_scc1 M_prs{n}")
            a(f"s_cmp_lt_u32 s56, {10+2*n}")
            a("s_cbranch_scc1 M_prc")
            for t in range(2):
                for u2 in range(2):
                    a(f"ds_read_b64_tr_b16 {vr(BU+16*t+4*n+2*u2,2)}, v{126 if t else 12} offset:{M_U+8192*n+4096*u2}")
            a(f"s_mov_b32 s57, {n+1}")
            if n < 3:
                a.label(f"M_prs{n}")
        a.label("M_prc")
        a("s_cmp_ge_u32 s46, 7")
        a("s_cbranch_scc1 M_prk")
        a(f"s_cmp_lt_u32 s62, {5*SPIN_CAP}")
        a("s_cbranch_scc1 M_prl")
        a.label("M_prk")
        a("v_readfirstlane_b32 s48, v10")
        a.label("M_prk2")
    elif Cfg.upre:
        a("s_mov_b32 s57, 0")
        a("s_mov_b32 s62, 0")
        for n in range(4):
            a.label(f"M_pr{n}")
            a("ds_read_b32 v8, v7")
            a("ds_read_b64 v[10:11], v7 offset:16")
            a("s_add_u32 s62, s62, 1")
            a("s_waitcnt lgkmcnt(0)")
            a("v_readfirstlane_b32 s46, v11")
            a("v_readfirstlane_b32 s56, v8")
            a("s_cmp_ge_u32 s46, 7")
            a("s_cbranch_scc1 M_prk")
            a(f"s_cmp_ge_u32 s62, {5*SPIN_CAP}")
            a("s_cbranch_scc1 M_prk")
            a(f"s_cmp_lt_u32 s56, {10+2*n}")
            a(f"s_cbranch_scc1 M_pr{n}")
            for t in range(2):
                for u2 in range(2):
                    a(f"ds_read_b64_tr_b16 {vr(BU+16*t+4*n+2*u2,2)}, v{126 if t else 12} offset:{M_U+8192*n+4096*u2}")
            a(f"s_mov_b32 s57, {n+1}")
        key_wait(a, "M_box")
        a("s_branch M_prk2")
        a.label("M_prk")
        a("v_readfirstlane_b32 s48, v10")
        a.label("M_prk2")
        if Cfg.mon and Cfg.stamps:
            a("v_readlane_b32 s34, v127, 0")
            a("s_mul_i32 s35, s57, 100")
            a("s_add_u32 s34, s34, s35")
            a("v_writelane_b32 v127, s34, 11")
            a("s_mul_i32 s35, s56, 100")
            a("v_readlane_b32 s34, v127, 0")
            a("s_add_u32 s34, s34, s35")
            a("v_writelane_b32 v127, s34, 12")
    else:
        key_wait(a, "M_box")
    stamp(a, 8)
    a("s_and_b32 s34, s48, 2047")
    a("s_lshl_b32 s34, s34, 11")
    a(f"s_add_u32 s34, s34, {'s6' if Cfg.trim == 2 else 's47'}")
    a("s_load_dwordx16 s[64:79], s[4:5], s34")
    if not Cfg.pstat:
        stat_req(a)
    if not Cfg.trim:
        comp_addr()
    if Cfg.trim == 2:
        a("s_mov_b32 s33, s16")
        a("s_mov_b64 s[24:25], s[10:11]")
        a(f"s_mov_b32 s26, {WS_BYTES}")
        a("s_mov_b32 s27, 0x20000")
        a(f"s_mov_b32 s44, {WS_H1}")
        a("s_mov_b32 s45, s7")
    a("v_mov_b32 v8, 1")
    a("s_waitcnt lgkmcnt(0)")
    for dl in range(16):
        lam = dl >> 1
        lane = 16*(lam >> 3) + 4*(lam & 3) + 2*((lam >> 2) & 1) + (dl & 1)
        a(f"v_writelane_b32 v11, s{64+dl}, {lane}")
    a("s_mov_b64 exec, 0xffff")
    a(f"ds_write_b32 v113, v11 offset:{M_XS}")
    a("s_mov_b64 exec, 1")
    a("ds_add_u32 v7, v8 offset:8")
    a("s_mov_b64 exec, -1")
    stamp(a, 9)
    if Cfg.sfirst == 2:
        gate_reads()
    if (not Cfg.pstat and not Cfg.trim) or Cfg.upre == 2:
        stat_use(a)
    a("s_mov_b32 s62, 0")
    a.label("M_wx")
    a("ds_read_b128 v[8:11], v7")
    a("s_waitcnt lgkmcnt(0)")
    a("v_cmp_gt_u32 vcc, 4, v10")
    spin_tail(a, "M_wx", "M_wx_d", sleep=0, glob=False)
    a.label("M_wx_d")
    stamp(a, 2)
    for n in range(4):
        a(f"ds_read_b128 {vr(AX+4*n,4)}, v15 offset:{M_XS+64*n}")
    a("v_readfirstlane_b32 s56, v8")
    if Cfg.mon and Cfg.stamps:
        a("s_mul_i32 s35, s56, 100")
        a("v_readlane_b32 s34, v127, 0")
        a("s_add_u32 s34, s34, s35")
        a("v_writelane_b32 v127, s34, 13")

    def need(name, p):
        a(f"s_cmp_ge_u32 s56, {p}")
        a(f"s_cbranch_scc1 {name}_k")
        a("s_mov_b32 s62, 0")
        a.label(name)
        a("ds_read_b32 v8, v7")
        a("s_waitcnt lgkmcnt(0)")
        a(f"v_cmp_gt_u32 vcc, {p}, v8")
        spin_tail(a, name, name + "_d", sleep=0 if p > 14 else 1, glob=False)
        a.label(name + "_d")
        a("v_readfirstlane_b32 s56, v8")
        a.label(name + "_k")

    def up_mfma(n, t):
        d = DG + 8*t + 4
        a(f"v_mfma_f32_16x16x32_bf16 {vr(d,4)}, {vr(AX+4*n,4)}, {vr(BU+16*t+4*n,4)}, {'0' if n == 0 else vr(d,4)}")
    if Cfg.upre >= 3:
        a("s_cmp_lt_u32 s56, 16")
        a("s_cbranch_scc1 M_slow")
        a("s_cmp_lg_u32 s53, s33")
        a("s_cbranch_scc1 M_slow")
        for n in range(4):
            a(f"s_cmp_gt_u32 s57, {n}")
            a(f"s_cbranch_scc1 M_fs{n}")
            for t in range(2):
                for u2 in range(2):
                    a(f"ds_read_b64_tr_b16 {vr(BU+16*t+4*n+2*u2,2)}, v{126 if t else 12} offset:{M_U+8192*n+4096*u2}")
            a.label(f"M_fs{n}")
        a("s_lshl_b32 s54, s52, 16")
        a("s_and_b32 s52, s52, 0xffff0000")
        a(f"v_mov_b32 v124, {f2u(1e-5)}")
        a("v_add_f32 v124, s52, v124")
        chain = ["v_cvt_pk_bf16_f32 v124, v124, v124", "v_lshlrev_b32 v124, 16, v124", "v_sqrt_f32 v124, v124",
                 "v_cvt_pk_bf16_f32 v124, v124, v124", "v_lshlrev_b32 v124, 16, v124", "v_rcp_f32 v124, v124"]
        a(chain.pop(0))
        a(chain.pop(0))
        a(chain.pop(0))
        lgk(a, 0)
        mf = []
        for k in range(4):
            for t in range(2):
                d = DG + 8*t
                mf.append(f"v_mfma_f32_16x16x32_bf16 {vr(d,4)}, {vr(AX+4*k,4)}, {vr(BG+16*t+4*k,4)}, {'0' if k == 0 else vr(d,4)}")
        for n in range(4):
            for t in range(2):
                d = DG + 8*t + 4
                mf.append(f"v_mfma_f32_16x16x32_bf16 {vr(d,4)}, {vr(AX+4*n,4)}, {vr(BU+16*t+4*n,4)}, {'0' if n == 0 else vr(d,4)}")
        for k, m_ in enumerate(mf):
            a(m_)
            if chain and k % 2 == 1:
                a(chain.pop(0))
        a.settle()
        a("s_branch M_gend")
        a.label("M_slow")
    if Cfg.upre:
        assert Cfg.trim and not Cfg.pstat
        lgk(a, 0)
        for k in range(4):
            for t in range(2):
                d = DG + 8*t
                a(f"v_mfma_f32_16x16x32_bf16 {vr(d,4)}, {vr(AX+4*k,4)}, {vr(BG+16*t+4*k,4)}, {'0' if k == 0 else vr(d,4)}")
        for n in range(4):
            a(f"s_cmp_gt_u32 s57, {n}")
            a(f"s_cbranch_scc1 M_uh{n}")
            need(f"M_wu{n}", 10+2*n)
            for t in range(2):
                for u2 in range(2):
                    a(f"ds_read_b64_tr_b16 {vr(BU+16*t+4*n+2*u2,2)}, v{126 if t else 12} offset:{M_U+8192*n+4096*u2}")
            lgk(a, 0)
            a.label(f"M_uh{n}")
            if n == 3:
                stamp(a, 7)
            up_mfma(n, 0)
            up_mfma(n, 1)
        if Cfg.upre in (1, 3):
            stat_use(a)
        if Cfg.upre >= 3:
            a.settle()
            a.label("M_gend")
            a.settle()
    for n in range(4 if not Cfg.upre else 0):
        need(f"M_wu{n}", 10+2*n)
        if n == 3:
            stamp(a, 7)
        for t in range(2):
            for u2 in range(2):
                a(f"ds_read_b64_tr_b16 {vr(BU+16*t+4*n+2*u2,2)}, v{126 if t else 12} offset:{M_U+8192*n+4096*u2}")
        lgk(a, 4)
        if n == 0:
            for k in range(4):
                for t in range(2):
                    d = DG + 8*t
                    a(f"v_mfma_f32_16x16x32_bf16 {vr(d,4)}, {vr(AX+4*k,4)}, {vr(BG+16*t+4*k,4)}, {'0' if k == 0 else vr(d,4)}")
            if Cfg.trim and not Cfg.pstat:
                stat_use(a)
        else:
            up_mfma(n-1, 0)
            up_mfma(n-1, 1)
    if Cfg.pstat:
        a("ds_read_b128 v[116:119], v7 offset:32")
    for t in range(2 if not Cfg.upre else 0):
        lgk(a, 2-2*t + (1 if Cfg.pstat else 0))
        up_mfma(3, t)
    if Cfg.pstat:
        a("s_mov_b32 s62, 0")
        a.label("M_ws")
        a("s_waitcnt lgkmcnt(0)")
        a("v_cmp_eq_u32 vcc, 0, v118")
        a("s_cbranch_vccz M_ws_d")
        a("ds_read_b128 v[116:119], v7 offset:32")
        a("s_add_u32 s62, s62, 1")
        a(f"s_cmp_lt_u32 s62, {SPIN_CAP}")
        a("s_cbranch_scc1 M_ws")
        a.label("M_ws_d")
    a("v_mov_b32 v9, 1")
    for q_, d in ((1, DG+8), (2, DG+4), (3, DG+12)):
        for r in range(2):
            a(f"v_mov_b32_dpp v{DG+r}, v{d+r} quad_perm:[0,1,2,3] row_mask:{hex(1 << q_)} bank_mask:0xf")
    a(f"v_fma_f32 v{DG}, -v{DG+1}, {'v116' if Cfg.pstat else 's54'}, v{DG}")
    a(f"v_mul_f32 v{DG}, v{DG}, {'v117' if Cfg.pstat else 'v124'}")
    a(f"buffer_store_dword v{DG}, v114, s[24:27], s44 offen sc1")
    a("s_mov_b64 exec, 1")
    a("ds_add_u32 v7, v9 offset:12")
    a("s_mov_b64 exec, -1")
    stamp(a, 3)
    for n in range(2):
        if Cfg.dprog or n == 0:
            lds_wait(a, f"M_wd{n}", M_F, 20+4*n if Cfg.dprog else 24, 8, sleep=1-n)
        for t in range(4):
            for u2 in range(2):
                a(f"ds_read_b64_tr_b16 {vr(BG+8*t+4*n+2*u2,2)}, v{120+t} offset:{M_G+16384*n+8192*u2}")
                if t == 3 and n == 1 and u2 == 0:
                    a("s_waitcnt lgkmcnt(4)")
    a("v_lshlrev_b32 v8, 2, v2")
    a("s_waitcnt lgkmcnt(0)")
    a("s_barrier")
    stamp(a, 4)
    a(f"ds_read_b128 {vr(AX,4)}, v14 offset:{M_H}")
    a(f"ds_read_b128 {vr(AX+4,4)}, v14 offset:{M_H+64}")
    DD = BU
    for n in range(2):
        lgk(a, 1-n)
        for t in range(4):
            c = "0" if n == 0 else vr(DD+4*t, 4)
            a(f"v_mfma_f32_16x16x32_bf16 {vr(DD+4*t,4)}, {vr(AX+4*n,4)}, {vr(BG+8*t+4*n,4)}, {c}")
    for t in range(1, 4):
        a(f"v_mov_b32_dpp v{DD}, v{DD+4*t} quad_perm:[0,1,2,3] row_mask:{hex(1 << t)} bank_mask:0xf")
    a(f"buffer_store_dword v{DD}, v8, s[24:27], s45 offen sc1")
    stamp(a, 5)
    a("s_branch L_fin")
    a.label("M_poller")
    if Cfg.pstat:
        key_wait(a, "M_pbox")
        stat_req(a)
    a(f"s_cmp_ge_u32 s28, {Cfg.resn}")
    a("s_cbranch_scc1 M_nores")
    if not Cfg.pstat:
        key_wait(a, "M_pbox")
    a("v_mov_b32 v9, s33")
    a("v_mov_b32 v10, 0")
    a("s_lshr_b32 s34, s28, 5")
    a("s_add_u32 s34, s34, s28")
    a("s_and_b32 s34, s34, 31")
    a("s_lshl_b32 s34, s34, 7")
    a(f"s_add_u32 s34, s34, {WS_RES}")
    a("s_mov_b64 exec, 1")
    a("buffer_store_dwordx2 v[8:9], v10, s[24:27], s34 offen sc1")
    a("s_mov_b64 exec, -1")
    a.label("M_nores")
    if Cfg.pstat:
        a("s_waitcnt lgkmcnt(0)")
        stat_use(a)
        a("v_mov_b32 v120, s54")
        a("v_mov_b32 v122, 1")
        a("v_mov_b32 v121, v124")
        a("s_mov_b64 exec, 1")
        a("ds_write_b128 v7, v[120:123] offset:32")
        a("s_mov_b64 exec, -1")
    K = 16
    a("v_lshlrev_b32 v9, 4, v2")
    a("v_and_b32 v12, 8, v2")
    a("v_lshl_add_u32 v12, v12, 2, v4")
    a("v_and_b32 v11, 3, v2")
    a("v_lshl_add_u32 v12, v11, 3, v12")
    a("v_and_b32 v11, 4, v2")
    a("v_add_lshl_u32 v12, v12, v11, 1")
    a("s_lshl_b32 s44, s29, 12")
    a(f"s_add_u32 s44, s44, {WS_H1}")
    if Cfg.tau:
        a("s_lshl2_add_u32 s46, s29, s30")
        a("s_lshl_b32 s46, s46, 7")
    else:
        a("s_lshl_b32 s46, s28, 7")
    a(f"s_add_u32 s46, s46, {WS_N1}")
    a("s_lshl_b32 s47, s33, 4")
    a("s_lshr_b32 s35, s28, 3")
    a("s_cmp_ge_u32 s35, 14")
    a("s_cselect_b32 s34, 18, 0")
    a("s_add_u32 s35, s35, s34")
    a("s_and_b32 s34, s28, 7")
    a("s_lshl_b32 s34, s34, 8")
    a("s_add_u32 s34, s34, s35")
    a(f"s_lshl2_add_u32 s55, s34, {WS_N2}")
    a("v_lshlrev_b32 v40, 8, v2")
    a("v_mov_b32 v41, s33")
    if Cfg.n1 == 0:
        lds_wait(a, "M_pu", M_F+12, 4, 14)
    else:
        a("s_and_b32 s34, s28, 0xe8")
        a("s_lshl_b32 s34, s34, 5")
        a("s_bfe_u32 s35, s28, 0x10004")
        a("s_lshl3_add_u32 s34, s35, s34")
        a("s_and_b32 s35, s28, 7")
        a("s_add_u32 s34, s34, s35")
        a(f"s_lshl2_add_u32 s54, s34, {WS_N1}")
        a("v_and_b32 v42, 8, v2")
        a("v_add_lshl_u32 v42, v42, v2, 7")
        lds_wait(a, "M_pu", M_F+20, 7, 14)
        lds_wait(a, "M_pv", M_F, Cfg.n1, 14)
        a("s_mov_b64 exec, 0xffff")
        a("buffer_store_dword v41, v42, s[24:27], s54 offen sc1")
        a("s_mov_b64 exec, -1")
        stamp(a, 2)
        a("s_mov_b32 s62, 0")
        a.label("M_hint")
        a("s_load_dwordx16 s[64:79], s[10:11], s46 glc")
        a("s_waitcnt lgkmcnt(0)")
        for k in range(1, 16):
            a(f"s_add_u32 s64, s64, s{64+k}")
        a("s_cmp_eq_u32 s64, s47")
        sspin_tail(a, "M_hint", "M_hint_d", sleep=0)
        a.label("M_hint_d")
    if Cfg.h1d:
        a(f"s_sleep {Cfg.h1d}")
    stamp(a, 3)

    def hint2(p):
        lds_wait(a, "M_pw", M_F, p, 14, sleep=0)
        a("s_mov_b64 exec, 0xf")
        a("buffer_store_dword v41, v40, s[24:27], s55 offen sc1")
        a("s_mov_b64 exec, -1")

    def h1_loads():
        for k in range(4):
            a(f"buffer_load_dwordx4 {vr(K+4*k,4)}, v9, s[24:27], s44 offen offset:{1024*k} sc1")
    if Cfg.n2 == 2:
        h1_loads()
        hint2(Cfg.n2p)
        a("s_mov_b32 s62, 0")
        a("s_waitcnt vmcnt(1)")
        a("s_branch M_ph_c")
    a("s_mov_b32 s62, 0")
    a.label("M_ph")
    h1_loads()
    a("s_waitcnt vmcnt(0)")
    a.label("M_ph_c")
    Q = 32
    for m_ in range(2):
        for x in range(0, 4, 2):
            a(f"v_pk_add_f32 {vr(Q+4*m_+x,2)}, {vr(K+8*m_+x,2)}, {vr(K+8*m_+4+x,2)}")
    for r in range(0, 8, 2):
        a(f"v_permlane16_swap_b32 v{Q+r}, v{Q+r+1}")
    for r in range(0, 8, 2):
        a(f"v_add_f32 v{Q+r}, v{Q+r}, v{Q+r+1}")
    for m_ in range(2):
        a(f"v_permlane32_swap_b32 v{Q+4*m_}, v{Q+4*m_+2}")
    for m_ in range(2):
        a(f"v_add_f32 v{Q+4*m_}, v{Q+4*m_}, v{Q+4*m_+2}")
    a(f"v_cmp_u_f32 vcc, v{Q}, v{Q+4}")
    a(f"v_mul_f32 v{Q+1}, {f2u(-LOG2E)}, v{Q}")
    if Cfg.nohop:
        a(f"v_mov_b32 v{Q}, 1.0")
        a(f"v_mov_b32 v{Q+1}, 1.0")
        a(f"v_mov_b32 v{Q+4}, 1.0")
        a("s_branch M_ph_d")
    a("s_cbranch_vccz M_ph_d")
    a(f"v_max_u32 v{Q+2}, v{K}, v{K+1}")
    for k in range(1, 8):
        a(f"v_max3_u32 v{Q+2}, v{Q+2}, v{K+2*k}, v{K+2*k+1}")
    a(f"v_cmp_eq_u32 vcc, -1, v{Q+2}")
    spin_tail(a, "M_ph", "M_ph_d", sleep=Cfg.h1s)
    a.label("M_ph_d")
    if Cfg.n2 == 1:
        hint2(24)
    stamp(a, 4)
    a(f"v_exp_f32 v{Q+1}, v{Q+1}")
    a(f"v_mul_f32 v{K}, v{Q}, v{Q+4}")
    a(f"v_add_f32 v{Q+1}, 1.0, v{Q+1}")
    a(f"v_rcp_f32 v{Q+1}, v{Q+1}")
    a(f"v_mul_f32 v{K}, v{K}, v{Q+1}")
    a(f"v_cvt_pk_bf16_f32 v{K}, v{K}, v{K}")
    a(f"ds_write_b16 v12, v{K} offset:{M_H}")
    a("s_waitcnt lgkmcnt(0)")
    a("s_barrier")


def build():
    a = Asm()
    a(f"s_cmp_ge_u32 s2, {NWG}")
    a("s_cbranch_scc1 L_end")
    if Cfg.sep:
        a("s_bitcmp1_b32 s2, 7")
        a("s_cbranch_scc1 L_rm")
        a("s_and_b32 s3, s2, 7")
        a("s_bfe_u32 s4, s2, 0x40003")
        a("s_lshl4_add_u32 s3, s4, s3")
        a("s_lshr_b32 s4, s2, 8")
        a("s_lshl3_add_u32 s2, s4, s3")
        a("s_branch L_rd")
        a.label("L_rm")
        a("s_lshr_b32 s4, s2, 8")
        a("s_and_b32 s3, s2, 127")
        a("s_lshl_b32 s4, s4, 7")
        a("s_add_u32 s2, s3, s4")
        a("s_add_u32 s2, s2, 256")
        a.label("L_rd")
    if Cfg.late:
        a("s_and_b32 s3, s2, 7")
        a(f"s_cmp_lg_u32 s3, {Cfg.latej}")
        a("s_cbranch_scc1 L_nl")
        a(f"s_sleep {Cfg.late}")
        a.label("L_nl")
    if Cfg.stamps:
        a("v_mov_b32 v127, 0")
        a("s_memrealtime s[98:99]")
    a("s_load_dwordx2 s[4:5], s[0:1], 0")
    a("s_load_dwordx2 s[10:11], s[0:1], 96")
    a("s_load_dwordx8 s[36:43], s[0:1], 48")
    a("s_load_dwordx2 s[8:9], s[0:1], 80")
    a("v_lshrrev_b32 v1, 6, v0")
    a("v_and_b32 v2, 63, v0")
    a("v_readfirstlane_b32 s3, v1")
    a("v_and_b32 v3, 15, v0")
    a("v_lshrrev_b32 v4, 4, v2")
    if Cfg.e1:
        if Cfg.mpos == 0:
            a("s_cmp_lt_u32 s2, 256")
            a("s_cbranch_scc1 F_entry")
        else:
            a("s_cmp_ge_u32 s2, 256")
            a("s_cbranch_scc1 M_first")
    elif Cfg.mfront:
        a("s_cmp_lt_u32 s2, 256")
        a("s_cbranch_scc1 F_entry")
    elif Cfg.pf and Cfg.pfn and Cfg.tight:
        n = 128 // Cfg.pfn
        assert n == 32
        a("s_cmp_ge_u32 s2, 256")
        a("s_cbranch_scc1 M_first")
        a("s_cmp_lg_u32 s3, 0")
        a("s_cbranch_scc1 L_nopf")
        a("s_getpc_b64 s[6:7]")
        a.label("L_pc")
        a(f"s_mov_b32 m0, {LDS_BYTES - 256}")
        a("s_bfe_u32 s34, s2, 0x20003")
        a("s_lshl_b32 s34, s34, 12")
        a("v_lshl_add_u32 v8, v0, 7, s34")
        a("v_min_u32 v8, L_end-L_pc, v8")
        a("s_mov_b32 exec_hi, 0")
        a("global_load_lds_dword v8, s[6:7]")
        a("s_mov_b32 exec_hi, -1")
        a.label("L_nopf")
    elif Cfg.pf and Cfg.pfn:
        n = 128 // Cfg.pfn
        a("s_cmp_ge_u32 s2, 256")
        a("s_cbranch_scc1 M_first" if Cfg.lfirst else "s_cbranch_scc1 M_entry")
        a(f"s_cmp_ge_u32 s3, {max(1, n // 64)}")
        a("s_cbranch_scc1 L_nopf")
        a("s_getpc_b64 s[6:7]")
        a.label("L_pc")
        a(f"s_mov_b32 m0, {LDS_BYTES - 256}")
        a(f"s_bfe_u32 s34, s2, {hex(3 + ((Cfg.pfn.bit_length() - 1) << 16))}" if Cfg.pfn > 1 else "s_mov_b32 s34, 0")
        a(f"s_mul_i32 s34, s34, {n*128}")
        a("v_lshl_add_u32 v8, v0, 7, s34")
        a("v_min_u32 v8, L_end-L_pc, v8")
        a("v_mov_b32 v9, s7")
        a("v_add_co_u32 v8, vcc, s6, v8")
        a("v_addc_co_u32 v9, vcc, 0, v9, vcc")
        if n < 64:
            a(f"s_mov_b64 exec, {hex((1 << n) - 1)}")
        a("global_load_lds_dword v[8:9], off")
        if n < 64:
            a("s_mov_b64 exec, -1")
        a.label("L_nopf")
    elif Cfg.pf:
        a("s_cmp_gt_u32 s3, 1")
        a("s_cbranch_scc1 L_nopf")
        a("s_getpc_b64 s[6:7]")
        a.label("L_pc")
        a(f"s_mov_b32 m0, {LDS_BYTES - 256}")
        a("v_lshlrev_b32 v8, 7, v0")
        a("v_min_u32 v8, L_end-L_pc, v8")
        a("v_mov_b32 v9, s7")
        a("v_add_co_u32 v8, vcc, s6, v8")
        a("v_addc_co_u32 v9, vcc, 0, v9, vcc")
        a("global_load_lds_dword v[8:9], off")
        a.label("L_nopf")
    if not Cfg.e1 and not Cfg.mfront and not Cfg.tight:
        a("s_cmp_ge_u32 s2, 256")
        a("s_cbranch_scc1 M_first" if Cfg.lfirst else "s_cbranch_scc1 M_entry")
    fft_role(a)
    moe_role(a)
    a.label("L_fin")
    if Cfg.stamps:
        a("s_waitcnt vmcnt(0)")
        stamp(a, 14)
        a("s_mov_b64 exec, 0xffff")
        a("s_lshl3_add_u32 s34, s2, s3")
        a("s_lshl_b32 s34, s34, 6")
        a(f"s_add_u32 s34, s34, {WS_TS}")
        a("v_lshlrev_b32 v24, 2, v2")
        a("buffer_store_dword v127, v24, s[24:27], s34 offen")
    a.label("L_end")
    a("s_endpgm")
    if Cfg.stamps:
        out, roles = [], 0
        armed = True
        for ln in a.lines:
            out.append(ln)
            if ln in ("M_entry:", "M_loader:", "M_first:", "F_entry:"):
                armed = True
            if armed and ln == "s_waitcnt lgkmcnt(0)":
                out.append("v_writelane_b32 v127, s98, 0")
                armed = False
        a.lines = out
    s = HEADER
    s += "; cfg " + " ".join(sys.argv[2:]) + "\n"
    s += DOC
    s += f"; @launch grid=({NWG},1,1) block=(512,1,1) lds={LDS_BYTES}\n"
    s += '.amdgcn_target "amdgcn-amd-amdhsa--gfx950"\n'
    s += kernel_head(NAME) + a.finalize(True) + kernel_desc(NAME, 128)
    return s


if __name__ == "__main__":
    out = sys.argv[1]
    for kv in sys.argv[2:]:
        k, v = kv.split("=")
        setattr(Cfg, k, type(getattr(Cfg, k))(int(v)) if not isinstance(getattr(Cfg, k), str) else v.replace("+", " "))
    open(out, "w").write(build())
```

```python
import sys, math
sys.path.insert(0, 'tools')
from asmlib import *

NAME = 'recurrent_scan__spectral_fnet__moe_arch_mod__prompt_kernel'
HEADER = open('recurrent_scan__spectral_fnet__moe_arch_mod__prompt.s.ref').read().split('; Override')[0]
WS_BYTES = 268435456
WS_RES = 4096
WS_KY = 8192
WS_ST = WS_KY + 16384
WS_KB = WS_ST + 16384
WS_LD = 131072
WS_H1 = 262144
WS_H2 = WS_H1 + 229376
H2R = 1152 if "h2s9=1" in sys.argv else 1024
NBASE = WS_H2 + 224*H2R if "hwarm=0" not in sys.argv else 131072
WS_N1 = NBASE
WS_N2 = NBASE + (28672 if H2R != 1024 else 32768)
WS_V = 1 << 20
VB = 129 * 128
VU = 8192 + 128
WS_TS = 16 << 20
SPIN_CAP = 200000
NWG = 480

L_X = 0
L_Z = 32768
L_WR = 41216
L_T = 43520
L_U = 32768
L_C = 56832
M_XS = 0
M_ONE = 512
M_H = 1024
M_F = 1152
M_G = 1280
M_U = M_G + 32768
LDS_BYTES = M_U + 32768 + 256

LOG2E = math.log2(math.e)
DOC = """; Generated by tools/gen_v17.py.  out = x + Re(DFT2(LN x)) * silu(LN x + routed-token FFN).
"""


class Cfg:
    stamps = False
    smask = 0xffff
    thr = 12
    thr2 = 28
    g2 = 5
    thr3 = 24
    g3 = 99
    out_flag = "sc1"
    wfl = "nt"
    early_b2 = True
    xpos = 5
    prio = 3
    kprio = 0
    revpos = 4
    hint1 = False
    gfirst = True
    pk0 = 8
    sdelay = 0
    nrep = 8
    brep = 32
    kmap = True
    diag = 0
    pf = 1
    scan2 = True
    h1d = 0
    h1s = 0
    h2s = 0
    xdel = 0
    psl = 5
    ramp = 0
    stag = 4
    n1 = 14
    n2 = 2
    n2p = 20
    h2d = 0
    rdel = 0
    hyb = False
    exact = True
    sfirst = 0
    dxor = 1
    lut = True
    lprio = 3
    pre = True
    vdel = 0
    dprog = True
    noack = 0
    jswap = True
    fin2 = True
    midg = True
    drain = 99
    fastk = False
    lfirst = True
    spos = 0
    edel = 0
    sdel = 0
    ltail = False
    latex = 0
    gate = 0
    gsl = 3
    eh = True
    scan3 = True
    ssl = 2
    nopois = False
    fpf = 0
    fboth = False
    hpf = 0
    nohop = False
    ru = 0
    pf2 = True
    thrn = 0
    nostat = False
    allpre = False
    hwarm = True
    kwarm = 0
    resn = 64
    late = 0
    latej = 0
    kgrp = False
    tlo = 0
    tev = 20
    tcnt = 7
    nsl = 1
    skipg = 0
    halfxp = False
    sfloor = 0
    trim = 2
    agent = 2
    gprog = True
    pp = False
    pstat = False
    vfull = 2
    early = 0
    lprof = 0
    pfn = 4
    e1 = 0
    e1v = 0
    mpos = 0
    wsl = 0
    wsn = 4
    pad = 0
    pad2 = 0
    pad3 = 0
    e2 = 1
    tlbw = 0
    own1 = 1
    fullout = 0
    nostst = 0
    ldg = 0
    ldcap = 6
    epfl = "sc1"
    finfl = ""
    upre = 0
    mon = 0
    noflag = 0
    xfl = ""
    tau = 1
    swp = 0
    mfront = 0
    tight = 1
    escan = 0
    h2s9 = 0
    nogate = 0
    nofin = 0
    est = 0
    sfast = 0
    sep = 0
    hybst = 0


def srd(a, d, b, nbytes):
    a(f"s_mov_b32 s{d}, s{b}")
    a(f"s_and_b32 s{d+1}, s{b+1}, 0xffff")
    a(f"s_mov_b32 s{d+2}, {nbytes}")
    a(f"s_mov_b32 s{d+3}, 0x20000")


def vr(b, n):
    return f"v[{b}:{b+n-1}]"


def stamp(a, i):
    if Cfg.stamps and (Cfg.smask >> i) & 1:
        a("s_memrealtime s[100:101]")
        a("s_waitcnt lgkmcnt(0)")
        a(f"v_writelane_b32 v127, s100, {i}")


def estamp(a, i):
    if Cfg.stamps and Cfg.early:
        a("s_memrealtime s[100:101]")
        a("s_waitcnt lgkmcnt(0)")
        a(f"v_writelane_b32 v127, s100, {i}")


def lstamp(a, i):
    if Cfg.stamps and Cfg.ltail:
        a("s_memrealtime s[100:101]")
        a("s_waitcnt lgkmcnt(0)")
        a(f"v_writelane_b32 v127, s100, {i}")


def lgk(a, n):
    a(f"s_waitcnt lgkmcnt({n})")


def round_bf16(a, v):
    a(f"v_cvt_pk_bf16_f32 v{v}, v{v}, v{v}")
    a(f"v_lshlrev_b32 v{v}, 16, v{v}")


def gen_cs(a, dc, ds, ang, step, t, neg_s):
    sg = "-" if neg_s else ""
    for p in range(4):
        a(f"v_cos_f32 v{t}, v{ang}")
        a(f"v_sin_f32 v{t+1}, v{ang}")
        a(f"v_add_f32 v{ang}, v{ang}, v{step}")
        a(f"v_cos_f32 v{t+2}, v{ang}")
        a(f"v_sin_f32 v{t+3}, v{ang}")
        if p < 3:
            a(f"v_add_f32 v{ang}, v{ang}, v{step}")
        a(f"v_cvt_pk_f16_f32 v{dc+p}, v{t}, v{t+2}")
        a(f"v_cvt_pk_f16_f32 v{ds+p}, {sg}v{t+1}, {sg}v{t+3}")


def silu(a, v, n, tmp):
    for j in range(n):
        a(f"v_mul_f32 v{tmp+j}, {f2u(-LOG2E)}, v{v+j}")
    for j in range(n):
        a(f"v_exp_f32 v{tmp+j}, v{tmp+j}")
    for j in range(n):
        a(f"v_add_f32 v{tmp+j}, 1.0, v{tmp+j}")
    for j in range(n):
        a(f"v_rcp_f32 v{tmp+j}, v{tmp+j}")
    for j in range(n):
        a(f"v_mul_f32 v{v+j}, v{v+j}, v{tmp+j}")


def wave_max_u32(a, v, s):
    for r in (8, 4, 2, 1):
        a(f"v_max_u32_dpp v{v}, v{v}, v{v} row_ror:{r} row_mask:0xf bank_mask:0xf")
    a(f"v_max_u32_dpp v{v}, v{v}, v{v} row_bcast:15 row_mask:0xa bank_mask:0xf")
    a(f"v_max_u32_dpp v{v}, v{v}, v{v} row_bcast:31 row_mask:0xc bank_mask:0xf")
    a(f"v_readlane_b32 s{s}, v{v}, 63")


def round_pairs(a, regs, tmp):
    for p in range(len(regs) // 2):
        a(f"v_cvt_pk_bf16_f32 v{tmp+p}, v{regs[2*p]}, v{regs[2*p+1]}")
    for p in range(len(regs) // 2):
        a(f"v_lshlrev_b32 v{regs[2*p]}, 16, v{tmp+p}")
        a(f"v_and_b32 v{regs[2*p+1]}, 0xffff0000, v{tmp+p}")


def spin_tail(a, label, done, cnt="s62", sleep=1, glob=True):
    a(f"s_add_u32 {cnt}, {cnt}, 1")
    a(f"s_cbranch_vccz {done}")
    if sleep:
        a(f"s_sleep {sleep}")
    a(f"s_cmp_lt_u32 {cnt}, {SPIN_CAP if glob else 5*SPIN_CAP}")
    a(f"s_cbranch_scc1 {label}")


def lds_wait(a, name, off, val, tv, sleep=1):
    a(f"v_mov_b32 v{tv}, {off}")
    a("s_mov_b32 s62, 0")
    a.label(name)
    a(f"ds_read_b32 v{tv+1}, v{tv}")
    a("s_waitcnt lgkmcnt(0)")
    a(f"v_cmp_gt_u32 vcc, {val}, v{tv+1}")
    spin_tail(a, name, name + "_d", sleep=sleep, glob=False)
    a.label(name + "_d")


def sspin_tail(a, label, done, sleep=2):
    a(f"s_cbranch_scc1 {done}")
    a("s_add_u32 s62, s62, 1")
    if sleep:
        a(f"s_sleep {sleep}")
    a(f"s_cmp_lt_u32 s62, {SPIN_CAP}")
    a(f"s_cbranch_scc1 {label}")


def key_wait(a, name):
    a("s_mov_b32 s62, 0")
    a.label(name)
    a("ds_read_b64 v[8:9], v7 offset:16")
    a("s_waitcnt lgkmcnt(0)")
    a("v_cmp_gt_u32 vcc, 7, v9")
    spin_tail(a, name, name + "_d", sleep=0, glob=False)
    a.label(name + "_d")
    a("v_readfirstlane_b32 s48, v8")


def moe_unit(a):
    if Cfg.lut:
        a("s_lshr_b32 s29, s28, 1")
        a("s_xor_b32 s29, s29, s28")
        a("s_and_b32 s29, s29, 8")
        a("s_mul_i32 s29, s29, 3")
        a("s_xor_b32 s28, s28, s29")
    down_tile(a)


def down_tile(a):
    if Cfg.tau:
        a("s_lshr_b32 s29, s28, 4")
        a("s_bfe_u32 s30, s28, 0x20001")
        a("s_lshl2_add_u32 s29, s29, s30")
        a("s_and_b32 s30, s28, 1")
        a("s_lshl_b32 s30, s30, 1")
        a("s_bitcmp1_b32 s28, 3")
        a("s_addc_u32 s30, s30, 0")
        return
    a("s_lshr_b32 s29, s28, 2")
    a("s_and_b32 s30, s28, 3")
    if Cfg.dxor:
        a("s_xor_b32 s30, s30, 1")


def stat_req(a):
    a("s_and_b32 s50, s48, 7")
    a("s_bfe_u32 s34, s48, 0x40003")
    a("s_lshl4_add_u32 s50, s50, s34")
    a("s_bfe_u32 s34, s48, 0x40007")
    a("s_lshl4_add_u32 s50, s50, s34")
    a(f"s_lshl3_add_u32 s50, s50, {WS_ST}")
    a("s_load_dwordx2 s[52:53], s[10:11], s50")


def stat_use(a):
    a("s_mov_b32 s62, 0")
    a.label("M_sta")
    a("s_cmp_eq_u32 s53, s33")
    a("s_cbranch_scc1 M_sta_d" if not Cfg.nostst else "s_branch M_sta_d")
    a("s_load_dwordx2 s[52:53], s[10:11], s50 glc")
    a("s_add_u32 s62, s62, 1")
    a(f"s_cmp_lt_u32 s62, {SPIN_CAP}")
    a("s_waitcnt lgkmcnt(0)")
    a("s_cbranch_scc1 M_sta")
    a.label("M_sta_d")
    a("s_lshl_b32 s54, s52, 16")
    a("s_and_b32 s52, s52, 0xffff0000")
    a(f"v_mov_b32 v124, {f2u(1e-5)}")
    a("v_add_f32 v124, s52, v124")
    round_bf16(a, 124)
    a("v_sqrt_f32 v124, v124")
    round_bf16(a, 124)
    a("v_rcp_f32 v124, v124")


def nonce(a):
    a("s_mul_i32 s33, s33, 0x9e3779b1")
    a("s_add_u32 s33, s33, 0x7f4a7c15")


def fft_role(a):
    PA, PB, WR = 8, 16, 24
    F1C, F1S, R8R, R8I, F2C, F2N, F2S, TWC, TWS = range(32, 68, 4)
    SEL = 68
    DA_, DB_ = 76, 92
    T0 = 108
    AZW, AZR, AVS, AO, K32, VROW, ATB = 120, 121, 122, 123, 124, 125, 126
    AX = DB_
    AY = SEL + 4
    PQ = WR
    def m_first():
        a.label("M_first")
        a("s_cmp_lg_u32 s3, 0")
        a("s_cbranch_scc1 M_entry")
        a(f"s_setprio {Cfg.lprio}")
        a("s_lshr_b32 s29, s2, 1")
        a("s_xor_b32 s29, s29, s2")
        a("s_and_b32 s29, s29, 8")
        a("s_mul_i32 s29, s29, 3")
        a("s_xor_b32 s28, s2, s29")
        a("s_bitset0_b32 s28, 8")
        a("v_mul_u32_u24 v8, 7168, v4")
        a("v_lshlrev_b32 v9, 1, v4")
        a("v_xor_b32 v9, v9, v3")
        a("v_lshl_add_u32 v8, v9, 4, v8")
        a("s_and_b32 s34, s28, 7")
        a(f"s_mulk_i32 s34, {128*28}")
        a("s_lshr_b32 s35, s28, 3")
        a("s_add_u32 s34, s34, s35")
        a("s_lshl_b32 s34, s34, 8")
        a("s_mov_b32 s14, 7340032")
        a("s_mov_b32 s15, 0x20000")
        a(f"s_movk_i32 s46, {M_G}")
        if Cfg.swp:
            a("s_and_b32 s35, s35, 3")
            a("s_cmp_eq_u32 s35, 3")
            a("s_cselect_b32 s35, 512, 0")
            a("s_xor_b32 s34, s34, s35")
            a("s_cmp_eq_u32 s35, 512")
        a("s_mov_b32 s45, s34")
        a("s_waitcnt lgkmcnt(0)")
        if Cfg.swp:
            a("s_cselect_b64 s[12:13], s[40:41], s[38:39]")
            a("s_cselect_b64 s[40:41], s[38:39], s[40:41]")
        else:
            a("s_mov_b64 s[12:13], s[38:39]")
        stamp(a, 2)
        a.label("M_burst")
        a("s_mov_b32 m0, s46")
        a("s_addk_i32 s46, 1024")
        a(f"buffer_load_dwordx4 v8, s[12:15], s45 offen {Cfg.wfl} lds")
        a(f"s_addk_i32 s45, {4*7168}")
        a("v_xor_b32 v8, 128, v8")
        a(f"s_cmpk_lt_u32 s46, {M_G + 1024*Cfg.thr}")
        a("s_cbranch_scc1 M_burst")
        a("s_branch M_loader2")

    def code_prefetch():
        n = 128 // Cfg.pfn
        a(f"s_cmp_ge_u32 s3, {max(1, n // 64)}")
        a("s_cbranch_scc1 L_nopf")
        a("s_getpc_b64 s[6:7]")
        a.label("L_pc")
        a(f"s_mov_b32 m0, {LDS_BYTES - 256}")
        a(f"s_bfe_u32 s34, s2, {hex(3 + ((Cfg.pfn.bit_length() - 1) << 16))}" if Cfg.pfn > 1 else "s_mov_b32 s34, 0")
        a(f"s_mul_i32 s34, s34, {n*128}")
        a("v_lshl_add_u32 v8, v0, 7, s34")
        a("v_min_u32 v8, L_end-L_pc, v8")
        a("v_mov_b32 v9, s7")
        a("v_add_co_u32 v8, vcc, s6, v8")
        a("v_addc_co_u32 v9, vcc, 0, v9, vcc")
        if n < 64:
            a(f"s_mov_b64 exec, {hex((1 << n) - 1)}")
        a("global_load_lds_dword v[8:9], off")
        if n < 64:
            a("s_mov_b64 exec, -1")
        a.label("L_nopf")

    def row_requests():
        a(f"s_mov_b32 m0, {L_WR}")
        a("s_cmp_lg_u32 s3, 0")
        a("s_waitcnt lgkmcnt(0)")
        stamp(a, 1)
        a("s_mov_b64 s[12:13], s[4:5]")
        a("s_load_dword s33, s[10:11], 0")
        a("s_cbranch_scc1 F_nowr")
        a("s_mov_b64 s[16:17], s[36:37]")
        a("buffer_load_dwordx4 v5, s[16:19], 0 offen lds")
        a("buffer_load_dwordx4 v5, s[16:19], 0 offen offset:1024 lds")
        a.label("F_nowr")
        a("s_mov_b32 m0, s53")
        a("s_mov_b64 s[24:25], s[10:11]")
        a(f"buffer_load_dwordx4 v5, s[12:15], s49 offen lds")
        a(f"buffer_load_dwordx4 v5, s[12:15], s49 offen offset:1024 lds")

    def poison():
        a(f"s_mov_b32 s26, {WS_BYTES}")
        a("s_mov_b32 s27, 0x20000")
        a(f"v_lshlrev_b32 v{8 if Cfg.e1 else 7}, 2, v0")
        a("s_lshl_b32 s34, s2, 11")
        a(f"s_add_u32 s34, s34, {WS_H1}")
        a(f"v_mov_b32 v{9 if Cfg.e1 else 6}, -1")
        if Cfg.nopois:
            a("s_mov_b64 exec, 1")
        if Cfg.e1:
            a("buffer_store_dword v9, v8, s[24:27], s34 offen sc1")
        else:
            a("buffer_store_dword v6, v7, s[24:27], s34 offen sc1" if not Cfg.nopois else "buffer_load_dword v1, v7, s[12:15], 0 offen")
        if Cfg.nopois:
            a("s_mov_b64 exec, -1")
    if Cfg.e1:
        assert Cfg.pfn and Cfg.revpos == 4 and not Cfg.fastk
        if Cfg.mpos == 0:
            m_first()
            a.label("F_entry")
        code_prefetch()
    elif Cfg.mfront:
        m_first()
        a.label("F_entry")
        code_prefetch()
    a("s_and_b32 s28, s2, 7")
    a("s_bfe_u32 s44, s2, 0x10003")
    a("s_lshr_b32 s45, s2, 4")
    a("s_xor_b32 s30, s45, 15")
    a("s_lshl3_add_u32 s30, s30, s28")
    a("s_cmp_eq_u32 s30, 0")
    a("s_cselect_b32 s46, 1, 0")
    a("s_cmp_eq_u32 s2, 248")
    a("s_cselect_b32 s30, 128, s30")
    a("s_lshl_b32 s31, s3, 8")
    a("s_add_u32 s31, s31, s30")
    a("s_sub_u32 s32, 0, s31")
    a("s_and_b32 s32, s32, 2047")
    a("s_cmp_eq_u32 s44, 0")
    a("s_cselect_b32 s47, s31, s32")
    a("s_cselect_b32 s48, s32, s31")
    a("s_lshl_b32 s49, s47, 11")
    a("s_lshl_b32 s48, s48, 11")
    a("v_lshrrev_b32 v5, 3, v2")
    a("v_and_b32 v5, 2, v5")
    a("v_xor_b32 v5, v5, v2")
    a("v_lshlrev_b32 v5, 4, v5")
    a("s_lshl_b32 s53, s3, 12")
    if Cfg.tight:
        a("s_lshl_b32 s14, 1, 22")
        a("s_mov_b32 s15, 0x20000")
        a("s_movk_i32 s18, 2048")
        a("s_mov_b32 s19, s15")
    else:
        a("s_mov_b32 s14, 4194304")
        a("s_mov_b32 s15, 0x20000")
        a("s_mov_b32 s18, 2048")
        a("s_mov_b32 s19, 0x20000")
    if not Cfg.e1:
        row_requests()
        if Cfg.lfirst and not Cfg.mfront:
            a("s_branch F_go")
            m_first()
            a.label("F_go")
        poison()

    def rev_loads():
        a("s_add_u32 m0, s53, 2048")
        a(f"buffer_load_dwordx4 v5, s[12:15], s48 offen lds")
        a(f"buffer_load_dwordx4 v5, s[12:15], s48 offen offset:1024 lds")
    if Cfg.revpos == 3:
        rev_loads()
    UN, ANG, AJ = T0+8, T0+9, T0+11
    a(f"v_lshlrev_b32 v{ATB}, 4, v2")
    a("s_and_b32 s34, s3, 1")
    a("s_lshr_b32 s35, s3, 1")
    a(f"v_lshl_add_u32 v{AJ}, s34, 3, v{ATB}")
    a("s_cmp_eq_u32 s35, 3")
    a("s_cbranch_scc1 F_jobr8")
    a("s_lshl4_add_u32 s54, s44, 1")
    a("s_cmp_eq_u32 s35, 2")
    a("s_cselect_b32 s54, 0, s54")
    a("s_cselect_b32 s57, 4096, 0")
    a("s_cmp_eq_u32 s35, 1")
    a(f"s_cselect_b32 s55, {f2u(1/1024)}, 0")
    a("s_cselect_b32 s58, s46, 0")
    a("s_cselect_b32 s57, 7168, s57")
    a(f"s_cselect_b32 s55, s55, {f2u(1/32)}")
    a("s_lshl_b32 s34, s34, 4")
    a(f"v_lshl_add_u32 v{T0+1}, v4, 2, s34")
    a(f"v_cvt_f32_u32 v{T0+1}, v{T0+1}")
    a(f"v_add_u32 v{AJ}, s57, v{AJ}")
    a.label("F_job")
    a(f"v_add_u32 v{UN}, s54, v3")
    a(f"v_cvt_f32_u32 v{UN}, v{UN}")
    a(f"v_mul_f32 v{UN}, s55, v{UN}")
    a(f"v_mul_f32 v{ANG}, v{UN}, v{T0+1}")
    CS = DA_
    for j in range(4):
        a(f"v_cos_f32 v{CS+j}, v{ANG}")
        a(f"v_sin_f32 v{CS+4+j}, v{ANG}")
        if j < 3:
            a(f"v_add_f32 v{ANG}, v{ANG}, v{UN}")
    a("s_cmp_eq_u32 s35, 0")
    a("s_cbranch_scc1 F_jobf1")
    for p in range(2):
        a(f"v_cvt_pk_f16_f32 v{CS+8+p}, v{CS+2*p}, v{CS+2*p+1}")
    for p in range(2):
        a(f"v_cvt_pk_f16_f32 v{CS+10+p}, v{CS+4+2*p}, v{CS+4+2*p+1}")
    for p in range(2):
        a(f"v_xor_b32 v{CS+12+p}, 0x80008000, v{CS+10+p}")
    a(f"ds_write2st64_b64 v{AJ}, {vr(CS+8,2)}, {vr(CS+10,2)} offset0:{L_T//512} offset1:{L_T//512+2}")
    a(f"ds_write_b64 v{AJ}, {vr(CS+12,2)} offset:{L_T+2048}")
    a("s_cmp_eq_u32 s58, 0")
    a("s_cbranch_scc1 F_jobd")
    a("s_mov_b32 s58, 0")
    a("s_xor_b32 s54, s54, 16")
    a(f"v_add_u32 v{AJ}, 3072, v{AJ}")
    a("s_branch F_job")
    a.label("F_jobf1")
    for p in range(2):
        a(f"v_cvt_pk_bf16_f32 v{CS+8+p}, v{CS+2*p}, v{CS+2*p+1}")
    for p in range(2):
        a(f"v_cvt_pk_bf16_f32 v{CS+10+p}, -v{CS+4+2*p}, -v{CS+4+2*p+1}")
    a(f"ds_write2st64_b64 v{AJ}, {vr(CS+8,2)}, {vr(CS+10,2)} offset0:{L_T//512} offset1:{L_T//512+2}")
    a("s_branch F_jobd")
    a.label("F_jobr8")
    STP = T0+10
    a(f"v_and_b32 v{STP}, 7, v3")
    a(f"v_cvt_f32_u32 v{STP}, v{STP}")
    a(f"v_mul_f32 v{STP}, {f2u(1/8)}, v{STP}")
    a(f"v_and_b32 v{ANG}, 1, v4")
    a(f"v_lshl_add_u32 v{ANG}, v{ANG}, 1, s34")
    a(f"v_cvt_f32_u32 v{ANG}, v{ANG}")
    a(f"v_mul_f32 v{ANG}, v{ANG}, v{STP}")
    a(f"v_add_f32 v{ANG}, v{ANG}, v{ANG}")
    a(f"v_add_f32 v{STP}, v{ANG}, v{STP}")
    a(f"v_cos_f32 v{CS}, v{ANG}")
    a(f"v_sin_f32 v{CS+1}, v{ANG}")
    a(f"v_cos_f32 v{CS+2}, v{STP}")
    a(f"v_sin_f32 v{CS+3}, v{STP}")
    a(f"v_lshrrev_b32 v{UN}, 2, v2")
    a(f"v_xor_b32 v{UN}, v{UN}, v2")
    a(f"v_bfe_u32 v{UN}, v{UN}, 3, 1")
    a(f"v_add_u32 v{UN}, -1, v{UN}")
    a("s_lshl_b32 s34, s44, 31")
    for jj in range(2):
        a(f"v_cvt_pk_f16_f32 v{CS+8+jj}, v{CS+2*jj}, v{CS+2*jj+1}")
        a(f"v_cvt_pk_f16_f32 v{CS+10+jj}, -v{CS+2*jj+1}, v{CS+2*jj}")
    for r in range(4):
        a(f"v_bitop3_b32 v{CS+8+r}, v{CS+8+r}, s34, v{UN} bitop3:0x28")
    a(f"ds_write2st64_b64 v{AJ}, {vr(CS+8,2)}, {vr(CS+10,2)} offset0:{L_T//512+4} offset1:{L_T//512+6}")
    a.label("F_jobd")
    QA, QB, DW = range(T0, T0+3)
    val = []
    for r in range(4):
        val.append(f"v_mov_b32 v{T0+r}, 0")
    val.append(f"v_mov_b32 v7, {L_C}")
    val.append(f"ds_write_b128 v7, {vr(T0,4)}")
    val += [
        f"v_and_b32 v{AX+4}, 60, v2",
        f"v_and_b32 v{AX+5}, 3, v2",
        f"v_lshl_add_u32 v{AX+4}, v{AX+4}, 1, v{AX+5}",
        f"v_bfe_u32 v{AX+5}, v2, 4, 1",
        f"v_lshl_add_u32 v{AX+4}, v{AX+5}, 2, v{AX+4}",
        f"v_lshlrev_b32 v{AX+4}, 3, v{AX+4}",
        f"v_xor_b32 v{AX+5}, 32, v{AX+4}",
        f"v_add_u32 v{AX}, s53, v{AX+4}",
        f"v_xor_b32 v{AX+1}, 32, v{AX}",
        f"v_xor_b32 v{AX+2}, 0x3d8, v{AX}",
        f"v_xor_b32 v{AX+3}, 0x3f8, v{AX}",
        f"v_and_b32 v{AY}, 0x3d8, v{AX+4}",
        f"v_sub_u32 v{AY}, 1024, v{AY}",
        f"v_add_u32 v{AY+1}, -32, v{AY}",
        f"v_lshrrev_b32 v{AY+2}, 3, v{AY}",
        f"v_lshrrev_b32 v{AY+3}, 3, v{AY+1}",
        f"v_bitop3_b32 v{AY}, v{AY}, v{AY+2}, 32 bitop3:0x78",
        f"v_bitop3_b32 v{AY+1}, v{AY+1}, v{AY+3}, 32 bitop3:0x78",
        f"v_add_u32 v{AY}, s53, v{AY}",
        f"v_add_u32 v{AY+1}, s53, v{AY+1}",
        f"v_xor_b32 v{AY+2}, 1024, v{AY}",
    ]
    for r in range(4):
        val.append(f"v_mov_b32 v{SEL+r}, 0x3f803f80")
    val += [
        f"v_bfe_u32 v{AZW}, v3, 1, 2",
        f"v_xor_b32 v{AZW}, v{AZW}, v4",
        f"v_lshl_add_u32 v{AZW}, v3, 2, v{AZW}",
        f"v_lshl_add_u32 v{AZW}, v{AZW}, 4, s58",
        f"v_xor_b32 v{AZR}, s59, v3",
        f"v_lshrrev_b32 v{T0+4}, 1, v4",
        f"v_lshl_add_u32 v{AZR}, v{T0+4}, 4, v{AZR}",
        f"v_and_b32 v{T0+4}, 1, v4",
        f"v_mul_u32_u24 v{T0+4}, 1040, v{T0+4}",
        f"v_add_lshl_u32 v{AZR}, v{AZR}, v{T0+4}, 2",
        f"v_and_b32 v{T0+5}, 7, v3",
        f"v_lshrrev_b32 v{T0+4}, 3, v3",
        *([f"v_mul_u32_u24 v{AVS}, {128 if Cfg.vfull == 2 else 16*VB}, v{T0+5}",
           f"v_lshl_add_u32 v{AVS}, v{T0+4}, 6, v{AVS}"] if Cfg.vfull else
          [f"v_lshl_add_u32 v{AVS}, v{T0+5}, 4, v{T0+4}",
           f"v_mul_u32_u24 v{AVS}, {VB}, v{AVS}"]),
        f"v_lshl_add_u32 v{AVS}, v4, 4, v{AVS}",
        "v_bfe_u32 v6, v2, 2, 2",
        "v_lshl_add_u32 v6, v6, 2, v4",
        "v_and_b32 v1, 3, v2",
        "v_lshlrev_b32 v1, 4, v1",
        "v_lshl_add_u32 v6, v6, 18, v1",
        f"v_lshlrev_b32 v{AO}, 14, v{T0+4}",
        f"v_lshl_add_u32 v{AO}, v4, 20, v{AO}",
        f"v_lshl_add_u32 v{AO}, v{T0+5}, 3, v{AO}",
        f"v_add_u32 v{K32}, 1, v3",
        f"v_bfe_i32 v{K32}, v{K32}, 4, 1",
        f"v_and_b32 v{K32}, s63, v{K32}",
        f"v_mov_b32 v{VROW}, s47",
        f"v_mov_b32 v{T0+10}, 1",
        f"v_mov_b32 v{T0+11}, 0",
    ]
    sal = [
        "s_lshr_b32 s58, s3, 2", "s_lshl4_add_u32 s58, s3, s58", "s_lshl_b32 s58, s58, 6",
        "s_and_b32 s59, s3, 3", "s_lshl3_add_u32 s59, s3, s59", "s_lshl_b32 s59, s59, 2",
        *(["s_mov_b32 s34, 0x71605432", "s_mov_b32 s35, 0x98fedcba", "s_lshl_b32 s56, s45, 2", "s_lshr_b64 s[34:35], s[34:35], s56",
           "s_and_b32 s34, s34, 15", "s_xor_b32 s45, s45, 8", "s_cmp_eq_u32 s44, 0", "s_cselect_b32 s45, s45, s34"] if Cfg.lut else
          ["s_mul_i32 s34, s44, 14", "s_xor_b32 s34, s34, 8", "s_xor_b32 s45, s45, s34"]),
        *(["s_sub_u32 s34, 0, s28", "s_and_b32 s34, s34, 7", "s_lshr_b32 s35, s45, 1", "s_cmp_lt_u32 s35, s44",
           "s_cselect_b32 s28, s34, s28"] if Cfg.jswap else []),
        "s_sub_u32 s34, 0, s28", "s_and_b32 s34, s34, 7", "s_sub_u32 s35, 31, s45", "s_cmp_eq_u32 s44, 0",
        "s_cselect_b32 s56, s28, s34", "s_cselect_b32 s57, s45, s35", f"s_cselect_b32 s63, 0, {f2u(-32.0)}",
        "s_and_b32 s34, s30, 15", "s_sub_u32 s35, 16, s34", "s_and_b32 s50, s34, 7", "s_cmp_gt_u32 s34, 8",
        "s_cselect_b32 s50, s35, s50",
        "s_and_b32 s34, s34, 8", "s_lshl4_add_u32 s50, s50, s34", "s_lshr_b32 s34, s30, 4", "s_add_u32 s50, s50, s34",
        "s_cmp_eq_u32 s30, 128", "s_cselect_b32 s50, 128, s50", "s_lshl1_add_u32 s29, s50, s44",
        *([f"s_mul_i32 s50, s29, {VU}", "s_lshl_b32 s34, s3, 10"] if Cfg.vfull == 2 else
          ["s_lshl_b32 s50, s50, 7", "s_lshl1_add_u32 s34, s3, s44", f"s_mul_i32 s34, s34, {VB}"] if Cfg.vfull else
          ["s_lshl_b32 s50, s29, 6", f"s_mul_i32 s34, s3, {2*VB}"]),
        "s_add_u32 s50, s50, s34", f"s_add_u32 s50, s50, {WS_V}",
        "s_and_b32 s29, s29, 255", f"s_lshl2_add_u32 s29, s29, {WS_KB}",
        "s_and_b32 s51, s47, 7", "s_bfe_u32 s34, s47, 0x40003", "s_lshl4_add_u32 s51, s51, s34",
        "s_lshr_b32 s34, s47, 7", "s_lshl4_add_u32 s51, s51, s34", f"s_lshl3_add_u32 s51, s51, {WS_ST}",
        "s_lshl_b32 s52, s46, 23", f"s_sub_u32 s52, {f2u(1/8)}, s52",
        "s_lshl4_add_u32 s64, s3, s56", "s_lshl_b32 s64, s64, 11", "s_lshl_b32 s34, s57, 6", "s_add_u32 s64, s64, s34",
        "s_add_u32 s65, s64, 262144", "s_add_u32 s66, s64, 524288", "s_add_u32 s67, s64, 786432",
        "s_mov_b32 s60, 0x80000000", "s_mov_b32 s61, 0xfffff800",
        "s_mov_b64 s[20:21], s[8:9]", "s_mov_b32 s22, 4194304", "s_mov_b32 s23, 0x20000",
    ]
    mid_v, mid_s, post_v, post_s = [], [], [], []
    if Cfg.e2:
        assert Cfg.lut and Cfg.jswap and Cfg.vfull == 2 and not Cfg.fastk
        TA, TB = PB, PB + 1
        mid_v = [
            f"v_xor_b32 v{AX+2}, 0x3d8, v{AX}",
            f"v_xor_b32 v{AX+3}, 0x3f8, v{AX}",
            f"v_and_b32 v{AY}, 0x3d8, v{AX+4}",
            f"v_sub_u32 v{AY}, 1024, v{AY}",
            f"v_add_u32 v{AY+1}, -32, v{AY}",
            f"v_lshrrev_b32 v{AY+2}, 3, v{AY}",
            f"v_lshrrev_b32 v{AY+3}, 3, v{AY+1}",
            f"v_bitop3_b32 v{AY}, v{AY}, v{AY+2}, 32 bitop3:0x78",
            f"v_bitop3_b32 v{AY+1}, v{AY+1}, v{AY+3}, 32 bitop3:0x78",
            f"v_add_u32 v{AY}, s53, v{AY}",
            f"v_add_u32 v{AY+1}, s53, v{AY+1}",
            f"v_xor_b32 v{AY+2}, 1024, v{AY}",
            f"v_bfe_u32 v{AZW}, v3, 1, 2",
            f"v_xor_b32 v{AZW}, v{AZW}, v4",
            f"v_lshl_add_u32 v{AZW}, v3, 2, v{AZW}",
            f"v_lshl_add_u32 v{AZW}, v{AZW}, 4, s58",
            f"v_xor_b32 v{AZR}, s59, v3",
            f"v_lshrrev_b32 v{TA}, 1, v4",
            f"v_lshl_add_u32 v{AZR}, v{TA}, 4, v{AZR}",
            f"v_and_b32 v{TA}, 1, v4",
            f"v_mul_u32_u24 v{TA}, 1040, v{TA}",
            f"v_add_lshl_u32 v{AZR}, v{AZR}, v{TA}, 2",
            f"v_and_b32 v{TB}, 7, v3",
            f"v_lshrrev_b32 v{TA}, 3, v3",
            f"v_mul_u32_u24 v{AVS}, 128, v{TB}",
            f"v_lshl_add_u32 v{AVS}, v{TA}, 6, v{AVS}",
            f"v_lshl_add_u32 v{AVS}, v4, 4, v{AVS}",
            f"v_add_u32 v{K32}, 1, v3",
            f"v_bfe_i32 v{K32}, v{K32}, 4, 1",
            f"v_and_b32 v{K32}, s35, v{K32}",
        ]
        mid_s = [
            "s_lshr_b32 s58, s3, 2", "s_lshl4_add_u32 s58, s3, s58", "s_lshl_b32 s58, s58, 6",
            "s_and_b32 s59, s3, 3", "s_lshl3_add_u32 s59, s3, s59", "s_lshl_b32 s59, s59, 2",
            "s_and_b32 s34, s30, 15", "s_sub_u32 s35, 16, s34", "s_and_b32 s50, s34, 7", "s_cmp_gt_u32 s34, 8",
            "s_cselect_b32 s50, s35, s50",
            "s_and_b32 s34, s34, 8", "s_lshl4_add_u32 s50, s50, s34", "s_lshr_b32 s34, s30, 4", "s_add_u32 s50, s50, s34",
            "s_cmp_eq_u32 s30, 128", "s_cselect_b32 s50, 128, s50", "s_lshl1_add_u32 s29, s50, s44",
            f"s_mul_i32 s50, s29, {VU}", "s_lshl_b32 s34, s3, 10",
            "s_add_u32 s50, s50, s34", f"s_add_u32 s50, s50, {WS_V}",
            "s_and_b32 s29, s29, 255", f"s_lshl2_add_u32 s29, s29, {WS_KB}",
            "s_cmp_eq_u32 s44, 0", f"s_cselect_b32 s35, 0, {f2u(-32.0)}",
        ]
        post_v = [
            "v_bfe_u32 v6, v2, 2, 2",
            "v_lshl_add_u32 v6, v6, 2, v4",
            "v_and_b32 v1, 3, v2",
            "v_lshlrev_b32 v1, 4, v1",
            "v_lshl_add_u32 v6, v6, 18, v1",
            f"v_lshrrev_b32 v{T0}, 3, v3",
            f"v_and_b32 v{T0+1}, 7, v3",
            f"v_lshlrev_b32 v{AO}, 14, v{T0}",
            f"v_lshl_add_u32 v{AO}, v4, 20, v{AO}",
            f"v_lshl_add_u32 v{AO}, v{T0+1}, 3, v{AO}",
        ]
        if Cfg.fullout:
            post_v[-3:] = [f"v_lshlrev_b32 v{AO}, 3, v3", f"v_lshl_add_u32 v{AO}, v4, 20, v{AO}", f"v_mov_b32 v{T0}, 0"]
        post_s = [
            "s_mov_b32 s34, 0x71605432", "s_mov_b32 s35, 0x98fedcba", "s_lshl_b32 s56, s45, 2", "s_lshr_b64 s[34:35], s[34:35], s56",
            "s_and_b32 s34, s34, 15", "s_xor_b32 s45, s45, 8", "s_cmp_eq_u32 s44, 0", "s_cselect_b32 s45, s45, s34",
            "s_sub_u32 s34, 0, s28", "s_and_b32 s34, s34, 7", "s_lshr_b32 s35, s45, 1", "s_cmp_lt_u32 s35, s44",
            "s_cselect_b32 s28, s34, s28",
            "s_sub_u32 s34, 0, s28", "s_and_b32 s34, s34, 7", "s_sub_u32 s35, 31, s45", "s_cmp_eq_u32 s44, 0",
            "s_cselect_b32 s56, s28, s34", "s_cselect_b32 s57, s45, s35",
            "s_lshl4_add_u32 s64, s3, s56", "s_lshl_b32 s64, s64, 11", "s_lshl_b32 s34, s57, 6", "s_add_u32 s64, s64, s34",
            "s_add_u32 s65, s64, 262144", "s_add_u32 s66, s64, 524288", "s_add_u32 s67, s64, 786432",
            "s_mov_b64 s[20:21], s[8:9]", "s_mov_b32 s22, 4194304", "s_mov_b32 s23, 0x20000",
        ]
        val = [f"v_mov_b32 v{T0+r}, 0" for r in range(4)] + [f"v_mov_b32 v7, {L_C}", f"ds_write_b128 v7, {vr(T0,4)}",
            f"v_and_b32 v{AX+4}, 60, v2",
            f"v_and_b32 v{AX+5}, 3, v2",
            f"v_lshl_add_u32 v{AX+4}, v{AX+4}, 1, v{AX+5}",
            f"v_bfe_u32 v{AX+5}, v2, 4, 1",
            f"v_lshl_add_u32 v{AX+4}, v{AX+5}, 2, v{AX+4}",
            f"v_lshlrev_b32 v{AX+4}, 3, v{AX+4}",
            f"v_xor_b32 v{AX+5}, 32, v{AX+4}",
            f"v_add_u32 v{AX}, s53, v{AX+4}",
            f"v_xor_b32 v{AX+1}, 32, v{AX}"] + [f"v_mov_b32 v{SEL+r}, 0x3f803f80" for r in range(4)] + [
            f"v_mov_b32 v{VROW}, s47", f"v_mov_b32 v{T0+10}, 1", f"v_mov_b32 v{T0+11}, 0"]
        sal = ["s_and_b32 s51, s47, 7", "s_bfe_u32 s34, s47, 0x40003", "s_lshl4_add_u32 s51, s51, s34",
               "s_lshr_b32 s34, s47, 7", "s_lshl4_add_u32 s51, s51, s34", f"s_lshl3_add_u32 s51, s51, {WS_ST}",
               "s_lshl_b32 s52, s46, 23", f"s_sub_u32 s52, {f2u(1/8)}, s52",
               "s_mov_b32 s60, 0x80000000", "s_mov_b32 s61, 0xfffff800", "s_mov_b32 s71, 0"]

    def inter(sl, vl):
        for k in range(max(len(sl), len(vl))):
            if k < len(sl):
                a(sl[k])
            if k < len(vl):
                a(vl[k])

    def pairs(lo, hi):
        for k in range(lo, hi):
            if k < len(sal):
                a(sal[k])
            if k < len(val):
                a(val[k])

    def table_reads():
        for k in range(9):
            a(f"ds_read_b128 {vr(F1C+4*k,4)}, v{ATB} offset:{L_T+1024*k}")
    SW, S = DB_ + 8, DB_ + 12

    def ror(v, r):
        a(f"v_add_f32_dpp v{v}, v{v}, v{v} row_ror:{r} row_mask:0xf bank_mask:0xf")
    npairs = max(len(val), len(sal))
    if Cfg.e1:
        late = [x for x in sal if "s[8:9]" in x]
        sal = [x for x in sal if "s[8:9]" not in x]
        pairs(0, Cfg.e1v)
        row_requests()
        if Cfg.mpos == 1:
            a("s_branch F_go")
            m_first()
            a.label("F_go")
        a("s_barrier")
        table_reads()
        poison()
        pairs(Cfg.e1v, npairs)
        for x in late:
            a(x)
        estamp(a, 9)
        a("s_waitcnt vmcnt(3) lgkmcnt(0)")
        estamp(a, 10)
        a("s_barrier")
        stamp(a, 2)
        for be in range(2):
            for u2 in range(2):
                a(f"ds_read_b64_tr_b16 {vr(WR+4*be+2*u2,2)}, v{AX+4+be} offset:{L_WR+1024*u2}")
        nonce(a)
        a(f"s_mov_b32 s63, {f2u(1/1024)}")
        a(f"v_mov_b32 v{T0+9}, s33")
        if Cfg.kprio:
            a(f"s_setprio {Cfg.kprio}")
        a("s_waitcnt vmcnt(1)")
        estamp(a, 11)
    else:
        pairs(0, npairs)
        for k in range(Cfg.pad):
            a(f"v_lshlrev_b32 v{DA_ + k % 8}, 1, v2")
        if Cfg.revpos == 0:
            rev_loads()
        if Cfg.e2 == 2:
            inter(mid_s, mid_v)
        estamp(a, 9)
        a(f"s_waitcnt vmcnt({5 if Cfg.revpos in (0, 3) else 3}) lgkmcnt(0)")
        estamp(a, 10)
        a("s_barrier")
        if Cfg.revpos == 1:
            rev_loads()
        stamp(a, 2)
        for be in range(2):
            for u2 in range(2):
                a(f"ds_read_b64_tr_b16 {vr(WR+4*be+2*u2,2)}, v{AX+4+be} offset:{L_WR+1024*u2}")
        if not Cfg.fastk:
            table_reads()
        if Cfg.revpos == 2:
            rev_loads()
        nonce(a)
        a(f"s_mov_b32 s63, {f2u(1/1024)}")
        a(f"v_mov_b32 v{T0+9}, s33")
        lgk(a, 0 if Cfg.fastk else 9)
        a(f"v_mfma_f32_16x16x32_bf16 {vr(SW,4)}, {vr(SEL,4)}, {vr(WR,4)}, 0")
        a(f"v_mfma_f32_16x16x32_bf16 {vr(SW,4)}, {vr(SEL,4)}, {vr(WR+4,4)}, {vr(SW,4)}")
        if not Cfg.fastk:
            for r in (8, 4, 2, 1):
                ror(SW, r)
        stamp(a, 3)
        if Cfg.kprio:
            a(f"s_setprio {Cfg.kprio}")
        if Cfg.revpos == 4:
            a("s_waitcnt vmcnt(1) lgkmcnt(0)")
            estamp(a, 11)
            if not Cfg.fastk:
                rev_loads()
        else:
            a("s_waitcnt vmcnt(3) lgkmcnt(0)")
    for be in range(2):
        for u2 in range(2):
            a(f"ds_read_b64_tr_b16 {vr(PA+4*be+2*u2,2)}, v{AX+be} offset:{1024*u2}")

    def xp_load(h):
        if h == 0:
            a("s_mov_b32 m0, s53")
            a("s_add_u32 s35, s64, 16384")
            a(f"buffer_load_dwordx4 v6, s[12:15], s64 offen {Cfg.xfl} lds")
        else:
            a("s_add_u32 m0, s53, 1152")
            a("s_add_u32 s35, s64, 16384")
            if Cfg.halfxp:
                a("s_mov_b64 exec, 1")
            a(f"buffer_load_dwordx4 v6, s[12:15], s35 offen {Cfg.xfl} lds")
            if Cfg.halfxp:
                a("s_mov_b64 exec, -1")

    def bc15(v):
        a(f"v_add_f32_dpp v{v}, v{v}, v{v} row_bcast:15 row_mask:0xa bank_mask:0xf")

    def s1(D, P):
        for c, F1 in enumerate((F1C, F1S)):
            for b in range(2):
                a(f"v_mfma_f32_16x16x32_bf16 {vr(D+8*c+4*b,4)}, {vr(P+4*b,4)}, {vr(F1,4)}, 0")
    if (Cfg.fastk or Cfg.e1) and Cfg.revpos == 4:
        rev_loads()
    if Cfg.e1:
        lgk(a, 4)
        a(f"v_mfma_f32_16x16x32_bf16 {vr(SW,4)}, {vr(SEL,4)}, {vr(WR,4)}, 0")
        a(f"v_mfma_f32_16x16x32_bf16 {vr(SW,4)}, {vr(SEL,4)}, {vr(WR+4,4)}, {vr(SW,4)}")
    lgk(a, 2)
    a(f"v_mfma_f32_16x16x32_bf16 {vr(S,4)}, {vr(SEL,4)}, {vr(PA,4)}, 0")
    for j in range(8):
        if j == 4:
            lgk(a, 0)
            a(f"v_mfma_f32_16x16x32_bf16 {vr(S,4)}, {vr(SEL,4)}, {vr(PA+4,4)}, {vr(S,4)}")
        a(f"v_dot2_f32_bf16 v{DW}, v{PA+j}, v{WR+j}, v{DW}")
        a(f"v_dot2_f32_bf16 v{QA}, v{PA+j}, v{PA+j}, v{QA}")
    M, RS, CC = T0+4, T0+3, T0+5
    sw = (lambda r: ror(SW, r)) if (Cfg.fastk or Cfg.e1) else (lambda r: None)
    ror(S, 8)
    sw(8)
    a(f"v_permlane32_swap_b32 v{QA}, v{DW}")
    ror(S, 4)
    a(f"v_add_f32 v{QA}, v{QA}, v{DW}")
    sw(4)
    ror(S, 2)
    ror(QA, 8)
    sw(2)
    ror(S, 1)
    ror(QA, 4)
    sw(1)
    a(f"v_mul_f32 v{M}, {f2u(1/1024)}, v{S}")
    ror(QA, 2)
    a(f"v_mul_f32 v{CC}, -v{M}, v{M}")
    ror(QA, 1)
    a(f"v_mul_f32 v{DW}, v{M}, v{SW}")
    bc15(QA)
    a(f"v_readlane_b32 s34, v{QA}, 48")
    a(f"v_fmamk_f32 v{QA}, v{QA}, {f2u(1/1024)}, v{CC}")
    a(f"v_max_f32 v{QA}, 0, v{QA}")
    a(f"v_add_f32 v{RS}, {f2u(1e-5)}, v{QA}")
    a(f"v_rsq_f32 v{RS}, v{RS}")
    a(f"v_sub_f32 v{DW}, s34, v{DW}")
    a(f"v_mul_f32 v{DW}, v{DW}, v{RS}")
    a(f"v_ashrrev_i32 v{T0+7}, 31, v{DW}")
    a(f"v_bitop3_b32 v{T0+7}, v{DW}, v{T0+7}, s60 bitop3:0x1e")
    a(f"v_and_or_b32 v{T0+7}, v{T0+7}, s61, v{VROW}")
    estamp(a, 13)
    a("s_mov_b64 exec, 0x10000")
    a("s_waitcnt vmcnt(2)")
    if Cfg.stamps and Cfg.early:
        a("s_mov_b64 exec, -1")
        estamp(a, 15)
        a("s_mov_b64 exec, 0x10000")
    a(f"ds_max_u32 v7, v{T0+7}")
    a(f"ds_add_rtn_u32 v{T0+10}, v7, v{T0+10} offset:8")
    a(f"v_cvt_pk_bf16_f32 v{T0+8}, v{M}, v{QA}")
    if Cfg.nostst:
        a(f"s_lshl3_add_u32 s34, s2, s3")
        a(f"s_lshl_b32 s34, s34, 7")
        a(f"s_add_u32 s34, s34, {8 << 20}")
    a(f"buffer_store_dwordx2 {vr(T0+8,2)}, v{T0+11}, s[24:27], {'s34' if Cfg.nostst else 's51'} offen sc1")
    a("s_mov_b64 exec, -1")
    a(f"ds_read_b32 v{T0+6}, v7")
    if Cfg.fastk:
        table_reads()
    a(f"v_mul_f32 v{RS}, s52, v{RS}")
    a(f"v_mul_f32 v{CC}, v{M}, v{RS}")
    a(f"v_readlane_b32 s54, v{RS}, 16")
    a(f"v_readlane_b32 s70, v{CC}, 16")
    if not Cfg.fastk:
        s1(DA_, PA)
    lgk(a, 9 if Cfg.fastk else 0)
    a(f"v_readlane_b32 s34, v{T0+10}, 16")
    a("s_cmp_lg_u32 s34, 7")
    a("s_cbranch_scc0 F_key")
    if Cfg.fastk:
        a.label("F_nokey")
        if Cfg.kprio:
            a("s_setprio 0")
        lgk(a, 7)
        s1(DA_, PA)
        a("s_cmp_lg_u32 s34, 7")
        a("s_waitcnt vmcnt(2) lgkmcnt(0)")
        a("s_cbranch_scc0 F_nokey2")
    estamp(a, 12)
    if Cfg.e2:
        a.label("F_nokey")
        if Cfg.kprio:
            a("s_setprio 0")
        if Cfg.e2 == 1:
            inter(mid_s, mid_v)
        a("s_cmp_lg_u32 s71, 0")
        a("s_cbranch_scc1 F_wkey")
        a("s_waitcnt vmcnt(1)")
        a.label("F_wkey_r")
    else:
        a("s_waitcnt vmcnt(1)")
        a.label("F_nokey2" if Cfg.fastk else "F_nokey")
    if Cfg.diag == 2:
        a("s_branch L_fin")
    if Cfg.kprio and not Cfg.fastk and not Cfg.e2:
        a("s_setprio 0")
    stamp(a, 4)
    for be in range(2):
        for u2 in range(2):
            a(f"ds_read_b64_tr_b16 {vr(PQ+4*be+2*u2,2)}, v{AX+2+be} offset:{2048+1024*(1-u2)}")
    a(f"ds_read_b64_tr_b16 {vr(PB,2)}, v{AY+2} offset:2048")
    a(f"ds_read_b64_tr_b16 {vr(PB+2,2)}, v{AY} offset:2048")
    a(f"ds_read_b64_tr_b16 {vr(PB+4,2)}, v{AY+1} offset:3072")
    a(f"ds_read_b64_tr_b16 {vr(PB+6,2)}, v{AY+1} offset:2048")
    lgk(a, 6)
    a(f"v_mfma_f32_16x16x32_bf16 {vr(S,4)}, {vr(SEL,4)}, {vr(PQ,4)}, 0")
    for j in range(8):
        if j == 4:
            lgk(a, 4)
            a(f"v_mfma_f32_16x16x32_bf16 {vr(S,4)}, {vr(SEL,4)}, {vr(PQ+4,4)}, {vr(S,4)}")
        a(f"v_dot2_f32_bf16 v{QB}, v{PQ+j}, v{PQ+j}, v{QB}")
    a("s_mov_b32 exec_lo, 0xeeeeeeee")
    a("s_mov_b32 exec_hi, 0xeeeeeeee")
    lgk(a, 0)
    for j in range(8):
        a(f"v_mov_b32_dpp v{PB+j}, v{PQ+j} quad_perm:[0,3,2,1] row_mask:0xf bank_mask:0xf")
    a("s_mov_b64 exec, -1")
    if Cfg.xpos in (7, 8):
        xp_load(0)
    if Cfg.xpos == 7:
        xp_load(1)
    a(f"v_add_f32_dpp v{M}, v{S}, v{S} row_ror:8 row_mask:0xf bank_mask:0xf")
    mf = [f"v_mfma_f32_16x16x32_bf16 {vr(DB_+8*c+4*b,4)}, {vr(PB+4*b,4)}, {vr(F1,4)}, 0"
          for c, F1 in enumerate((F1C, F1S)) for b in range(2)]
    ror(QB, 8)
    a(mf[0])
    for k, r in enumerate((4, 2, 1)):
        ror(M, r)
        ror(QB, r)
        a(mf[1+k])
    a(f"v_mul_f32 v{M}, {f2u(1/1024)}, v{M}")
    bc15(QB)
    a(f"v_fmaak_f32 v{CC}, v{M}, v{M}, {f2u(-1e-5)}")
    CV = T0+8
    a(f"v_mul_f32 v{CV}, s70, v{K32}")
    a(f"v_add_f32_dpp v{QB}, v{QB}, v{QB} row_bcast:31 row_mask:0xc bank_mask:0xf")
    a(f"v_fma_f32 v{QB}, v{QB}, s63, -v{CC}")
    a(f"v_max_f32 v{QB}, {f2u(1e-5)}, v{QB}")
    a(f"v_rsq_f32 v{QB}, v{QB}")
    for r in range(8, 16, 2):
        a(f"v_pk_mul_f32 {vr(DA_+r,2)}, {vr(DA_+r,2)}, s[54:55] op_sel:[0,0] op_sel_hi:[1,0]")
        if r == 8:
            a(f"v_mul_f32 v{QB}, s52, v{QB}")
        if r == 10:
            a(f"v_readlane_b32 s55, v{QB}, 48")
    a(f"v_mul_f32 v{M}, s55, v{M}")
    a(f"v_fmac_f32 v{CV}, v{M}, v{K32}")
    a.label("F_pass")
    T, TP, D2, Z = WR, SEL, DB_, WR
    for r in range(0, 8, 2):
        a(f"v_pk_fma_f32 {vr(DA_+r,2)}, {vr(DA_+r,2)}, s[54:55], {vr(CV,2)} op_sel:[0,0,0] op_sel_hi:[1,0,0]")
    for r in range(0, 16, 2):
        a(f"v_pk_fma_f32 {vr(DA_+r,2)}, {vr(DB_+r,2)}, s[54:55], {vr(DA_+r,2)} op_sel:[0,1,0] op_sel_hi:[1,1,1]")
    for r in range(8):
        a(f"v_cvt_pk_f16_f32 v{T+r}, v{DA_+2*r}, v{DA_+2*r+1}")
    for i in range(4):
        a(f"v_pk_mul_f16 v{TP+i}, v{T+i}, v{TWC+i}")
    for i in range(4):
        a(f"v_pk_fma_f16 v{TP+i}, v{T+4+i}, v{TWS+i}, v{TP+i}")
    for i in range(4):
        a(f"v_pk_mul_f16 v{TP+4+i}, v{T+4+i}, v{TWC+i}")
    a(f"v_mfma_f32_16x16x32_f16 {vr(D2,4)}, {vr(TP,4)}, {vr(F2C,4)}, 0")
    a(f"v_mfma_f32_16x16x32_f16 {vr(D2+4,4)}, {vr(TP,4)}, {vr(F2S,4)}, 0")
    for i in range(4):
        a(f"v_pk_fma_f16 v{TP+4+i}, v{T+i}, v{TWS+i}, v{TP+4+i} neg_lo:[1,0,0] neg_hi:[1,0,0]")
    a(f"v_mfma_f32_16x16x32_f16 {vr(D2,4)}, {vr(TP+4,4)}, {vr(F2N,4)}, {vr(D2,4)}")
    a(f"v_mfma_f32_16x16x32_f16 {vr(D2+4,4)}, {vr(TP+4,4)}, {vr(F2C,4)}, {vr(D2+4,4)}")
    for i in range(4):
        a(f"v_cvt_pk_f16_f32 v{Z+i}, v{D2+i}, v{D2+4+i}")
    a(f"ds_write_b128 v{AZW}, {vr(Z,4)} offset:{L_Z}")
    if Cfg.xpos == 9:
        xp_load(0)
    if Cfg.xpos in (8, 9):
        xp_load(1)
    stamp(a, 6)
    a("s_waitcnt lgkmcnt(0)")
    a("s_barrier")
    a(f"ds_read2st64_b32 {vr(Z+4,2)}, v{AZR} offset0:{L_Z//256} offset1:{L_Z//256+4}")
    a(f"ds_read2st64_b32 {vr(Z+6,2)}, v{AZR} offset0:{L_Z//256+8} offset1:{L_Z//256+12}")
    a("s_waitcnt lgkmcnt(0)")
    a(f"v_mfma_f32_16x16x32_f16 {vr(D2+8,4)}, {vr(Z+4,4)}, {vr(R8R,4)}, 0")
    a(f"v_mfma_f32_16x16x32_f16 {vr(D2+12,4)}, {vr(Z+4,4)}, {vr(R8I,4)}, 0")
    for i in range(4):
        a(f"v_cvt_pk_f16_f32 v{TP+i}, v{D2+8+i}, v{D2+12+i}")
    for k in range(Cfg.pad2):
        a(f"v_lshlrev_b32 v{D2 + k % 4}, 1, v2")
    if Cfg.vdel:
        a("s_cmp_ge_u32 s2, 224")
        a("s_cbranch_scc1 F_nvd")
        a(f"s_sleep {Cfg.vdel}")
        a.label("F_nvd")
    a(f"buffer_store_dwordx4 {vr(TP,4)}, v{AVS}, s[24:27], s50 offen sc1")
    if Cfg.noack:
        a("s_cmp_lg_u32 s3, 7")
        a("s_cbranch_scc1 F_nef")
        a("s_cmp_lg_u32 s46, 0")
        a("s_cbranch_scc1 F_nef")
        a(f"v_mov_b32 v{T0}, s33")
        a(f"v_lshlrev_b32 v{T0+1}, 10, v2")
        a(f"s_mov_b32 exec_lo, {hex((1 << Cfg.brep) - 1)}")
        a("s_mov_b32 exec_hi, 0")
        a(f"buffer_store_dword v{T0}, v{T0+1}, s[24:27], s29 offen sc1")
        a("s_mov_b64 exec, -1")
        a.label("F_nef")
    a("s_cmp_lg_u32 s46, 0")
    a("s_cbranch_scc1 F_second")
    stamp(a, 7)

    if Cfg.diag == 3:
        a("s_branch L_fin")
    XP, ST, CA, CX, CB, V, VX = 8, 24, 32, 40, 44, 48, 56
    XF, G, TMP = 60, 76, 92
    DA = 92
    AV, AUW, AUR, AST, AVX = 120, 121, 122, 124, 125
    if Cfg.xpos == 0:
        xp_load(0)
        xp_load(1)
    if Cfg.e2:
        inter(post_s, post_v)
    if Cfg.own1:
        a("s_mov_b32 s16, 0")
    if Cfg.ldg:
        a("s_lshl_b32 s18, s2, 7")
        a(f"s_add_u32 s18, s18, {WS_LD}")
        a("s_cmp_lt_u32 s2, 224")
        a("s_cselect_b32 s19, -1, 0")
    if Cfg.latex:
        assert Cfg.xpos == 5 and Cfg.gfirst and Cfg.midg
        a("s_lshr_b32 s34, s57, 1")
        a("s_lshl4_add_u32 s34, s56, s34")
        a("s_cmp_eq_u32 s34, 63")
        a("s_cselect_b32 s46, 3, 0")
        if Cfg.latex == 2:
            a("s_mov_b32 s46, 3")
        if Cfg.latex == 3:
            a("s_cmp_lt_u32 s2, 224")
            a("s_cselect_b32 s46, 3, s46")
    def xp_pair(k):
        a("s_lshr_b32 s34, s3, 1")
        a("s_lshl2_add_u32 s34, s46, s34")
        a(f"s_cmp_lg_u32 s34, {k}")
        a(f"s_cbranch_scc1 F_xp{k}")
        xp_load(0)
        xp_load(1)
        if Cfg.est and k < 2:
            a(f"buffer_load_dwordx4 {vr(ST,4)}, v{AST}, s[24:27], s59 offen sc1")
            a(f"buffer_load_dwordx4 {vr(ST+4,4)}, v{AST}, s[24:27], s59 offen offset:16 sc1")
        a.label(f"F_xp{k}")

    def stats_addr():
        a(f"v_lshrrev_b32 v{T0+10}, 3, v3")
        a(f"v_lshlrev_b32 v{AST}, 7, v{T0+10}")
        a(f"v_lshl_add_u32 v{AST}, v4, 5, v{AST}")
        a("s_lshl3_add_u32 s59, s56, s3")
        a("s_lshl_b32 s59, s59, 8")
        a(f"s_add_u32 s59, s59, {WS_ST}")
    if Cfg.est:
        assert Cfg.nsl == 1 and Cfg.xpos == 5 and not Cfg.latex and not Cfg.spos and not Cfg.allpre and not Cfg.noack
        stats_addr()
    if Cfg.nsl:
        xp_pair(0)
    COL, H, TF, CP, PH, MK = range(T0+2, T0+8)
    ANG, STP = T0+8, T0+9
    a(f"v_and_b32 v{COL}, 31, v2")
    a(f"v_lshrrev_b32 v{H}, 5, v2")
    a("s_lshl_b32 s61, s44, 31")
    a(f"s_xor_b32 s60, s61, {f2u(1/2048)}")
    a(f"v_lshrrev_b32 v{TF}, 1, v{COL}")
    a(f"v_lshl_add_u32 v{TF}, v{TF}, 3, s56")
    a(f"v_cvt_f32_u32 v{TF}, v{TF}")
    a(f"v_mul_f32 v{TF}, s60, v{TF}")
    a(f"v_and_b32 v{CP}, 1, v{COL}")
    a(f"v_cvt_f32_u32 v{PH}, v{CP}")
    a("s_sub_u32 s58, 16, s3")
    a("s_cmp_eq_u32 s3, 0")
    a(f"s_cselect_b32 s34, 0, {f2u(0.25)}")
    a("s_cselect_b32 s35, 0, -1")
    a("s_cselect_b32 s58, 8, s58")
    a(f"v_mul_f32 v{PH}, s34, v{PH}")
    a(f"v_mul_f32 v{STP}, {f2u(32.0)}, v{TF}")
    for sec in range(2):
        a(f"v_lshl_add_u32 v{ANG}, v{H}, 4, {'s3' if sec == 0 else 's58'}")
        a(f"v_cvt_f32_u32 v{ANG}, v{ANG}")
        a(f"v_fma_f32 v{ANG}, v{ANG}, v{TF}, {'' if sec == 0 else '-'}v{PH}")
        for jj in range(4):
            a(f"v_cos_f32 v{T0}, v{ANG}")
            a(f"v_sin_f32 v{T0+1}, v{ANG}")
            a(f"v_add_f32 v{ANG}, v{ANG}, v{STP}")
            a(f"v_cvt_pk_f16_f32 v{CA+4*sec+jj}, v{T0}, v{T0+1}")
        if sec == 0 and Cfg.early_b2:
            break
    if Cfg.spos:
        assert Cfg.xpos >= 7
        stats_addr()
        a(f"buffer_load_dwordx4 {vr(ST,4)}, v{AST}, s[24:27], s59 offen sc1")
        a(f"buffer_load_dwordx4 {vr(ST+4,4)}, v{AST}, s[24:27], s59 offen offset:16 sc1")

    def p2_setup():
        if Cfg.early_b2:
            a(f"v_lshl_add_u32 v{ANG}, v{H}, 4, s58")
            a(f"v_cvt_f32_u32 v{ANG}, v{ANG}")
            a(f"v_fma_f32 v{ANG}, v{ANG}, v{TF}, -v{PH}")
            for jj in range(4):
                a(f"v_cos_f32 v{T0}, v{ANG}")
                a(f"v_sin_f32 v{T0+1}, v{ANG}")
                a(f"v_add_f32 v{ANG}, v{ANG}, v{STP}")
                a(f"v_cvt_pk_f16_f32 v{CA+4+jj}, v{T0}, v{T0+1}")
        a("s_cmp_lg_u32 s3, 0")
        a("s_cbranch_scc1 F_now0")
        a(f"v_mul_f32 v{ANG}, {f2u(128.0)}, v{TF}")
        a(f"v_cos_f32 v{T0}, v{ANG}")
        a(f"v_sin_f32 v{T0+1}, v{ANG}")
        a(f"v_add_u32 v{MK}, -1, v{CP}")
        for jj in range(4):
            a(f"v_and_b32 v{CA+jj}, v{CA+jj}, v{MK}")
            a(f"v_bfi_b32 v{CA+4+jj}, v{MK}, 0, v{CA+4+jj}")
        a(f"v_or_b32 v{MK}, v{CP}, v{H}")
        a(f"v_add_u32 v{MK}, -1, v{MK}")
        a(f"v_cvt_pk_f16_f32 v{CX}, v{T0}, v{T0+1}")
        a(f"v_and_b32 v{CX}, v{CX}, v{MK}")
        for r in range(1, 4):
            a(f"v_mov_b32 v{CX+r}, 0")
            a(f"v_mov_b32 v{VX+r}, 0")
        a.label("F_now0")
        if Cfg.nsl == 1:
            xp_pair(3)
        a(f"s_xor_b32 s60, s61, {f2u(1/16)}")
        a(f"v_cvt_f32_u32 v{STP}, v3")
        a(f"v_mul_f32 v{STP}, s60, v{STP}")
        a(f"v_lshlrev_b32 v{ANG}, 1, v4")
        a(f"v_cvt_f32_u32 v{ANG}, v{ANG}")
        a(f"v_mul_f32 v{ANG}, v{ANG}, v{STP}")
        a(f"v_add_f32 v{STP}, v{ANG}, v{STP}")
        a(f"v_cos_f32 v{T0}, v{ANG}")
        a(f"v_sin_f32 v{T0+1}, v{ANG}")
        a(f"v_cos_f32 v{PH}, v{STP}")
        a(f"v_sin_f32 v{MK}, v{STP}")
        a(f"v_cvt_pk_f16_f32 v{CB}, v{T0}, v{T0+1}")
        a("s_mov_b32 s34, 0x3c003c00")
        a(f"v_cvt_pk_f16_f32 v{CB+1}, v{PH}, v{MK}")
        a("s_mov_b64 exec, 0xffff")
        a(f"v_lshl_or_b32 v{CB}, v3, 31, s34")
        a("s_mov_b64 exec, -1")
        a(f"v_lshl_add_u32 v{AUR}, s3, 1, v{T0+10}")
        a(f"v_mul_u32_u24 v{AUR}, 1280, v{AUR}")
        a(f"v_mul_u32_u24 v{T0}, 272, v4")
        a(f"v_and_b32 v{T0+1}, 7, v3")
        a(f"v_lshlrev_b32 v{T0+1}, 5, v{T0+1}")
        a(f"v_add3_u32 v{AUR}, v{AUR}, v{T0}, v{T0+1}")
        a("s_lshr_b32 s34, s3, 1")
        a("s_mul_i32 s34, s34, 272")
        a("s_and_b32 s35, s3, 1")
        a("s_lshl2_add_u32 s34, s35, s34")
        a(f"v_mul_u32_u24 v{AUW}, 2560, v{H}")
        a(f"v_lshl_add_u32 v{AUW}, v{COL}, 3, v{AUW}")
        a(f"v_add_u32 v{AUW}, s34, v{AUW}")
        a("s_cmp_eq_u32 s44, 0")
        a("s_cselect_b32 s34, 0, 31")
        a("s_cselect_b32 s35, -1, 0")
        a("s_lshl_b32 s60, s45, 5")
        a("s_add_u32 s35, s35, s60")
        a(f"v_xor_b32 v{T0}, s34, v{COL}")
        a(f"v_add_u32 v{T0}, s35, v{T0}")
        a(f"v_max_i32 v{T0}, 0, v{T0}")
        if Cfg.vfull == 2:
            a(f"v_bfe_u32 v{AVX}, v{T0}, 4, 1")
            a(f"v_mul_u32_u24 v{AVX}, {VU}, v{AVX}")
            a(f"v_lshrrev_b32 v{T0+1}, 6, v{T0}")
            a(f"v_lshl_add_u32 v{AVX}, v{T0+1}, 10, v{AVX}")
            a(f"v_bfe_u32 v{T0+1}, v{T0}, 5, 1")
            a(f"v_lshl_add_u32 v{AVX}, v{T0+1}, 6, v{AVX}")
            a(f"v_and_b32 v{T0}, 15, v{T0}")
        elif Cfg.vfull:
            a(f"v_lshrrev_b32 v{T0+1}, 6, v{T0}")
            a(f"v_bfe_u32 v{AVX}, v{T0}, 4, 1")
            a(f"v_lshl_add_u32 v{AVX}, v{T0+1}, 1, v{AVX}")
            a(f"v_mul_u32_u24 v{AVX}, {VB}, v{AVX}")
            a(f"v_bfe_u32 v{T0+1}, v{T0}, 5, 1")
            a(f"v_lshl_add_u32 v{AVX}, v{T0+1}, 6, v{AVX}")
            a(f"v_and_b32 v{T0}, 15, v{T0}")
        else:
            a(f"v_lshrrev_b32 v{AVX}, 5, v{T0}")
            a(f"v_mul_u32_u24 v{AVX}, {VB}, v{AVX}")
            a(f"v_and_b32 v{T0}, 31, v{T0}")
        a(f"v_lshl_add_u32 v{AVX}, v{T0}, 2, v{AVX}")
        if Cfg.vfull == 2:
            a(f"v_mul_u32_u24 v{AV}, {2*VU}, v{H}")
            a(f"v_add_u32 v{AV}, v{AV}, v{AVX}")
            a("s_lshl_b32 s58, s28, 7")
            a(f"s_add_u32 s58, s58, {WS_V}")
            a(f"s_add_u32 s60, s58, {256*VU}")
            a(f"s_mul_i32 s34, s3, {32*VU}")
        else:
            a(f"v_lshl_add_u32 v{AV}, v{H}, 7, v{AVX}")
            a(f"s_mul_i32 s58, s28, {16*VB}")
            a(f"s_add_u32 s58, s58, {WS_V}")
            a("s_add_u32 s60, s58, 16384")
            a("s_lshl_b32 s34, s3, 11")
        a("s_add_u32 s58, s58, s34")
        a("s_lshl4_add_u32 s47, s3, s56")
        a("s_lshl_b32 s48, s57, 7")
        if Cfg.h2s9:
            a("s_lshr_b32 s49, s57, 3")
            a("s_add_u32 s49, s49, s57")
            a("s_lshl_b32 s49, s49, 7")
            a(f"s_add_u32 s49, s49, {WS_H2}")
        else:
            a(f"s_add_u32 s49, s48, {WS_H2}")
        a(f"s_lshl1_add_u32 s48, s48, {WS_N2}")
        a("s_add_u32 s52, s48, 128")
        a(f"s_and_b32 s34, s2, {Cfg.brep-1}")
        a("s_lshl3_add_u32 s34, s34, s3")
        a("s_lshl_b32 s34, s34, 7")
        a(f"s_add_u32 s34, s34, {WS_KB}")
        if Cfg.fpf:
            a("s_mov_b64 s[16:17], s[42:43]")
            a("s_mov_b32 s18, 7340032")
        a("s_add_u32 s42, s10, s34")
        a("s_addc_u32 s43, s11, 0")
        a("s_mov_b32 s40, s33")
        a("s_mov_b32 s41, s33")
        a("s_and_b32 s63, s2, 31")
        a("s_lshl_b32 s63, s63, 7")
        a(f"s_add_u32 s63, s63, {WS_RES}")

    def free_prefetch():
        a("s_cmp_lt_u32 s2, 224")
        a("s_cbranch_scc1 F_npf")
        a("s_cmp_eq_u32 s3, 7")
        a("s_cbranch_scc1 F_npf")
        a("s_bfe_u32 s34, s2, 0x20003")
        a("s_mul_i32 s34, s34, 7")
        a("s_add_u32 s34, s34, s3")
        a("s_and_b32 s35, s2, 7")
        a("s_lshl3_add_u32 s34, s34, s35")
        a("s_and_b32 s35, s34, 3")
        if Cfg.dxor:
            a("s_xor_b32 s35, s35, 1")
        a("s_lshr_b32 s34, s34, 2")
        a("s_lshl_b32 s34, s34, 8")
        a("s_add_u32 s34, s34, s35")
        a("s_lshl_b32 s34, s34, 9")
        a(f"s_mov_b32 m0, {LDS_BYTES - 256}")
        b_ = 1 if Cfg.fboth else 0
        a(f"v_lshrrev_b32 v1, {2+b_}, v2")
        a(f"v_and_b32 v5, {(4 << b_) - 1}, v2")
        a(f"v_lshlrev_b32 v5, {7-b_}, v5")
        a("v_lshl_add_u32 v5, v1, 11, v5")
        for k in range(Cfg.fpf << b_):
            a(f"s_add_u32 s35, s34, {131072 - (k+1)*(32768 >> b_)}")
            a("buffer_load_dword v5, s[16:19], s35 offen lds")
        a.label("F_npf")

    def staggered(name):
        a(f"s_and_b32 s34, s3, {7 if Cfg.xpos == 6 else 3}")
        a.label(name)
        a("s_cmp_eq_u32 s34, 0")
        a(f"s_cbranch_scc1 {name}_d")
        a(f"s_sleep {Cfg.stag}")
        a("s_sub_u32 s34, s34, 1")
        a(f"s_branch {name}")
        a.label(name + "_d")
        xp_load(0)
        xp_load(1)
    if Cfg.noack:
        a("s_barrier")
        if Cfg.xpos == 6:
            if Cfg.xdel:
                a(f"s_sleep {Cfg.xdel}")
            staggered("F_sg6")
    else:
        a(f"v_mov_b32 v{V}, s33")
        a(f"v_lshlrev_b32 v{V+1}, 10, v2")
        if Cfg.xpos == 5:
            a("s_lshl2_add_u32 s34, s46, s3")
            a("s_cmp_ge_u32 s34, 4")
            a("s_cbranch_scc1 F_x5a")
            if Cfg.nsl:
                xp_pair(1)
            else:
                staggered("F_sg0")
            if Cfg.allpre:
                a.label("F_x5a")
                stats_addr()
                p2_setup()
                a("s_lshl2_add_u32 s34, s46, s3")
                a("s_cmp_lt_u32 s34, 4")
                a("s_waitcnt vmcnt(2)")
                a("s_cbranch_scc1 F_x5b")
            else:
                a(f"s_waitcnt vmcnt({4 if Cfg.est else 2})")
                a("s_branch F_x5b")
                a.label("F_x5a")
            a("s_waitcnt vmcnt(0)")
            a.label("F_x5b")
        elif Cfg.allpre:
            stats_addr()
            p2_setup()
        a("s_cmp_lg_u32 s3, 7")
        if Cfg.xpos != 5:
            a(f"s_waitcnt vmcnt({2 if Cfg.xpos == 0 or Cfg.spos else 0})")
        a("s_barrier")
        a("s_cbranch_scc1 F_noflag")
        if Cfg.brep < 64:
            a(f"s_mov_b32 exec_lo, {hex((1 << Cfg.brep) - 1)}")
            a("s_mov_b32 exec_hi, 0")
        a(f"buffer_store_dword v{V}, v{V+1}, s[24:27], s29 offen sc1")
        a("s_mov_b64 exec, -1")
        a.label("F_noflag")
    stamp(a, 8)
    if Cfg.diag == 4:
        a("s_branch L_fin")
    if Cfg.xpos == 2:
        xp_load(0)
        xp_load(1)
    if Cfg.xpos == 5:
        a("s_lshr_b32 s34, s3, s46")
        a("s_cmp_lt_u32 s34, 4")
        a("s_cbranch_scc1 F_x5c")
        if Cfg.nsl:
            xp_pair(2)
        else:
            staggered("F_sg1")
        a.label("F_x5c")
    if not Cfg.spos and not Cfg.allpre and not Cfg.est:
        stats_addr()
    a("s_mov_b32 s62, 0")
    if Cfg.spos:
        a("s_branch F_stats_i")
    if Cfg.est:
        a("s_cmp_lt_u32 s3, 4")
        a("s_cbranch_scc1 F_stats_i")
    a.label("F_stats")
    if Cfg.nostat:
        for r in range(4):
            a(f"v_mov_b32 v{ST+2*r}, 0x3b200000")
            a(f"v_mov_b32 v{ST+2*r+1}, s33")
    else:
        a(f"buffer_load_dwordx4 {vr(ST,4)}, v{AST}, s[24:27], s59 offen sc1")
        a(f"buffer_load_dwordx4 {vr(ST+4,4)}, v{AST}, s[24:27], s59 offen offset:16 sc1")
    a("s_cmp_lg_u32 s62, 0")
    a("s_cbranch_scc1 F_stats_w")
    a.label("F_stats_i")
    if not Cfg.allpre:
        p2_setup()

    def flag_req():
        a("s_load_dwordx16 s[68:83], s[42:43], 0 glc")
        a("s_load_dwordx16 s[84:99], s[42:43], 64 glc")
        if Cfg.ldg:
            a("s_load_dword s17, s[10:11], s18 glc")

    def v_fetch():
        if Cfg.rdel:
            a(f"s_sleep {Cfg.rdel}")
        a("s_mov_b32 s62, 0")
        if Cfg.midg:
            a("s_cmp_eq_u32 s46, 2")
            a("s_cbranch_scc1 F_fetched")
            a("s_branch F_poll_w")
        elif Cfg.pre:
            a("s_branch F_poll_w")
        a.label("F_poll")
        flag_req()
        a.label("F_poll_w")
        a("s_waitcnt lgkmcnt(0)")
        if Cfg.ldg:
            a("s_xor_b32 s17, s17, s33")
            a(f"s_cmp_lt_u32 s62, {Cfg.ldcap}")
            a("s_cselect_b32 s17, s17, 0")
            a("s_and_b32 s17, s17, s19")
        a("s_xor_b64 s[68:69], s[68:69], s[40:41]")
        if Cfg.ldg:
            a("s_or_b32 s68, s68, s17")
        for k in range(1, 16):
            a(f"s_xor_b64 s[{68+2*k}:{69+2*k}], s[{68+2*k}:{69+2*k}], s[40:41]")
            a(f"s_or_b64 s[68:69], s[68:69], s[{68+2*k}:{69+2*k}]")
        a("s_cbranch_scc0 F_rel")
        if Cfg.midg:
            a("s_cmp_lg_u32 s46, 0")
            a("s_cbranch_scc1 F_poll_n")
            a("s_mov_b32 s46, 1")
            flag_req()
            a("s_branch F_mid")
            a.label("F_poll_n")
        if Cfg.hyb:
            a("s_getreg_b32 s34, hwreg(HW_REG_IB_STS, 0, 4)")
            a("s_or_b32 s34, s34, s46")
            a("s_cbranch_scc0 F_early_no")
        a("s_add_u32 s62, s62, 1")
        if Cfg.psl:
            a(f"s_sleep {Cfg.psl}")
        a(f"s_cmp_lt_u32 s62, {SPIN_CAP}")
        a("s_cbranch_scc1 F_poll")
        a.label("F_rel")
        if Cfg.edel:
            a("s_cmp_eq_u32 s62, 0")
            a("s_cbranch_scc1 F_ned")
            a(f"s_sleep {Cfg.edel}")
            a.label("F_ned")
        stamp(a, 11)
        if Cfg.diag == 5:
            a("s_branch L_fin")
        if Cfg.xpos == 3:
            xp_load(0)
            xp_load(1)
        if Cfg.latex:
            a("s_cmp_lg_u32 s46, 3")
            a("s_cbranch_scc1 F_nlx")
            xp_load(0)
            xp_load(1)
            a.label("F_nlx")
        for n in range(8):
            if Cfg.vfull == 2:
                a(f"buffer_load_dword v{V+n}, v{AV}, s[24:27], s58 offen sc1")
                if n < 7:
                    a(f"s_add_u32 s58, s58, {4*VU}")
            else:
                a(f"buffer_load_dword v{V+n}, v{AV}, s[24:27], s58 offen offset:{256*n} sc1")
        if Cfg.gfirst:
            a("s_load_dwordx2 s[36:37], s[10:11], s63")
        a("s_cmp_lg_u32 s3, 0")
        a("s_cbranch_scc1 F_novx")
        a(f"buffer_load_dword v{VX}, v{AVX}, s[24:27], s60 offen sc1")
        a.label("F_novx")
        if Cfg.latex:
            a("s_cmp_eq_u32 s46, 3")
            a("s_cbranch_scc1 F_lx")
        if Cfg.midg:
            a("s_cmp_eq_u32 s46, 0")
            a("s_mov_b32 s46, 2")
            a("s_cbranch_scc1 F_mid")
        if Cfg.hyb:
            a("s_cmp_eq_u32 s46, 0")
            a("s_cbranch_scc1 F_early_ok")
    if Cfg.nsl == 2:
        xp_pair(3)
    a(f"v_mul_u32_u24 v{T0}, 1152, v{T0+10}")
    a(f"v_lshl_add_u32 v{T0}, v4, 6, v{T0}")
    a(f"v_and_b32 v{T0+1}, 7, v3")
    a(f"v_lshlrev_b32 v{T0+1}, 3, v{T0+1}")
    a(f"v_add3_u32 v{T0}, v{T0}, v{T0+1}, s53")
    if Cfg.xpos == 4:
        if Cfg.xdel:
            a(f"s_sleep {Cfg.xdel}")
        xp_load(0)
        xp_load(1)
    if Cfg.gfirst and Cfg.hyb:
        a("s_branch F_fetch")
        a.label("F_early_ok")
        a("s_mov_b32 s46, 2")
        a("s_waitcnt vmcnt(8) lgkmcnt(0)")
        a("s_branch F_early_c")
        a.label("F_early_no")
        a("s_waitcnt vmcnt(0)")
        a.label("F_early_c")
        a("s_mov_b32 s62, 0")
    elif Cfg.gfirst:
        if Cfg.latex:
            a("s_cmp_eq_u32 s46, 3")
            a("s_cbranch_scc1 F_poll")
        a(f"s_waitcnt vmcnt({0 if Cfg.xpos == 4 or Cfg.nsl else 2})")
        a.label("F_xt")
    else:
        v_fetch()
        a("s_mov_b32 s62, 0")
        a("s_waitcnt vmcnt(8)")
    for i in range(4):
        a(f"ds_read_b64 {vr(XP+2*i,2)}, v{T0} offset:{256*i}")
    for i in range(4):
        lgk(a, 3-i)
        for p in range(2):
            a(f"v_lshlrev_b32 v{XF+8*p+i}, 16, v{XP+2*i+p}")
            a(f"v_and_b32 v{XF+8*p+4+i}, 0xffff0000, v{XP+2*i+p}")
    if not Cfg.gfirst:
        a("s_load_dwordx2 s[36:37], s[10:11], s63")
    if not Cfg.gfirst or Cfg.hyb:
        a("s_branch F_stats_c")
    if Cfg.spos:
        a("s_cmp_eq_u32 s3, 7")
        a("s_waitcnt vmcnt(1)")
        a("s_cbranch_scc1 F_stats_c")
    a.label("F_stats_w")
    if not Cfg.nostat:
        a("s_waitcnt vmcnt(0)")
    a.label("F_stats_c")
    a(f"v_xor_b32 v{T0}, s33, v{ST+1}")
    a(f"v_xor_b32 v{T0+1}, s33, v{ST+3}")
    a(f"v_xor_b32 v{T0+2}, s33, v{ST+5}")
    a(f"v_xor_b32 v{T0+3}, s33, v{ST+7}")
    a(f"v_or3_b32 v{T0}, v{T0}, v{T0+1}, v{T0+2}")
    a(f"v_or_b32 v{T0}, v{T0}, v{T0+3}")
    a(f"v_cmp_ne_u32 vcc, 0, v{T0}")
    spin_tail(a, "F_stats", "F_stats_d", sleep=4)
    a.label("F_stats_d")
    if Cfg.fpf:
        free_prefetch()
    if Cfg.pf2:
        a("s_cmp_lt_u32 s2, 224")
        a("s_cbranch_scc1 F_npf2")
        a("s_cmp_gt_u32 s3, 1")
        a("s_cbranch_scc1 F_npf2")
        a("s_getpc_b64 s[6:7]")
        a.label("L_pc2")
        a(f"s_mov_b32 m0, {LDS_BYTES - 256}")
        a(f"v_lshlrev_b32 v{T0+2}, 7, v0")
        a(f"v_min_u32 v{T0+2}, L_end-L_pc2, v{T0+2}")
        a(f"v_mov_b32 v{T0+3}, s7")
        a(f"v_add_co_u32 v{T0+2}, vcc, s6, v{T0+2}")
        a(f"v_addc_co_u32 v{T0+3}, vcc, 0, v{T0+3}, vcc")
        a(f"global_load_lds_dword {vr(T0+2,2)}, off sc1")
        a.label("F_npf2")
    if Cfg.noflag:
        a("s_cmp_eq_u32 s46, 2")
        a("s_cbranch_scc1 F_nfl")
        stamp(a, 11)
        for n in range(8):
            a(f"buffer_load_dword v{V+n}, v{AV}, s[24:27], s58 offen sc1")
            if n < 7:
                a(f"s_add_u32 s58, s58, {4*VU}")
        a("s_load_dwordx2 s[36:37], s[10:11], s63")
        a("s_cmp_lg_u32 s3, 0")
        a("s_cbranch_scc1 F_nfx")
        a(f"buffer_load_dword v{VX}, v{AVX}, s[24:27], s60 offen sc1")
        a.label("F_nfx")
        a("s_mov_b32 s46, 2")
        a.label("F_nfl")
    if Cfg.pre:
        a("s_cmp_eq_u32 s46, 2")
        a("s_cbranch_scc1 F_npre")
        flag_req()
        a.label("F_npre")
    stamp(a, 9)
    RC = 16
    a(f"s_mov_b32 s34, {f2u(-LOG2E/8)}")
    a(f"v_mov_b32 v{T0}, {f2u(1e-5/64)}")
    for i in range(4):
        a(f"v_and_b32 v{RC+i}, 0xffff0000, v{ST+2*i}")
        a(f"v_fmamk_f32 v{RC+i}, v{RC+i}, {f2u(1/64)}, v{T0}")
    for i in range(4):
        a(f"v_rsq_f32 v{RC+i}, v{RC+i}")
        a(f"v_lshlrev_b32 v{RC+4+i}, 16, v{ST+2*i}")
    for i in range(0, 4, 2):
        a(f"v_pk_mul_f32 {vr(RC+4+i,2)}, {vr(RC+4+i,2)}, {vr(RC+i,2)} neg_lo:[1,0] neg_hi:[1,0]")
    for i in range(0, 8, 2):
        a(f"v_pk_mul_f32 {vr(ST+i,2)}, {vr(RC+i,2)}, s[34:35] op_sel:[0,0] op_sel_hi:[1,0]")
    for r in range(0, 16, 2):
        i = r % 4
        a(f"v_pk_fma_f32 {vr(TMP+r,2)}, {vr(XF+r,2)}, {vr(ST+i,2)}, {vr(ST+4+i,2)}")
    for r in range(16):
        if not Cfg.nogate:
            a(f"v_exp_f32 v{TMP+r}, v{TMP+r}")
        if r % 2 == 1:
            i = (r-1) % 4
            a(f"v_pk_fma_f32 {vr(G+r-1,2)}, {vr(XF+r-1,2)}, {vr(RC+i,2)}, {vr(RC+4+i,2)}")
    if Cfg.midg:
        a("s_mov_b32 s62, 0")
        a("s_cmp_lg_u32 s46, 2")
        a("s_cbranch_scc1 F_poll_w")
        a.label("F_mid")
    for r in range(0, 16, 2):
        a(f"v_pk_add_f32 {vr(TMP+r,2)}, {vr(TMP+r,2)}, 1.0 op_sel_hi:[1,0]")
    for r in range(16 if not Cfg.nogate else 0):
        a(f"v_rcp_f32 v{TMP+r}, v{TMP+r}")
    for r in range(0, 16, 2):
        a(f"v_pk_mul_f32 {vr(G+r,2)}, {vr(G+r,2)}, {vr(TMP+r,2)}")
    stamp(a, 10)
    if Cfg.gfirst and Cfg.hyb:
        a("s_cmp_eq_u32 s46, 2")
        a("s_cbranch_scc1 F_fetched")
        a("s_mov_b32 s46, 1")
        a.label("F_fetch")
    if Cfg.gfirst:
        v_fetch()
        a.label("F_fetched")
    if Cfg.gate:
        a("s_load_dwordx16 s[68:83], s[42:43], 32768 glc")
        a("s_load_dwordx16 s[84:99], s[42:43], 32832 glc")
    a("s_cmp_lg_u32 s3, 0")
    a("s_cbranch_scc1 F_A")
    a("s_waitcnt vmcnt(0)")
    a(f"v_mfma_f32_32x32x16_f16 {vr(DA,16)}, {vr(CX,4)}, {vr(VX,4)}, 0")
    a(f"v_mfma_f32_32x32x16_f16 {vr(DA,16)}, {vr(CA,4)}, {vr(V,4)}, {vr(DA,16)}")
    a("s_branch F_A2")
    a.label("F_A")
    a("s_waitcnt vmcnt(4)")
    a(f"v_mfma_f32_32x32x16_f16 {vr(DA,16)}, {vr(CA,4)}, {vr(V,4)}, 0")
    a("s_waitcnt vmcnt(0)")
    a.label("F_A2")
    stamp(a, 12)
    a(f"v_mfma_f32_32x32x16_f16 {vr(DA,16)}, {vr(CA+4,4)}, {vr(V+4,4)}, {vr(DA,16)}")
    if Cfg.eh:
        a("s_waitcnt lgkmcnt(0)")
        a("s_and_b32 s34, s36, 0x77")
        a("s_cmp_eq_u32 s34, s47")
        a("s_cbranch_scc1 F_eh")
        a.label("F_eh_r")
    for rho in range(0, 8, 2):
        a(f"v_cvt_pk_f16_f32 v{V+rho}, v{DA+2*rho}, v{DA+2*rho+1}")
        a(f"v_cvt_pk_f16_f32 v{V+rho+1}, v{DA+2*rho+2}, v{DA+2*rho+3}")
        o = L_U//256 + 20*(rho >> 1)
        a(f"ds_write2st64_b32 v{AUW}, v{V+rho}, v{V+rho+1} offset0:{o} offset1:{o+5}")
    if Cfg.sdel:
        a("s_cmp_eq_u32 s62, 0")
        a("s_cbranch_scc1 F_nsd")
        a(f"s_sleep {Cfg.sdel}")
        a.label("F_nsd")
    if Cfg.gate:
        a("s_mov_b32 s62, 0")
        a("s_cmp_eq_u32 s3, 7")
        a("s_cbranch_scc1 F_gate_d")
        a.label("F_gate")
        a("s_waitcnt lgkmcnt(0)")
        a("s_xor_b64 s[68:69], s[68:69], s[40:41]")
        for k in range(1, 16):
            a(f"s_xor_b64 s[{68+2*k}:{69+2*k}], s[{68+2*k}:{69+2*k}], s[40:41]")
            a(f"s_or_b64 s[68:69], s[68:69], s[{68+2*k}:{69+2*k}]")
        a("s_cbranch_scc0 F_gate_d")
        if Cfg.gsl:
            a(f"s_sleep {Cfg.gsl}")
        a("s_load_dwordx16 s[68:83], s[42:43], 32768 glc")
        a("s_load_dwordx16 s[84:99], s[42:43], 32832 glc")
        a("s_add_u32 s62, s62, 1")
        a("s_cmp_lt_u32 s62, 64")
        a("s_cbranch_scc1 F_gate")
        a.label("F_gate_d")
    a("s_waitcnt lgkmcnt(0)")
    a("s_barrier")
    a(f"ds_read_b128 {vr(V,4)}, v{AUR} offset:{L_U}")
    a(f"ds_read_b128 {vr(V+4,4)}, v{AUR} offset:{L_U+16}")
    Y = DA
    lgk(a, 1)
    for x in range(4):
        if x == 2:
            lgk(a, 0)
        a(f"v_mfma_f32_16x16x16_f16 {vr(Y+4*x,4)}, {vr(CB,2)}, {vr(V+2*x,2)}, 0")
    if Cfg.diag == 6:
        a("s_branch L_fin")
    a("s_and_b32 s34, s36, 0x77")
    a("s_cmp_lg_u32 s34, s47")
    a("s_cbranch_scc1 F_noh")
    if Cfg.eh:
        a("s_mul_i32 s50, s33, 28")
        for k in list(range(68, 82)) + list(range(84, 98)):
            a(f"s_sub_u32 s50, s50, s{k}")
        a("s_cmp_eq_u32 s50, 0")
        a("s_cbranch_scc1 F_own" if Cfg.own1 else "s_cbranch_scc1 F_noh")
    if Cfg.n2:
        a("s_load_dwordx16 s[68:83], s[10:11], s48 glc")
        a("s_load_dwordx16 s[84:99], s[10:11], s52 glc")
    a.label("F_noh")
    a("s_cmp_eq_u32 s57, 0")
    a("s_cbranch_scc1 F_zero")
    a.label("F_nz")
    O = 32
    for ih in range(0, 4, 2):
        for x in range(4):
            r = 4*x + ih
            a(f"v_pk_fma_f32 {vr(XF+r,2)}, {vr(Y+r,2)}, {vr(G+r,2)}, {vr(XF+r,2)}")
        for i in (ih, ih+1):
            for p in range(2):
                a(f"v_cvt_pk_bf16_f32 v{O+2*i+p}, v{XF+8*p+i}, v{XF+8*p+4+i}")
            if Cfg.fullout and i == 0:
                a("s_lshr_b32 s34, s57, 1")
                a("s_lshl_b32 s34, s34, 7")
                a("s_and_b32 s35, s57, 1")
                a("s_lshl_b32 s35, s35, 14")
                a("s_add_u32 s34, s34, s35")
                a("s_lshl4_add_u32 s35, s3, s56")
                a("s_lshl_b32 s35, s35, 11")
                a("s_add_u32 s34, s34, s35")
                for q_ in range(4):
                    a(f"s_add_u32 s{64+q_}, s34, {262144*q_}")
            a(f"buffer_store_dwordx2 {vr(O+2*i,2)}, v{AO}, s[20:23], s{64+i} offen {Cfg.out_flag}")
    stamp(a, 13)
    if Cfg.diag == 1:
        a("s_branch L_fin")
    a("s_mov_b32 s62, 0")
    if Cfg.own1:
        a("s_cmp_lg_u32 s16, 0")
        a("s_cbranch_scc1 F_own2")
    a.label("F_res")
    a("s_cmp_eq_u32 s37, s33")
    a("s_cbranch_scc1 F_res_d")
    a("s_load_dwordx2 s[36:37], s[10:11], s63 glc")
    a("s_add_u32 s62, s62, 1")
    a(f"s_cmp_lt_u32 s62, {SPIN_CAP}")
    a("s_waitcnt lgkmcnt(0)")
    a("s_cbranch_scc1 F_res")
    a.label("F_res_d")
    a("s_and_b32 s34, s36, 0x77")
    a("s_cmp_lg_u32 s34, s47")
    a("s_cbranch_scc1 L_fin")
    P, YS, Q, AG, SG, XV, XN, YV, AS = 60, 40, 88, T0, T0+1, T0+2, T0+3, T0+4, T0+5
    AW = T0 + 6
    PL = [8, 12, 24, 28, 48, 52, 56] if Cfg.own1 else [P + 4*k for k in range(7)]

    def gather_addr():
        a(f"v_lshrrev_b32 v{AG}, 3, v2")
        a(f"v_mul_u32_u24 v{AG}, {4*H2R}, v{AG}" if Cfg.h2s9 else f"v_lshlrev_b32 v{AG}, 12, v{AG}")
        a(f"v_and_b32 v{SG}, 0x70, v{ATB}")
        a(f"v_add_u32 v{AG}, v{AG}, v{SG}")

    def gather_req():
        a("s_mov_b32 s34, s49")
        for k in range(7):
            a(f"buffer_load_dwordx4 {vr(PL[k],4)}, v{AG}, s[24:27], s34 offen sc1")
            if k < 6:
                a(f"s_add_u32 s34, s34, {32*H2R}")

    def prep():
        a("s_bfe_u32 s38, s36, 0x20007")
        a("s_bfe_u32 s39, s36, 0x20009")
        a("s_bfe_u32 s51, s36, 0x10003")
        a("s_set_gpr_idx_on s38, 1")
        for x in range(4):
            a(f"v_mov_b32 v{YS+x}, v{Y+4*x}")
        a(f"v_mov_b32 v{YS+4}, v{RC}")
        a(f"v_mov_b32 v{YS+5}, v{RC+4}")
        a("s_set_gpr_idx_off")
        a("s_lshl1_add_u32 s34, s39, s51")
        a("s_lshl_b32 s44, s34, 3")
        a(f"v_add_u32 v{AW}, s53, v{ATB}")
        a(f"ds_write_b128 v{AW}, {vr(YS,4)} offset:2560")
        a(f"v_and_b32 v{AS}, 7, v2")
        a(f"v_lshl_add_u32 v{AS}, v{AS}, 2, v4")
        a("s_lshl4_add_u32 s34, s44, s53")
        a(f"v_lshl_add_u32 v{YV}, v{AS}, 2, s34")
        a(f"ds_read_b32 v{YV}, v{YV} offset:2560")
        a("s_lshl2_add_u32 s34, s38, s39")
        a("s_lshl_b32 s34, s34, 6")
        a("s_mul_i32 s35, s51, 1152")
        a("s_add_u32 s34, s34, s35")
        a("s_add_u32 s34, s34, s53")
        a(f"v_lshlrev_b32 v{AS}, 1, v{AS}")
        a(f"v_add_u32 v{XV}, s34, v{AS}")
        a(f"ds_read_u16 v{XV}, v{XV}")
        a(f"v_readlane_b32 s45, v{YS+4}, s44")
        a(f"v_readlane_b32 s46, v{YS+5}, s44")
    if not Cfg.fin2:
        prep()
    gather_addr()
    if Cfg.eh:
        a("s_cmp_eq_u32 s50, 0")
        a("s_cbranch_scc1 F_n2_d")
    a("s_mul_i32 s50, s33, 28")
    a("s_mov_b32 s62, 0")
    a.label("F_n2")
    a("s_waitcnt lgkmcnt(0)")
    if Cfg.n2:
        for k in list(range(68, 82)) + list(range(85, 98)):
            a(f"s_add_u32 s84, s84, s{k}")
        a("s_cmp_eq_u32 s84, s50")
        a("s_cbranch_scc1 F_n2_d")
        a("s_load_dwordx16 s[68:83], s[10:11], s48 glc")
        a("s_load_dwordx16 s[84:99], s[10:11], s52 glc")
        a("s_add_u32 s62, s62, 1")
        a(f"s_cmp_lt_u32 s62, {SPIN_CAP}")
        a("s_cbranch_scc1 F_n2")
        a.label("F_n2_d")
    if Cfg.stamps and (Cfg.smask >> 15) & 1:
        a("s_memrealtime s[100:101]")
        a("s_waitcnt lgkmcnt(0)")
        a("v_writelane_b32 v127, s100, 2")
    if Cfg.h2d:
        a(f"s_sleep {Cfg.h2d}")
    a("s_mov_b32 s62, 0")
    a.label("F_h2")
    gather_req()
    a("s_cmp_lg_u32 s62, 0")
    a("s_cbranch_scc1 F_h2_w")
    if Cfg.own1:
        a.label("F_own2")
    if Cfg.fin2:
        prep()
    a("s_and_b32 s34, s36, 0xfffff800")
    a("s_ashr_i32 s35, s34, 31")
    a("s_orn2_b32 s35, 0x80000000, s35")
    a("s_xor_b32 s34, s34, s35")
    a(f"v_mov_b32 v{SG}, {f2u(-LOG2E)}")
    a(f"v_mul_f32 v{SG}, s34, v{SG}")
    a(f"v_exp_f32 v{SG}, v{SG}")
    a("s_waitcnt lgkmcnt(0)")
    a(f"v_lshlrev_b32 v{XV}, 16, v{XV}")
    a(f"v_mov_b32 v{XN}, s46")
    a(f"v_add_f32 v{SG}, 1.0, v{SG}")
    a(f"v_rcp_f32 v{SG}, v{SG}")
    a(f"v_fmac_f32 v{XN}, s45, v{XV}")
    a(f"v_mul_f32 v{SG}, {f2u(8.0)}, v{SG}")
    a("s_and_b32 s38, s36, 2047")
    a("s_lshl_b32 s38, s38, 11")
    a("s_lshl_b32 s34, s57, 6")
    a("s_add_u32 s38, s38, s34")

    def h2_req(B):
        a("s_mov_b32 s34, s49")
        for k in range(7):
            a(f"buffer_load_dwordx4 {vr(B+4*k,4)}, v{AG}, s[24:27], s34 offen sc1")
            if k < 6:
                a(f"s_add_u32 s34, s34, {32*H2R}")

    def h2_sum(B, extra):
        R = PL if B == P else [B + 4*k for k in range(7)]
        for k in range(1, 7):
            if extra is not None:
                a(f"s_waitcnt vmcnt({6-k+extra})")
            for x in range(0, 4, 2):
                a(f"v_pk_add_f32 {vr(Q+x,2)}, {vr((R[0] if k == 1 else Q)+x,2)}, {vr(R[k]+x,2)}")
        a(f"v_permlane16_swap_b32 v{Q}, v{Q+1}")
        a(f"v_permlane16_swap_b32 v{Q+2}, v{Q+3}")
        a(f"v_add_f32 v{Q}, v{Q}, v{Q+1}")
        a(f"v_add_f32 v{Q+2}, v{Q+2}, v{Q+3}")
        a(f"v_permlane32_swap_b32 v{Q}, v{Q+2}")
        a(f"v_add_f32 v{Q}, v{Q}, v{Q+2}")
        a(f"v_add_f32_dpp v{Q}, v{Q}, v{Q} row_ror:8 row_mask:0xf bank_mask:0xf")
        a(f"v_cmp_u_f32 vcc, v{Q}, v{Q}")
        a(f"v_fma_f32 v{Q}, v{Q}, v{SG}, v{XN}")
    if Cfg.own1:
        assert not Cfg.pp and Cfg.eh and Cfg.fin2
        a("s_cmp_eq_u32 s16, 0")
        a("s_cbranch_scc1 F_h2_w")
        a("s_waitcnt vmcnt(4)")
        h2_sum(P, None)
        a("s_cbranch_vccz F_h2_d")
        a("s_branch F_h2_x")
    if Cfg.pp:
        P2 = 8
        a.label("F_pp")
        h2_req(P2)
        h2_sum(P, 7)
        a("s_cbranch_vccz F_h2_d")
        h2_req(P)
        h2_sum(P2, 7)
        a("s_cbranch_vccz F_h2_d")
        a("s_add_u32 s62, s62, 1")
        a("s_cmp_lt_u32 s62, 8")
        a("s_cbranch_scc1 F_pp")
    a.label("F_h2_w")
    h2_sum(P, 0)
    a("s_cbranch_vccnz F_h2_x")
    a.label("F_h2_d")
    stamp(a, 15)
    if Cfg.stamps and (Cfg.smask >> 15) & 1:
        a("v_readlane_b32 s34, v127, 0")
        a("s_mul_i32 s35, s62, 100")
        a("s_add_u32 s34, s34, s35")
        a("v_writelane_b32 v127, s34, 1")
    a(f"v_mul_f32 v{Q+1}, {f2u(-LOG2E/8)}, v{Q}")
    a(f"v_exp_f32 v{Q+1}, v{Q+1}")
    a(f"v_mul_f32 v{Q}, v{Q}, v{YV}")
    a(f"v_add_f32 v{Q+1}, 1.0, v{Q+1}")
    a(f"v_rcp_f32 v{Q+1}, v{Q+1}")
    a("s_mov_b32 exec_lo, 0x00ff00ff")
    a("s_mov_b32 exec_hi, 0x00ff00ff")
    a(f"v_fmac_f32 v{XV}, v{Q}, v{Q+1}")
    a(f"v_cvt_pk_bf16_f32 v{XV}, v{XV}, v{XV}")
    a(f"buffer_store_short v{XV}, v{AS}, s[20:23], s38 offen {Cfg.finfl or Cfg.out_flag}")
    a("s_cmp_lg_u32 s57, 0")
    a("s_cbranch_scc1 L_fin")
    a("s_mov_b64 exec, 1")
    a(f"v_mov_b32 v{T0}, 0")
    a(f"v_mov_b32 v{T0+1}, s33")
    a(f"buffer_store_dword v{T0+1}, v{T0}, s[24:27], 0 offen {Cfg.epfl}")
    a("s_branch L_fin")
    if Cfg.latex:
        a.label("F_lx")
        a("s_mov_b32 s46, 2")
        a("s_mov_b32 s62, 0")
        a("s_waitcnt vmcnt(8) lgkmcnt(0)")
        a("s_branch F_xt")
    if Cfg.own1:
        a.label("F_own")
        a("s_cmp_lg_u32 s37, s33")
        a("s_cbranch_scc1 F_noh")
        gather_addr()
        gather_req()
        a("s_mov_b32 s16, 1")
        a("s_branch F_noh")
    if Cfg.eh:
        a.label("F_eh")
        a("s_load_dwordx16 s[68:83], s[10:11], s48 glc")
        a("s_load_dwordx16 s[84:99], s[10:11], s52 glc")
        a("s_branch F_eh_r")
    a.label("F_h2_x")
    PR = [PL[k] + x for k in range(7) for x in range(4)]
    a(f"v_max3_u32 v{Q+1}, v{PR[0]}, v{PR[1]}, v{PR[2]}")
    for r in range(3, 27, 2):
        a(f"v_max3_u32 v{Q+1}, v{Q+1}, v{PR[r]}, v{PR[r+1]}")
    a(f"v_max_u32 v{Q+1}, v{Q+1}, v{PR[27]}")
    a(f"v_cmp_eq_u32 vcc, -1, v{Q+1}")
    if Cfg.nofin:
        a("s_branch F_h2_d")
    spin_tail(a, "F_h2", "F_h2_d", sleep=Cfg.h2s)
    a("s_branch F_h2_d")
    a.label("F_zero")
    a("s_mov_b32 exec_lo, 0x01010101")
    a("s_mov_b32 exec_hi, 0x01010101")
    a("s_nop 2")
    for i in range(4):
        a(f"v_mov_b32 v{Y+i}, 0")
    a("s_mov_b64 exec, -1")
    a("s_branch F_nz")
    a.label("F_second")
    a(f"ds_read_b128 {vr(TWC,4)}, v{ATB} offset:{L_T+10240}")
    a(f"ds_read_b128 {vr(TWS,4)}, v{ATB} offset:{L_T+11264}")
    a("s_mov_b32 s46, 0")
    if Cfg.vfull:
        a(f"s_mul_i32 s34, s44, {2*(VU if Cfg.vfull == 2 else VB)}")
        a(f"s_add_u32 s50, s50, {VU if Cfg.vfull == 2 else VB}")
        a("s_sub_u32 s50, s50, s34")
    else:
        a("s_xor_b32 s50, s50, 64")
    a(f"v_add_u32 v{T0+5}, 1, v3")
    a(f"v_bfe_i32 v{T0+5}, v{T0+5}, 4, 1")
    a(f"v_and_b32 v{T0+5}, {f2u(-32.0)}, v{T0+5}")
    a(f"v_xor_b32 v{K32}, v{T0+5}, v{K32}")
    for p in range(8):
        a(f"v_xor_b32 v{F1C+p}, 0x80000000, v{F1C+p}")
    a(f"v_mul_f32 v{CV}, s70, v{K32}")
    a(f"v_fmac_f32 v{CV}, v{M}, v{K32}")
    s1(DA_, PA)
    s1(DB_, PB)
    for r in range(8, 16, 2):
        a(f"v_pk_mul_f32 {vr(DA_+r,2)}, {vr(DA_+r,2)}, s[54:55] op_sel:[0,0] op_sel_hi:[1,0]")
    a("s_waitcnt lgkmcnt(0)")
    a("s_barrier")
    a.settle()
    a("s_branch F_pass")
    a.label("F_key")
    a(f"v_mov_b32 v{T0+7}, s33")
    a(f"v_lshlrev_b32 v{T0}, 11, v2")
    if Cfg.kgrp:
        a("s_and_b32 s35, s2, 7")
        a("s_lshl_b32 s35, s35, 8")
        a("s_andn2_b32 s62, s2, 7")
        a("s_add_u32 s35, s35, s62")
        a(f"s_add_u32 s35, s35, {WS_KY}")
    else:
        a(f"s_lshl3_add_u32 s35, s2, {WS_KY}")
    km = (1 << (Cfg.nrep + Cfg.ru)) - 1
    a(f"s_mov_b32 exec_lo, {hex(km & 0xffffffff)}")
    a(f"s_mov_b32 exec_hi, {hex(km >> 32)}")
    a(f"buffer_store_dwordx2 {vr(T0+6,2)}, v{T0}, s[24:27], s35 offen sc1")
    a("s_mov_b64 exec, -1")
    stamp(a, 5)
    if Cfg.e2:
        a("s_mov_b32 s71, 1")
        a("s_branch F_nokey")
        a.label("F_wkey")
        a("s_waitcnt vmcnt(2)")
        a("s_branch F_wkey_r")
        return
    if not Cfg.fastk:
        a("s_waitcnt vmcnt(2)")
    a("s_branch F_nokey")


def moe_role(a):
    a.label("M_entry")
    if Cfg.diag == 1:
        a("s_endpgm")
    a("s_sub_u32 s28, s2, 256")
    moe_unit(a)
    if Cfg.prio:
        a(f"s_setprio {Cfg.prio}")
    a(f"v_mov_b32 v7, {M_F}")
    a(f"s_mov_b32 s26, {WS_BYTES}")
    a("s_mov_b32 s27, 0x20000")
    if not Cfg.lfirst:
        a("s_cmp_eq_u32 s3, 0")
        a("s_cbranch_scc1 M_loader")
    a("v_mov_b32 v8, 0")
    a("v_mov_b32 v9, 0")
    a("v_mov_b32 v10, 0")
    a("v_mov_b32 v11, 0")
    a("v_mov_b32 v114, 0")
    a("ds_write_b128 v7, v[8:11]")
    a("ds_write_b128 v7, v[8:11] offset:16")
    a("ds_write_b128 v7, v[8:11] offset:32")
    a("v_mov_b32 v8, 0x3f803f80")
    a("v_mov_b32 v9, 0x3f803f80")
    a("v_lshlrev_b32 v10, 3, v2")
    a(f"ds_write_b64 v10, v[8:9] offset:{M_ONE}")
    if Cfg.mon:
        a("v_mov_b32 v12, 0x7fc1beef")
        a(f"v_mov_b32 v13, {M_U + 32764}")
        a("ds_write_b32 v13, v12")
        a(f"v_mov_b32 v13, {M_U + 16380}")
        a("ds_write_b32 v13, v12")
    a("s_waitcnt lgkmcnt(0)")
    stamp(a, 1)
    a("s_load_dword s16, s[10:11], 0")
    a("s_mul_i32 s12, s3, 320")
    a("s_min_u32 s12, s12, 2048")
    a(f"s_add_u32 s18, s12, {WS_KY - 320}")
    a(f"s_and_b32 s13, s28, {Cfg.nrep-1}")
    a("s_lshl_b32 s13, s13, 11")
    a("s_add_u32 s12, s12, s13")
    a(f"s_add_u32 s12, s12, {WS_KY - 320}")
    a("s_add_u32 s12, s10, s12")
    a("s_addc_u32 s13, s11, 0")
    a("s_barrier")
    a("s_waitcnt lgkmcnt(0)")
    a("s_mul_i32 s16, s16, 0x9e3779b1")
    a("s_add_u32 s16, s16, 0x7f4a7c15")
    a("s_mul_i32 s15, s16, 40")
    a("s_mov_b32 s17, 0")
    if Cfg.kwarm:
        a("s_mul_i32 s14, s28, 7")
        a("s_add_u32 s14, s14, s3")
        a("s_lshl_b32 s14, s14, 6")
        a(f"s_add_u32 s14, s14, {WS_RES - 64}")
        a(f"s_sleep {Cfg.kwarm}")
        a("s_load_dword s19, s[10:11], s14 glc")
    if Cfg.sfloor:
        a(f"s_sleep {Cfg.sfloor}")
    if Cfg.tlbw:
        a("s_cmp_lt_u32 s3, 6")
        a("s_cbranch_scc1 M_ntw")
        if Cfg.tlbw == 1:
            a("s_cmp_eq_u32 s3, 6")
            a("s_cselect_b32 s20, s40, s42")
            a("s_cselect_b32 s21, s41, s43")
            for k in range(4):
                a(f"s_mov_b32 s34, {k << 21}")
                a(f"s_load_dword s{56+k}, s[20:21], s34")
            a("s_mov_b32 s34, 0x200000")
            a("s_load_dword s60, s[8:9], 0")
            a("s_load_dword s61, s[8:9], s34")
        else:
            a("s_and_b32 s34, s28, 7")
            a(f"s_mul_i32 s34, s34, {128*7168}")
            a("s_lshr_b32 s35, s28, 3")
            a("s_xor_b32 s35, s35, 2")
            a("s_lshl_b32 s35, s35, 8")
            a("s_add_u32 s34, s34, s35")
            a("s_cmp_eq_u32 s3, 6")
            a("s_cbranch_scc0 M_tw7")
            for k in range(15):
                a(f"s_load_dword s{40+16+k}, s[40:41], s34")
                a(f"s_add_u32 s34, s34, {65536 if k < 13 else 127*7168 - 13*65536}")
            a("s_branch M_ntw")
            a.label("M_tw7")
            a("s_lshl_b32 s34, s29, 17")
            for k in range(3):
                a(f"s_load_dword s{56+k}, s[42:43], s34")
                a(f"s_add_u32 s34, s34, {65536 if k < 1 else 65535 - 2047}")
            a("s_mov_b32 s34, 0x200000")
            a("s_load_dword s60, s[8:9], 0")
            a("s_load_dword s61, s[8:9], s34")
        a.label("M_ntw")
    a("s_sub_u32 s31, s3, 2")
    a("s_cmp_lt_u32 s31, 4")
    if Cfg.sfirst == 3:
        a("s_cselect_b32 s9, 0, 1")
    a("s_cbranch_scc1 M_pre")
    if Cfg.wsl:
        lds_wait(a, "M_pg0", M_F, Cfg.wsn, 8, sleep=Cfg.wsl)
    if Cfg.pk0:
        lds_wait(a, "M_pg", M_F, Cfg.pk0, 8)
    a("s_branch M_scan0")

    def comp_addr():
        a("s_lshr_b32 s44, s28, 3")
        a("s_lshr_b32 s34, s31, 1")
        a("s_lshl1_add_u32 s44, s44, s34")
        a("s_lshl4_add_u32 s44, s44, s46")
        a("s_and_b32 s34, s31, 1")
        a("s_lshl1_add_u32 s44, s44, s34")
        a("s_lshl_b32 s44, s44, 7")
        a("v_lshrrev_b32 v114, 5, v2")
        a("v_mul_u32_u24 v114, 0x4800, v114")
        a("v_xor_b32 v114, s44, v114")
        if Cfg.swp:
            a("s_bfe_u32 s34, s28, 0x20003")
            a("s_cmp_eq_u32 s34, 3")
            a("s_cselect_b32 s34, 0x4800, 0")
            a("v_xor_b32 v114, s34, v114")
        a("v_and_b32 v115, 31, v2")
        a("v_lshl_add_u32 v114, v115, 2, v114")
        a(f"s_mov_b32 s44, {WS_H1}")
        a("s_lshl2_add_u32 s45, s29, s30")
        a(f"s_mul_i32 s45, s45, {H2R}" if Cfg.h2s9 else "s_lshl_b32 s45, s45, 10")
        a("s_lshl_b32 s34, s31, 8")
        a("s_add_u32 s45, s45, s34")
        a(f"s_add_u32 s45, s45, {WS_H2}")
        a("s_lshl_b32 s34, s31, 6")
        a("v_lshl_add_u32 v113, v2, 2, s34")
    a.label("M_pre")
    if Cfg.trim == 2:
        a("s_and_b32 s46, s28, 7")
        a("s_lshl2_add_u32 s6, s46, s31")
        a("s_lshl_b32 s6, s6, 6")
        comp_addr()
        a("s_mov_b32 s7, s45")
    BG, BU, AX, DG = 16, 48, 80, 96
    a("v_bfe_u32 v8, v2, 2, 2")
    a("v_lshl_add_u32 v9, v4, 2, v8")
    a("v_and_b32 v10, 7, v9")
    a("v_lshlrev_b32 v10, 1, v10")
    a("v_bfe_u32 v11, v2, 1, 1")
    a("s_lshl_b32 s34, s31, 2")
    a("v_or_b32 v12, s34, v11")
    a("v_xor_b32 v12, v12, v10")
    a("v_lshlrev_b32 v12, 4, v12")
    a("v_lshl_add_u32 v12, v9, 8, v12")
    a("v_and_b32 v13, 1, v2")
    a("v_lshl_add_u32 v12, v13, 3, v12")
    a("v_xor_b32 v126, 32, v12")
    a("s_lshl_b32 s34, s31, 3")
    a("v_or_b32 v120, s34, v11")
    a("v_xor_b32 v120, v120, v10")
    a("v_lshlrev_b32 v120, 4, v120")
    a("v_lshl_add_u32 v120, v9, 9, v120")
    a("v_lshl_add_u32 v120, v13, 3, v120")
    for t in range(1, 4):
        a(f"v_xor_b32 v{120+t}, {32*t}, v120")
    a("v_lshlrev_b32 v14, 4, v4")
    a("v_and_b32 v15, 1, v2")
    a("v_lshl_add_u32 v15, v15, 9, v14")

    def gate_reads(sfx=""):
        lds_wait(a, "M_wg" + sfx, M_F, 8, 8)
        stamp(a, 6)
        for n in range(8):
            for u2 in range(2):
                a(f"ds_read_b64_tr_b16 {vr(BG+4*n+2*u2,2)}, v{126 if n >= 4 else 12} offset:{M_G+8192*(n % 4)+4096*u2}")
                if n == 7 and u2 == 0:
                    a("s_waitcnt lgkmcnt(4)")
        a("v_mov_b32 v8, 1")
        a("s_waitcnt lgkmcnt(0)")
        a("s_mov_b64 exec, 1")
        a("ds_add_u32 v7, v8 offset:4")
        a("s_mov_b64 exec, -1")

    def gate_step(ns):
        for n in ns:
            for t in range(2):
                for u2 in range(2):
                    a(f"ds_read_b64_tr_b16 {vr(BG+16*t+4*n+2*u2,2)}, v{126 if t else 12} offset:{M_G+8192*n+4096*u2}")
    if Cfg.gprog:
        assert Cfg.scan3 and not Cfg.sfirst
        if Cfg.wsl:
            lds_wait(a, "M_wg0", M_F, min(Cfg.wsn, 6), 8, sleep=Cfg.wsl)
        lds_wait(a, "M_wg6", M_F, 6, 8)
        gate_step((0, 1, 2))
        a("v_mov_b32 v8, 1")
        a("s_waitcnt lgkmcnt(0)")
        a("s_mov_b64 exec, 1")
        a("ds_add_u32 v7, v8 offset:4")
        a("s_mov_b64 exec, -1")
        if Cfg.escan:
            a("s_lshl_b32 s15, s16, 3")
            a("s_mov_b32 s19, 0")
            a("v_mov_b32 v10, 0")
            for k in range(5):
                a(f"s_load_dwordx16 s[{20+16*k}:{35+16*k}], s[12:13], {64*k}")
            a("s_mov_b32 s14, 0")
            a.label("M_wg")
            a("ds_read_b32 v9, v7")
            a("s_waitcnt lgkmcnt(0)")
            a("v_cmp_gt_u32 vcc, 8, v9")
            spin_tail(a, "M_wg", "M_wg_d", cnt="s14", sleep=1, glob=False)
            a.label("M_wg_d")
            stamp(a, 6)
            gate_step((3,))
            a("v_mov_b32 v8, 1")
            a("s_mov_b64 exec, 1")
            a("s_waitcnt lgkmcnt(0)")
            a("ds_add_u32 v7, v8 offset:24")
            a("s_mov_b64 exec, -1")
            a("s_branch M_scan1")
        else:
            lds_wait(a, "M_wg", M_F, max(8, Cfg.pk0), 8)
            stamp(a, 6)
            gate_step((3,))
    elif Cfg.sfirst:
        lds_wait(a, "M_pg2", M_F, Cfg.pk0, 8)
    else:
        gate_reads()
    a.label("M_scan0")
    if Cfg.sdelay:
        a(f"s_sleep {Cfg.sdelay}")
    if Cfg.scan3:
        a("s_lshl_b32 s15, s16, 3")
        a("s_mov_b32 s19, 0")
        a("v_mov_b32 v10, 0")
        for k in range(5):
            a(f"s_load_dwordx16 s[{20+16*k}:{35+16*k}], s[12:13], {64*k}")
        if Cfg.gprog:
            a("v_mov_b32 v8, 1")
            a("s_mov_b64 exec, 1")
            a("s_waitcnt lgkmcnt(0)")
            a("ds_add_u32 v7, v8 offset:24")
            a("s_mov_b64 exec, -1")
            a("s_branch M_scan1")
        a.label("M_scan")
        a("s_waitcnt lgkmcnt(0)")
        a.label("M_scan1")
        for k in range(5):
            b = 20 + 16*k
            a(f"s_add_u32 s14, s{b+1}, s{b+3}")
            for e in range(2, 8):
                a(f"s_add_u32 s14, s14, s{b+2*e+1}")
            a("s_cmp_lg_u32 s14, s15")
            a(f"s_cbranch_scc1 M_sec{k}")
            for e in range(8):
                a(f"v_max_u32 v10, s{b+2*e}, v10")
            a(f"s_bitset1_b32 s19, {k}")
            a(f"s_mov_b32 s{b+1}, 0")
            a.label(f"M_sec{k}")
        a("s_cmp_eq_u32 s19, 31")
        a("s_cbranch_scc1 M_scan_d")
        if Cfg.sfirst == 3:
            a("s_cmp_lg_u32 s9, 0")
            a("s_cbranch_scc1 M_gskip")
            a("s_mov_b32 s9, 1")
            gate_reads("b")
            a.label("M_gskip")
        if Cfg.ru:
            a("s_add_u32 s17, s17, 1")
            a(f"s_and_b32 s14, s2, {Cfg.ru-1}")
            a("s_lshl_b32 s14, s14, 11")
            a("s_add_u32 s14, s14, s18")
            a(f"s_add_u32 s14, s14, {Cfg.nrep*2048}")
            a("s_add_u32 s12, s10, s14")
            a("s_addc_u32 s13, s11, 0")
            if Cfg.ssl:
                a(f"s_sleep {Cfg.ssl}")
            for k in range(5):
                a(f"s_bitcmp1_b32 s19, {k}")
                a(f"s_cbranch_scc1 M_rl{k}")
                a(f"s_load_dwordx16 s[{20+16*k}:{35+16*k}], s[12:13], {64*k} glc")
                a.label(f"M_rl{k}")
        else:
            a("s_add_u32 s17, s17, 1")
            a("s_add_u32 s14, s2, s17")
            a(f"s_and_b32 s14, s14, {Cfg.nrep-1}")
            a("s_lshl_b32 s14, s14, 11")
            a("s_add_u32 s14, s14, s18")
            a("s_add_u32 s12, s10, s14")
            a("s_addc_u32 s13, s11, 0")
            if Cfg.ssl:
                a(f"s_sleep {Cfg.ssl}")
            a(f"s_cmp_ge_u32 s17, {Cfg.nrep}")
            a("s_cbranch_scc1 M_scan_u")
            for g_, nm in (("", "a"), (" glc", "b")):
                if g_:
                    a.label("M_scan_u")
                for k in range(5):
                    a(f"s_bitcmp1_b32 s19, {k}")
                    a(f"s_cbranch_scc1 M_rl{nm}{k}")
                    a(f"s_load_dwordx16 s[{20+16*k}:{35+16*k}], s[12:13], {64*k}{g_}")
                    a.label(f"M_rl{nm}{k}")
                if not g_:
                    a("s_branch M_scan")
        a(f"s_cmp_lt_u32 s17, {SPIN_CAP}")
        a("s_cbranch_scc1 M_scan")
        a("s_waitcnt lgkmcnt(0)")
    else:
        a.label("M_scan")
        if Cfg.scan2:
            a(f"s_cmp_ge_u32 s17, {Cfg.nrep}")
            a("s_cbranch_scc1 M_scan_u")
            for k in range(5):
                a(f"s_load_dwordx16 s[{20+16*k}:{35+16*k}], s[12:13], {64*k}")
            a.label("M_scan_w")
        else:
            for k in range(5):
                a(f"s_load_dwordx16 s[{20+16*k}:{35+16*k}], s[12:13], {64*k} glc")
        a("v_mov_b32 v10, 0")
        a("s_mov_b32 s14, 0")
        a("s_waitcnt lgkmcnt(0)")
        for k in range(40):
            a(f"s_add_u32 s14, s14, s{21+2*k}")
            a(f"v_max_u32 v10, s{20+2*k}, v10")
        a("s_cmp_eq_u32 s14, s15")
        a("s_cbranch_scc1 M_scan_d")
        a("s_add_u32 s17, s17, 1")
        if Cfg.scan2:
            a("s_add_u32 s14, s2, s17")
            a(f"s_and_b32 s14, s14, {Cfg.nrep-1}")
            a("s_lshl_b32 s14, s14, 11")
            a("s_add_u32 s14, s14, s18")
            a("s_add_u32 s12, s10, s14")
            a("s_addc_u32 s13, s11, 0")
            a("s_sleep 4")
        a(f"s_cmp_lt_u32 s17, {SPIN_CAP}")
        a("s_cbranch_scc1 M_scan")
        if Cfg.scan2:
            a("s_branch M_scan_d")
            a.label("M_scan_u")
            for k in range(5):
                a(f"s_load_dwordx16 s[{20+16*k}:{35+16*k}], s[12:13], {64*k} glc")
            a("s_branch M_scan_w")
    a.label("M_scan_d")
    a("v_mov_b32 v8, 1")
    a("s_mov_b64 exec, 1")
    a("ds_max_u32 v7, v10 offset:16")
    a("ds_add_u32 v7, v8 offset:20")
    a("s_mov_b64 exec, -1")
    stamp(a, 10)
    if Cfg.trim == 2:
        a("s_sub_u32 s31, s3, 2")
        a("s_cmp_lt_u32 s31, 4")
        a("s_cbranch_scc1 M_comp")
    a("s_mov_b32 s33, s16")
    a("s_sub_u32 s28, s2, 256")
    moe_unit(a)
    a("s_mov_b64 s[24:25], s[10:11]")
    a(f"s_mov_b32 s26, {WS_BYTES}")
    a("s_mov_b32 s27, 0x20000")
    if Cfg.gate:
        a("s_cmp_eq_u32 s3, 7")
        a("s_cbranch_scc1 M_gate")
    if Cfg.agent:
        a(f"s_cmp_ge_u32 s3, {8 - Cfg.agent}")
        a("s_cbranch_scc1 M_agent")
    a("s_cmp_ge_u32 s3, 6")
    a("s_cbranch_scc1 L_fin")
    a("s_cmp_eq_u32 s3, 1")
    if Cfg.trim == 2:
        a("s_branch M_poller")
    else:
        a("s_cbranch_scc1 M_poller")
        a("s_sub_u32 s31, s3, 2")
        a("s_branch M_comp")
    if Cfg.gate:
        assert Cfg.brep == 32
        a.label("M_gate")
        a("v_lshlrev_b32 v10, 10, v2")
        a("v_mov_b32 v11, s33")
        a(f"s_lshl2_add_u32 s34, s28, {WS_KB + 32768}")
        lds_wait(a, "M_gw", M_F, Cfg.gate, 8)
        a("s_mov_b32 exec_hi, 0")
        a("buffer_store_dword v11, v10, s[24:27], s34 offen sc1")
        a("s_barrier")
        a("s_branch L_fin")
    if Cfg.agent:
        a.label("M_agent")
        a("s_and_b32 s47, s28, 7")
        a("s_lshl_b32 s47, s47, 8")
        a("s_mov_b32 s49, 0")
        a("s_mov_b32 s62, 0")
        a.label("M_ag")
        a("ds_read_b64 v[8:9], v7 offset:16")
        a("s_waitcnt lgkmcnt(0)")
        a("v_readfirstlane_b32 s48, v8")
        a("v_readfirstlane_b32 s46, v9")
        a("s_cmp_ge_u32 s46, 7")
        a("s_cbranch_scc1 M_mon" if Cfg.mon else "s_cbranch_scc1 M_rep" if Cfg.ldg else "s_cbranch_scc1 L_fin")
        a("s_cmp_eq_u32 s48, s49")
        a("s_cbranch_scc1 M_ag_n")
        a("s_mov_b32 s49, s48")
        a("s_and_b32 s34, s48, 2047")
        a("s_lshl_b32 s34, s34, 11")
        a("s_add_u32 s34, s34, s47")
        for k in range(4):
            a(f"s_load_dword s{54+k}, s[4:5], s34")
            if k < 3:
                a("s_add_u32 s34, s34, 64")
        stat_req(a)
        a.label("M_ag_n")
        a("s_add_u32 s62, s62, 1")
        a(f"s_cmp_lt_u32 s62, {5*SPIN_CAP}")
        a("s_cbranch_scc1 M_ag")
        a("s_branch L_fin")
        if Cfg.mon:
            a.label("M_mon")
            for k, off in enumerate((M_U + 16380, M_U + 32764)):
                a(f"v_mov_b32 v13, {off}")
                a("s_mov_b32 s62, 0")
                a.label(f"M_mon{k}")
                a("ds_read_b32 v12, v13")
                a("s_waitcnt lgkmcnt(0)")
                a("v_cmp_eq_u32 vcc, 0x7fc1beef, v12")
                spin_tail(a, f"M_mon{k}", f"M_mon{k}_d", sleep=1, glob=False)
                a.label(f"M_mon{k}_d")
                stamp(a, 11 + k)
            a("s_branch L_fin")
        if Cfg.ldg:
            a.label("M_rep")
            a("s_cmp_lg_u32 s3, 7")
            a("s_cbranch_scc1 L_fin")
            lds_wait(a, "M_repw", M_F+28, 1, 8, sleep=2)
            a("v_mov_b32 v10, s33")
            a("v_mov_b32 v11, 0")
            a("s_sub_u32 s35, s2, 256")
            a("s_lshl_b32 s35, s35, 7")
            a(f"s_add_u32 s35, s35, {WS_LD}")
            a("s_mov_b64 exec, 1")
            a("buffer_store_dword v10, v11, s[24:27], s35 offen sc1")
            a("s_mov_b64 exec, -1")
            a("s_branch L_fin")
    if Cfg.lfirst:
        a.label("M_loader2")
        if Cfg.lprof:
            a("v_mov_b32 v126, 0")
            a("v_mov_b32 v125, 0")
        a(f"v_mov_b32 v7, {M_F}")
        a(f"s_mov_b32 s26, {WS_BYTES}")
        a("s_mov_b32 s27, 0x20000")
        a("v_xor_b32 v18, 128, v8")
        down_tile(a)
    else:
        a.label("M_loader")
        if Cfg.lprio != Cfg.prio:
            a(f"s_setprio {Cfg.lprio}")
        a("v_mul_u32_u24 v8, 7168, v4")
        a("v_lshlrev_b32 v9, 1, v4")
        a("v_xor_b32 v9, v9, v3")
        a("v_lshl_add_u32 v8, v9, 4, v8")
        a("v_xor_b32 v18, 128, v8")
        a("s_and_b32 s34, s28, 7")
        a(f"s_mul_i32 s34, s34, {128*7168}")
        a("s_lshr_b32 s35, s28, 3")
        a("s_lshl_b32 s35, s35, 8")
        a("s_add_u32 s34, s34, s35")
        a("s_mov_b32 s14, 7340032")
        a("s_mov_b32 s15, 0x20000")
        a(f"s_mov_b32 s46, {M_G}")
        a("s_mov_b32 s45, s34")
        a("s_waitcnt lgkmcnt(0)")
        a("s_mov_b64 s[12:13], s[38:39]")
        stamp(a, 2)
        for n in range(4):
            a("s_mov_b32 m0, s46")
            a("s_add_u32 s46, s46, 1024")
            a(f"buffer_load_dwordx4 v{18 if n % 2 else 8}, s[12:15], s45 offen {Cfg.wfl} lds")
            a(f"s_add_u32 s45, s45, {4*7168}")
    a("s_mov_b64 s[24:25], s[10:11]")
    srd(a, 16, 40, 7340032)
    first = Cfg.thr//4 if Cfg.lfirst else 1
    cuts = sorted(set([first, 8, 16, 24] + [g for g in (Cfg.g2, Cfg.g3) if first < g < 24] + ([22] if Cfg.gprog else []) + ([Cfg.ldg] if Cfg.ldg else [])))
    a(f"s_mov_b32 s47, {cuts[0]}")
    a("s_barrier")
    if Cfg.sfast == 1:
        a("s_bfe_u32 s35, s28, 0x20003")
        a("s_cmp_eq_u32 s35, 1")
        a(f"s_cbranch_scc1 M_ld{Cfg.g2}")
    for g0, g1 in zip(cuts, cuts[1:]):
        mat = g0 // 8
        thr = Cfg.thr3 if g0 >= Cfg.g3 else Cfg.thr2 if g0 >= Cfg.g2 else Cfg.thr
        assert thr % 4 == 0
        if g0 == 8:
            srd(a, 20, 42, 7340032)
            a("v_lshrrev_b32 v9, 5, v2")
            a("v_and_b32 v10, 31, v2")
            for n in range(4):
                a(f"v_add_u32 v11, {2*n}, v9")
                a(f"v_lshlrev_b32 v{12+n}, 1, v11")
                a(f"v_xor_b32 v{12+n}, v{12+n}, v10")
                a(f"v_lshlrev_b32 v{12+n}, 4, v{12+n}")
                a(f"v_lshl_add_u32 v{12+n}, v11, 11, v{12+n}")
            a("s_lshl_b32 s44, s29, 17")
            a("s_lshl_b32 s35, s30, 9")
            a("s_add_u32 s44, s44, s35")
        if g0 == 16:
            if Cfg.drain < Cfg.thr2:
                a("s_mov_b64 exec, 1")
                for left in range(Cfg.thr2//4 - 1, Cfg.drain//4 - 1, -1):
                    a(f"v_mov_b32 v16, {16-left}")
                    a(f"s_waitcnt vmcnt({4*left})")
                    a("ds_max_i32 v7, v16")
                a("s_mov_b64 exec, -1")
            lds_wait(a, "M_wgc", M_F+4, 4, 20)
        if g0 == 22 and Cfg.gprog:
            lds_wait(a, "M_wgd", M_F+24, 7, 20)
        if Cfg.ldg and g0 == Cfg.ldg:
            a("v_mov_b32 v16, 1")
            a("ds_write_b32 v7, v16 offset:28")
        if g0 % 8 == 0:
            stamp(a, 2 + mat)
            if mat == 2 and Cfg.skipg:
                a(f"s_mov_b32 s49, {24 - Cfg.skipg}")
            a(f"s_mov_b32 s46, {M_U if mat == 1 else M_G}")
            if mat < 2:
                a("s_xor_b32 s45, s34, 512")
        if g0 == Cfg.g2 and Cfg.ramp:
            a(f"s_sleep {Cfg.ramp}")
        a.label(f"M_ld{g0}")
        if Cfg.tlo and mat == 2:
            a("s_mov_b32 s62, 0")
            a.label(f"M_tl{g0}")
            a(f"ds_read_b32 v20, v7 offset:{Cfg.tev}")
            a("s_getreg_b32 s35, hwreg(HW_REG_IB_STS)")
            a("s_bfe_u32 s48, s35, 0x20016")
            a("s_and_b32 s35, s35, 15")
            a("s_lshl4_add_u32 s48, s48, s35")
            a("s_add_u32 s35, s48, 3")
            a("s_lshr_b32 s35, s35, 2")
            a("s_sub_u32 s35, s47, s35")
            a("v_mov_b32 v16, s35")
            a("s_mov_b64 exec, 1")
            a("ds_max_i32 v7, v16")
            a("s_mov_b64 exec, -1")
            a(f"s_cmp_le_u32 s48, {Cfg.tlo}")
            a(f"s_cbranch_scc1 M_tl{g0}_d")
            a("s_waitcnt lgkmcnt(0)")
            a(f"v_cmp_gt_u32 vcc, {Cfg.tcnt}, v20")
            spin_tail(a, f"M_tl{g0}", f"M_tl{g0}_d", sleep=0, glob=False)
            a.label(f"M_tl{g0}_d")
        for n in range(4):
            a("s_mov_b32 m0, s46")
            a("s_add_u32 s46, s46, 1024")
            if mat < 2:
                a(f"buffer_load_dwordx4 v{18 if n % 2 else 8}, s[{12+4*mat}:{15+4*mat}], s45 offen {Cfg.wfl} lds")
                a(f"s_add_u32 s45, s45, {4*7168}")
            else:
                a(f"buffer_load_dwordx4 v{12+n}, s[20:23], s44 offen {Cfg.wfl} lds")
            a(f"s_waitcnt vmcnt({thr})")
        if Cfg.thrn and g0 >= Cfg.g2:
            a("s_bitcmp1_b32 s28, 3")
            a(f"s_cbranch_scc1 M_tn{g0}")
            a(f"s_waitcnt vmcnt({Cfg.thrn})")
            a.label(f"M_tn{g0}")
        if mat == 2:
            a("s_add_u32 s44, s44, 16384")
        a("s_add_u32 s47, s47, 1")
        if Cfg.exact:
            a("s_getreg_b32 s35, hwreg(HW_REG_IB_STS)")
            a("s_bfe_u32 s48, s35, 0x20016")
            a("s_and_b32 s35, s35, 15")
            a("s_lshl4_add_u32 s35, s48, s35")
            a("s_add_u32 s35, s35, 3")
            a("s_lshr_b32 s35, s35, 2")
            a("s_sub_u32 s35, s47, s35")
        else:
            a(f"s_sub_u32 s35, s47, {thr//4}")
        a("v_mov_b32 v16, s35")
        a("s_mov_b64 exec, 1")
        a("ds_max_i32 v7, v16")
        a("s_mov_b64 exec, -1")
        if Cfg.lprof:
            a("s_memrealtime s[100:101]")
            a("s_waitcnt lgkmcnt(0)")
            a("s_mov_b32 m0, s47")
            a("s_nop 0")
            a("v_writelane_b32 v126, s100, m0")
            a("s_max_i32 s48, s35, 0")
            a("s_mov_b32 m0, s48")
            a("s_nop 0")
            a("v_writelane_b32 v125, s100, m0")
        if Cfg.sfast == 2 and g1 == Cfg.g2:
            a("s_bfe_u32 s35, s28, 0x20003")
            a("s_cmp_eq_u32 s35, 1")
            a(f"s_cbranch_scc1 M_ld{g1}")
        a(f"s_cmp_lt_u32 s47, {g1 - (Cfg.skipg if g1 == 24 else 0)}")
        a(f"s_cbranch_scc1 M_ld{g0}")
    if Cfg.ldg == 24:
        a("v_mov_b32 v16, 1")
        a("ds_write_b32 v7, v16 offset:28")
    if Cfg.hpf:
        a("s_sub_u32 s44, s44, 32768")
        a(f"s_xor_b32 s44, s44, {2 << 17}")
        a(f"s_mov_b32 m0, {LDS_BYTES - 256}")
        a("v_lshrrev_b32 v9, 2, v2")
        a("v_and_b32 v10, 3, v2")
        a("v_lshlrev_b32 v10, 7, v10")
        a("v_lshl_add_u32 v10, v9, 11, v10")
        for k in range(Cfg.hpf):
            a("buffer_load_dword v10, s[20:23], s44 offen lds")
            a("s_sub_u32 s44, s44, 32768")
    a("s_mov_b64 exec, 1")
    lstamp(a, 6)
    for left in range(thr//4 - 1, 0, -1):
        a(f"v_mov_b32 v16, {24-left - (Cfg.skipg if left > 3 else 0)}")
        a(f"s_waitcnt vmcnt({4*left + Cfg.hpf})")
        a("ds_max_i32 v7, v16")
        lstamp(a, 13-left)
        if Cfg.lprof:
            a("s_memrealtime s[100:101]")
            a("s_waitcnt lgkmcnt(0)")
            a(f"v_writelane_b32 v126, s100, {32+24-left}")
    a("v_mov_b32 v16, 24")
    a(f"s_waitcnt vmcnt({Cfg.hpf})")
    a("ds_write_b32 v7, v16")
    stamp(a, 5)
    if Cfg.lprof:
        a("s_memrealtime s[100:101]")
        a("s_waitcnt lgkmcnt(0)")
        a("v_writelane_b32 v126, s100, 56")
        a("s_mov_b64 exec, -1")
        a("s_sub_u32 s34, s2, 256")
        a("s_lshl_b32 s34, s34, 9")
        a(f"s_add_u32 s34, s34, {WS_TS + (1 << 20)}")
        a("v_lshlrev_b32 v24, 2, v2")
        a("buffer_store_dword v126, v24, s[24:27], s34 offen")
        a("buffer_store_dword v125, v24, s[24:27], s34 offen offset:256")
    a("s_waitcnt lgkmcnt(0)")
    a("s_barrier")
    a("s_branch L_fin")
    a.label("M_comp")
    if Cfg.sfirst == 1:
        gate_reads()
    if Cfg.sfirst == 3:
        a("s_cmp_lg_u32 s9, 0")
        a("s_cbranch_scc1 M_gdone")
        gate_reads()
        a.label("M_gdone")
    if Cfg.trim != 2:
        a("s_and_b32 s46, s28, 7")
        a("s_lshl2_add_u32 s47, s46, s31")
        a("s_lshl_b32 s47, s47, 6")

    if Cfg.trim == 1:
        comp_addr()
    if Cfg.upre >= 3:
        a("s_mov_b32 s57, 0")
        a("s_mov_b32 s62, 0")
        a.label("M_prl")
        a("ds_read_b32 v8, v7")
        a("ds_read_b64 v[10:11], v7 offset:16")
        a("s_add_u32 s62, s62, 1")
        a("s_waitcnt lgkmcnt(0)")
        a("v_readfirstlane_b32 s56, v8")
        a("v_readfirstlane_b32 s46, v11")
        a("s_cmp_eq_u32 s57, 4")
        a("s_cbranch_scc1 M_prc")
        for n in range(4):
            if n < 3:
                a(f"s_cmp_gt_u32 s57, {n}")
                a(f"s_cbranch_scc1 M_prs{n}")
            a(f"s_cmp_lt_u32 s56, {10+2*n}")
            a("s_cbranch_scc1 M_prc")
            for t in range(2):
                for u2 in range(2):
                    a(f"ds_read_b64_tr_b16 {vr(BU+16*t+4*n+2*u2,2)}, v{126 if t else 12} offset:{M_U+8192*n+4096*u2}")
            a(f"s_mov_b32 s57, {n+1}")
            if n < 3:
                a.label(f"M_prs{n}")
        a.label("M_prc")
        a("s_cmp_ge_u32 s46, 7")
        a("s_cbranch_scc1 M_prk")
        a(f"s_cmp_lt_u32 s62, {5*SPIN_CAP}")
        a("s_cbranch_scc1 M_prl")
        a.label("M_prk")
        a("v_readfirstlane_b32 s48, v10")
        a.label("M_prk2")
    elif Cfg.upre:
        a("s_mov_b32 s57, 0")
        a("s_mov_b32 s62, 0")
        for n in range(4):
            a.label(f"M_pr{n}")
            a("ds_read_b32 v8, v7")
            a("ds_read_b64 v[10:11], v7 offset:16")
            a("s_add_u32 s62, s62, 1")
            a("s_waitcnt lgkmcnt(0)")
            a("v_readfirstlane_b32 s46, v11")
            a("v_readfirstlane_b32 s56, v8")
            a("s_cmp_ge_u32 s46, 7")
            a("s_cbranch_scc1 M_prk")
            a(f"s_cmp_ge_u32 s62, {5*SPIN_CAP}")
            a("s_cbranch_scc1 M_prk")
            a(f"s_cmp_lt_u32 s56, {10+2*n}")
            a(f"s_cbranch_scc1 M_pr{n}")
            for t in range(2):
                for u2 in range(2):
                    a(f"ds_read_b64_tr_b16 {vr(BU+16*t+4*n+2*u2,2)}, v{126 if t else 12} offset:{M_U+8192*n+4096*u2}")
            a(f"s_mov_b32 s57, {n+1}")
        key_wait(a, "M_box")
        a("s_branch M_prk2")
        a.label("M_prk")
        a("v_readfirstlane_b32 s48, v10")
        a.label("M_prk2")
        if Cfg.mon and Cfg.stamps:
            a("v_readlane_b32 s34, v127, 0")
            a("s_mul_i32 s35, s57, 100")
            a("s_add_u32 s34, s34, s35")
            a("v_writelane_b32 v127, s34, 11")
            a("s_mul_i32 s35, s56, 100")
            a("v_readlane_b32 s34, v127, 0")
            a("s_add_u32 s34, s34, s35")
            a("v_writelane_b32 v127, s34, 12")
    else:
        key_wait(a, "M_box")
    stamp(a, 8)
    a("s_and_b32 s34, s48, 2047")
    a("s_lshl_b32 s34, s34, 11")
    a(f"s_add_u32 s34, s34, {'s6' if Cfg.trim == 2 else 's47'}")
    a("s_load_dwordx16 s[64:79], s[4:5], s34")
    if not Cfg.pstat:
        stat_req(a)
    if not Cfg.trim:
        comp_addr()
    if Cfg.trim == 2:
        a("s_mov_b32 s33, s16")
        a("s_mov_b64 s[24:25], s[10:11]")
        a(f"s_mov_b32 s26, {WS_BYTES}")
        a("s_mov_b32 s27, 0x20000")
        a(f"s_mov_b32 s44, {WS_H1}")
        a("s_mov_b32 s45, s7")
    a("v_mov_b32 v8, 1")
    a("s_waitcnt lgkmcnt(0)")
    for dl in range(16):
        lam = dl >> 1
        lane = 16*(lam >> 3) + 4*(lam & 3) + 2*((lam >> 2) & 1) + (dl & 1)
        a(f"v_writelane_b32 v11, s{64+dl}, {lane}")
    a("s_mov_b64 exec, 0xffff")
    a(f"ds_write_b32 v113, v11 offset:{M_XS}")
    a("s_mov_b64 exec, 1")
    a("ds_add_u32 v7, v8 offset:8")
    a("s_mov_b64 exec, -1")
    stamp(a, 9)
    if Cfg.sfirst == 2:
        gate_reads()
    if (not Cfg.pstat and not Cfg.trim) or Cfg.upre == 2:
        stat_use(a)
    a("s_mov_b32 s62, 0")
    a.label("M_wx")
    a("ds_read_b128 v[8:11], v7")
    a("s_waitcnt lgkmcnt(0)")
    a("v_cmp_gt_u32 vcc, 4, v10")
    spin_tail(a, "M_wx", "M_wx_d", sleep=0, glob=False)
    a.label("M_wx_d")
    stamp(a, 2)
    for n in range(4):
        a(f"ds_read_b128 {vr(AX+4*n,4)}, v15 offset:{M_XS+64*n}")
    a("v_readfirstlane_b32 s56, v8")
    if Cfg.mon and Cfg.stamps:
        a("s_mul_i32 s35, s56, 100")
        a("v_readlane_b32 s34, v127, 0")
        a("s_add_u32 s34, s34, s35")
        a("v_writelane_b32 v127, s34, 13")

    def need(name, p):
        a(f"s_cmp_ge_u32 s56, {p}")
        a(f"s_cbranch_scc1 {name}_k")
        a("s_mov_b32 s62, 0")
        a.label(name)
        a("ds_read_b32 v8, v7")
        a("s_waitcnt lgkmcnt(0)")
        a(f"v_cmp_gt_u32 vcc, {p}, v8")
        spin_tail(a, name, name + "_d", sleep=0 if p > 14 else 1, glob=False)
        a.label(name + "_d")
        a("v_readfirstlane_b32 s56, v8")
        a.label(name + "_k")

    def up_mfma(n, t):
        d = DG + 8*t + 4
        a(f"v_mfma_f32_16x16x32_bf16 {vr(d,4)}, {vr(AX+4*n,4)}, {vr(BU+16*t+4*n,4)}, {'0' if n == 0 else vr(d,4)}")
    if Cfg.upre >= 3:
        a("s_cmp_lt_u32 s56, 16")
        a("s_cbranch_scc1 M_slow")
        a("s_cmp_lg_u32 s53, s33")
        a("s_cbranch_scc1 M_slow")
        for n in range(4):
            a(f"s_cmp_gt_u32 s57, {n}")
            a(f"s_cbranch_scc1 M_fs{n}")
            for t in range(2):
                for u2 in range(2):
                    a(f"ds_read_b64_tr_b16 {vr(BU+16*t+4*n+2*u2,2)}, v{126 if t else 12} offset:{M_U+8192*n+4096*u2}")
            a.label(f"M_fs{n}")
        a("s_lshl_b32 s54, s52, 16")
        a("s_and_b32 s52, s52, 0xffff0000")
        a(f"v_mov_b32 v124, {f2u(1e-5)}")
        a("v_add_f32 v124, s52, v124")
        chain = ["v_cvt_pk_bf16_f32 v124, v124, v124", "v_lshlrev_b32 v124, 16, v124", "v_sqrt_f32 v124, v124",
                 "v_cvt_pk_bf16_f32 v124, v124, v124", "v_lshlrev_b32 v124, 16, v124", "v_rcp_f32 v124, v124"]
        a(chain.pop(0))
        a(chain.pop(0))
        a(chain.pop(0))
        lgk(a, 0)
        mf = []
        for k in range(4):
            for t in range(2):
                d = DG + 8*t
                mf.append(f"v_mfma_f32_16x16x32_bf16 {vr(d,4)}, {vr(AX+4*k,4)}, {vr(BG+16*t+4*k,4)}, {'0' if k == 0 else vr(d,4)}")
        for n in range(4):
            for t in range(2):
                d = DG + 8*t + 4
                mf.append(f"v_mfma_f32_16x16x32_bf16 {vr(d,4)}, {vr(AX+4*n,4)}, {vr(BU+16*t+4*n,4)}, {'0' if n == 0 else vr(d,4)}")
        for k, m_ in enumerate(mf):
            a(m_)
            if chain and k % 2 == 1:
                a(chain.pop(0))
        a.settle()
        a("s_branch M_gend")
        a.label("M_slow")
    if Cfg.upre:
        assert Cfg.trim and not Cfg.pstat
        lgk(a, 0)
        for k in range(4):
            for t in range(2):
                d = DG + 8*t
                a(f"v_mfma_f32_16x16x32_bf16 {vr(d,4)}, {vr(AX+4*k,4)}, {vr(BG+16*t+4*k,4)}, {'0' if k == 0 else vr(d,4)}")
        for n in range(4):
            a(f"s_cmp_gt_u32 s57, {n}")
            a(f"s_cbranch_scc1 M_uh{n}")
            need(f"M_wu{n}", 10+2*n)
            for t in range(2):
                for u2 in range(2):
                    a(f"ds_read_b64_tr_b16 {vr(BU+16*t+4*n+2*u2,2)}, v{126 if t else 12} offset:{M_U+8192*n+4096*u2}")
            lgk(a, 0)
            a.label(f"M_uh{n}")
            if n == 3:
                stamp(a, 7)
            up_mfma(n, 0)
            up_mfma(n, 1)
        if Cfg.upre in (1, 3):
            stat_use(a)
        if Cfg.upre >= 3:
            a.settle()
            a.label("M_gend")
            a.settle()
    for n in range(4 if not Cfg.upre else 0):
        need(f"M_wu{n}", 10+2*n)
        if n == 3:
            stamp(a, 7)
        for t in range(2):
            for u2 in range(2):
                a(f"ds_read_b64_tr_b16 {vr(BU+16*t+4*n+2*u2,2)}, v{126 if t else 12} offset:{M_U+8192*n+4096*u2}")
        lgk(a, 4)
        if n == 0:
            for k in range(4):
                for t in range(2):
                    d = DG + 8*t
                    a(f"v_mfma_f32_16x16x32_bf16 {vr(d,4)}, {vr(AX+4*k,4)}, {vr(BG+16*t+4*k,4)}, {'0' if k == 0 else vr(d,4)}")
            if Cfg.trim and not Cfg.pstat:
                stat_use(a)
        else:
            up_mfma(n-1, 0)
            up_mfma(n-1, 1)
    if Cfg.pstat:
        a("ds_read_b128 v[116:119], v7 offset:32")
    for t in range(2 if not Cfg.upre else 0):
        lgk(a, 2-2*t + (1 if Cfg.pstat else 0))
        up_mfma(3, t)
    if Cfg.pstat:
        a("s_mov_b32 s62, 0")
        a.label("M_ws")
        a("s_waitcnt lgkmcnt(0)")
        a("v_cmp_eq_u32 vcc, 0, v118")
        a("s_cbranch_vccz M_ws_d")
        a("ds_read_b128 v[116:119], v7 offset:32")
        a("s_add_u32 s62, s62, 1")
        a(f"s_cmp_lt_u32 s62, {SPIN_CAP}")
        a("s_cbranch_scc1 M_ws")
        a.label("M_ws_d")
    a("v_mov_b32 v9, 1")
    for q_, d in ((1, DG+8), (2, DG+4), (3, DG+12)):
        for r in range(2):
            a(f"v_mov_b32_dpp v{DG+r}, v{d+r} quad_perm:[0,1,2,3] row_mask:{hex(1 << q_)} bank_mask:0xf")
    a(f"v_fma_f32 v{DG}, -v{DG+1}, {'v116' if Cfg.pstat else 's54'}, v{DG}")
    a(f"v_mul_f32 v{DG}, v{DG}, {'v117' if Cfg.pstat else 'v124'}")
    a(f"buffer_store_dword v{DG}, v114, s[24:27], s44 offen sc1")
    a("s_mov_b64 exec, 1")
    a("ds_add_u32 v7, v9 offset:12")
    a("s_mov_b64 exec, -1")
    stamp(a, 3)
    for n in range(2):
        if Cfg.dprog or n == 0:
            lds_wait(a, f"M_wd{n}", M_F, 20+4*n if Cfg.dprog else 24, 8, sleep=1-n)
        for t in range(4):
            for u2 in range(2):
                a(f"ds_read_b64_tr_b16 {vr(BG+8*t+4*n+2*u2,2)}, v{120+t} offset:{M_G+16384*n+8192*u2}")
                if t == 3 and n == 1 and u2 == 0:
                    a("s_waitcnt lgkmcnt(4)")
    a("v_lshlrev_b32 v8, 2, v2")
    a("s_waitcnt lgkmcnt(0)")
    a("s_barrier")
    stamp(a, 4)
    a(f"ds_read_b128 {vr(AX,4)}, v14 offset:{M_H}")
    a(f"ds_read_b128 {vr(AX+4,4)}, v14 offset:{M_H+64}")
    DD = BU
    for n in range(2):
        lgk(a, 1-n)
        for t in range(4):
            c = "0" if n == 0 else vr(DD+4*t, 4)
            a(f"v_mfma_f32_16x16x32_bf16 {vr(DD+4*t,4)}, {vr(AX+4*n,4)}, {vr(BG+8*t+4*n,4)}, {c}")
    for t in range(1, 4):
        a(f"v_mov_b32_dpp v{DD}, v{DD+4*t} quad_perm:[0,1,2,3] row_mask:{hex(1 << t)} bank_mask:0xf")
    a(f"buffer_store_dword v{DD}, v8, s[24:27], s45 offen sc1")
    stamp(a, 5)
    a("s_branch L_fin")
    a.label("M_poller")
    if Cfg.pstat:
        key_wait(a, "M_pbox")
        stat_req(a)
    a(f"s_cmp_ge_u32 s28, {Cfg.resn}")
    a("s_cbranch_scc1 M_nores")
    if not Cfg.pstat:
        key_wait(a, "M_pbox")
    a("v_mov_b32 v9, s33")
    a("v_mov_b32 v10, 0")
    a("s_lshr_b32 s34, s28, 5")
    a("s_add_u32 s34, s34, s28")
    a("s_and_b32 s34, s34, 31")
    a("s_lshl_b32 s34, s34, 7")
    a(f"s_add_u32 s34, s34, {WS_RES}")
    a("s_mov_b64 exec, 1")
    a("buffer_store_dwordx2 v[8:9], v10, s[24:27], s34 offen sc1")
    a("s_mov_b64 exec, -1")
    a.label("M_nores")
    if Cfg.pstat:
        a("s_waitcnt lgkmcnt(0)")
        stat_use(a)
        a("v_mov_b32 v120, s54")
        a("v_mov_b32 v122, 1")
        a("v_mov_b32 v121, v124")
        a("s_mov_b64 exec, 1")
        a("ds_write_b128 v7, v[120:123] offset:32")
        a("s_mov_b64 exec, -1")
    K = 16
    a("v_lshlrev_b32 v9, 4, v2")
    a("v_and_b32 v12, 8, v2")
    a("v_lshl_add_u32 v12, v12, 2, v4")
    a("v_and_b32 v11, 3, v2")
    a("v_lshl_add_u32 v12, v11, 3, v12")
    a("v_and_b32 v11, 4, v2")
    a("v_add_lshl_u32 v12, v12, v11, 1")
    a("s_lshl_b32 s44, s29, 12")
    a(f"s_add_u32 s44, s44, {WS_H1}")
    if Cfg.tau:
        a("s_lshl2_add_u32 s46, s29, s30")
        a("s_lshl_b32 s46, s46, 7")
    else:
        a("s_lshl_b32 s46, s28, 7")
    a(f"s_add_u32 s46, s46, {WS_N1}")
    a("s_lshl_b32 s47, s33, 4")
    a("s_lshr_b32 s35, s28, 3")
    a("s_cmp_ge_u32 s35, 14")
    a("s_cselect_b32 s34, 18, 0")
    a("s_add_u32 s35, s35, s34")
    a("s_and_b32 s34, s28, 7")
    a("s_lshl_b32 s34, s34, 8")
    a("s_add_u32 s34, s34, s35")
    a(f"s_lshl2_add_u32 s55, s34, {WS_N2}")
    a("v_lshlrev_b32 v40, 8, v2")
    a("v_mov_b32 v41, s33")
    if Cfg.n1 == 0:
        lds_wait(a, "M_pu", M_F+12, 4, 14)
    else:
        a("s_and_b32 s34, s28, 0xe8")
        a("s_lshl_b32 s34, s34, 5")
        a("s_bfe_u32 s35, s28, 0x10004")
        a("s_lshl3_add_u32 s34, s35, s34")
        a("s_and_b32 s35, s28, 7")
        a("s_add_u32 s34, s34, s35")
        a(f"s_lshl2_add_u32 s54, s34, {WS_N1}")
        a("v_and_b32 v42, 8, v2")
        a("v_add_lshl_u32 v42, v42, v2, 7")
        lds_wait(a, "M_pu", M_F+20, 7, 14)
        lds_wait(a, "M_pv", M_F, Cfg.n1, 14)
        a("s_mov_b64 exec, 0xffff")
        a("buffer_store_dword v41, v42, s[24:27], s54 offen sc1")
        a("s_mov_b64 exec, -1")
        stamp(a, 2)
        a("s_mov_b32 s62, 0")
        a.label("M_hint")
        a("s_load_dwordx16 s[64:79], s[10:11], s46 glc")
        a("s_waitcnt lgkmcnt(0)")
        for k in range(1, 16):
            a(f"s_add_u32 s64, s64, s{64+k}")
        a("s_cmp_eq_u32 s64, s47")
        sspin_tail(a, "M_hint", "M_hint_d", sleep=0)
        a.label("M_hint_d")
    if Cfg.h1d:
        a(f"s_sleep {Cfg.h1d}")
    stamp(a, 3)

    def hint2(p):
        lds_wait(a, "M_pw", M_F, p, 14, sleep=0)
        a("s_mov_b64 exec, 0xf")
        a("buffer_store_dword v41, v40, s[24:27], s55 offen sc1")
        a("s_mov_b64 exec, -1")

    def h1_loads():
        for k in range(4):
            a(f"buffer_load_dwordx4 {vr(K+4*k,4)}, v9, s[24:27], s44 offen offset:{1024*k} sc1")
    if Cfg.n2 == 2:
        h1_loads()
        hint2(Cfg.n2p)
        a("s_mov_b32 s62, 0")
        a("s_waitcnt vmcnt(1)")
        a("s_branch M_ph_c")
    a("s_mov_b32 s62, 0")
    a.label("M_ph")
    h1_loads()
    a("s_waitcnt vmcnt(0)")
    a.label("M_ph_c")
    Q = 32
    for m_ in range(2):
        for x in range(0, 4, 2):
            a(f"v_pk_add_f32 {vr(Q+4*m_+x,2)}, {vr(K+8*m_+x,2)}, {vr(K+8*m_+4+x,2)}")
    for r in range(0, 8, 2):
        a(f"v_permlane16_swap_b32 v{Q+r}, v{Q+r+1}")
    for r in range(0, 8, 2):
        a(f"v_add_f32 v{Q+r}, v{Q+r}, v{Q+r+1}")
    for m_ in range(2):
        a(f"v_permlane32_swap_b32 v{Q+4*m_}, v{Q+4*m_+2}")
    for m_ in range(2):
        a(f"v_add_f32 v{Q+4*m_}, v{Q+4*m_}, v{Q+4*m_+2}")
    a(f"v_cmp_u_f32 vcc, v{Q}, v{Q+4}")
    a(f"v_mul_f32 v{Q+1}, {f2u(-LOG2E)}, v{Q}")
    if Cfg.nohop:
        a(f"v_mov_b32 v{Q}, 1.0")
        a(f"v_mov_b32 v{Q+1}, 1.0")
        a(f"v_mov_b32 v{Q+4}, 1.0")
        a("s_branch M_ph_d")
    a("s_cbranch_vccz M_ph_d")
    a(f"v_max_u32 v{Q+2}, v{K}, v{K+1}")
    for k in range(1, 8):
        a(f"v_max3_u32 v{Q+2}, v{Q+2}, v{K+2*k}, v{K+2*k+1}")
    a(f"v_cmp_eq_u32 vcc, -1, v{Q+2}")
    spin_tail(a, "M_ph", "M_ph_d", sleep=Cfg.h1s)
    a.label("M_ph_d")
    if Cfg.n2 == 1:
        hint2(24)
    stamp(a, 4)
    a(f"v_exp_f32 v{Q+1}, v{Q+1}")
    a(f"v_mul_f32 v{K}, v{Q}, v{Q+4}")
    a(f"v_add_f32 v{Q+1}, 1.0, v{Q+1}")
    a(f"v_rcp_f32 v{Q+1}, v{Q+1}")
    a(f"v_mul_f32 v{K}, v{K}, v{Q+1}")
    a(f"v_cvt_pk_bf16_f32 v{K}, v{K}, v{K}")
    a(f"ds_write_b16 v12, v{K} offset:{M_H}")
    a("s_waitcnt lgkmcnt(0)")
    a("s_barrier")


def build():
    a = Asm()
    a(f"s_cmp_ge_u32 s2, {NWG}")
    a("s_cbranch_scc1 L_end")
    if Cfg.sep:
        a("s_bitcmp1_b32 s2, 7")
        a("s_cbranch_scc1 L_rm")
        a("s_and_b32 s3, s2, 7")
        a("s_bfe_u32 s4, s2, 0x40003")
        a("s_lshl4_add_u32 s3, s4, s3")
        a("s_lshr_b32 s4, s2, 8")
        a("s_lshl3_add_u32 s2, s4, s3")
        a("s_branch L_rd")
        a.label("L_rm")
        a("s_lshr_b32 s4, s2, 8")
        a("s_and_b32 s3, s2, 127")
        a("s_lshl_b32 s4, s4, 7")
        a("s_add_u32 s2, s3, s4")
        a("s_add_u32 s2, s2, 256")
        a.label("L_rd")
    if Cfg.late:
        a("s_and_b32 s3, s2, 7")
        a(f"s_cmp_lg_u32 s3, {Cfg.latej}")
        a("s_cbranch_scc1 L_nl")
        a(f"s_sleep {Cfg.late}")
        a.label("L_nl")
    if Cfg.stamps:
        a("v_mov_b32 v127, 0")
        a("s_memrealtime s[98:99]")
    a("s_load_dwordx2 s[4:5], s[0:1], 0")
    a("s_load_dwordx2 s[10:11], s[0:1], 96")
    a("s_load_dwordx8 s[36:43], s[0:1], 48")
    a("s_load_dwordx2 s[8:9], s[0:1], 80")
    a("v_lshrrev_b32 v1, 6, v0")
    a("v_and_b32 v2, 63, v0")
    a("v_readfirstlane_b32 s3, v1")
    a("v_and_b32 v3, 15, v0")
    a("v_lshrrev_b32 v4, 4, v2")
    if Cfg.e1:
        if Cfg.mpos == 0:
            a("s_cmp_lt_u32 s2, 256")
            a("s_cbranch_scc1 F_entry")
        else:
            a("s_cmp_ge_u32 s2, 256")
            a("s_cbranch_scc1 M_first")
    elif Cfg.mfront:
        a("s_cmp_lt_u32 s2, 256")
        a("s_cbranch_scc1 F_entry")
    elif Cfg.pf and Cfg.pfn and Cfg.tight:
        n = 128 // Cfg.pfn
        assert n == 32
        a("s_cmp_ge_u32 s2, 256")
        a("s_cbranch_scc1 M_first")
        a("s_cmp_lg_u32 s3, 0")
        a("s_cbranch_scc1 L_nopf")
        a("s_getpc_b64 s[6:7]")
        a.label("L_pc")
        a(f"s_mov_b32 m0, {LDS_BYTES - 256}")
        a("s_bfe_u32 s34, s2, 0x20003")
        a("s_lshl_b32 s34, s34, 12")
        a("v_lshl_add_u32 v8, v0, 7, s34")
        a("v_min_u32 v8, L_end-L_pc, v8")
        a("s_mov_b32 exec_hi, 0")
        a("global_load_lds_dword v8, s[6:7]")
        a("s_mov_b32 exec_hi, -1")
        a.label("L_nopf")
    elif Cfg.pf and Cfg.pfn:
        n = 128 // Cfg.pfn
        a("s_cmp_ge_u32 s2, 256")
        a("s_cbranch_scc1 M_first" if Cfg.lfirst else "s_cbranch_scc1 M_entry")
        a(f"s_cmp_ge_u32 s3, {max(1, n // 64)}")
        a("s_cbranch_scc1 L_nopf")
        a("s_getpc_b64 s[6:7]")
        a.label("L_pc")
        a(f"s_mov_b32 m0, {LDS_BYTES - 256}")
        a(f"s_bfe_u32 s34, s2, {hex(3 + ((Cfg.pfn.bit_length() - 1) << 16))}" if Cfg.pfn > 1 else "s_mov_b32 s34, 0")
        a(f"s_mul_i32 s34, s34, {n*128}")
        a("v_lshl_add_u32 v8, v0, 7, s34")
        a("v_min_u32 v8, L_end-L_pc, v8")
        a("v_mov_b32 v9, s7")
        a("v_add_co_u32 v8, vcc, s6, v8")
        a("v_addc_co_u32 v9, vcc, 0, v9, vcc")
        if n < 64:
            a(f"s_mov_b64 exec, {hex((1 << n) - 1)}")
        a("global_load_lds_dword v[8:9], off")
        if n < 64:
            a("s_mov_b64 exec, -1")
        a.label("L_nopf")
    elif Cfg.pf:
        a("s_cmp_gt_u32 s3, 1")
        a("s_cbranch_scc1 L_nopf")
        a("s_getpc_b64 s[6:7]")
        a.label("L_pc")
        a(f"s_mov_b32 m0, {LDS_BYTES - 256}")
        a("v_lshlrev_b32 v8, 7, v0")
        a("v_min_u32 v8, L_end-L_pc, v8")
        a("v_mov_b32 v9, s7")
        a("v_add_co_u32 v8, vcc, s6, v8")
        a("v_addc_co_u32 v9, vcc, 0, v9, vcc")
        a("global_load_lds_dword v[8:9], off")
        a.label("L_nopf")
    if not Cfg.e1 and not Cfg.mfront and not Cfg.tight:
        a("s_cmp_ge_u32 s2, 256")
        a("s_cbranch_scc1 M_first" if Cfg.lfirst else "s_cbranch_scc1 M_entry")
    fft_role(a)
    moe_role(a)
    a.label("L_fin")
    if Cfg.stamps:
        a("s_waitcnt vmcnt(0)")
        stamp(a, 14)
        a("s_mov_b64 exec, 0xffff")
        a("s_lshl3_add_u32 s34, s2, s3")
        a("s_lshl_b32 s34, s34, 6")
        a(f"s_add_u32 s34, s34, {WS_TS}")
        a("v_lshlrev_b32 v24, 2, v2")
        a("buffer_store_dword v127, v24, s[24:27], s34 offen")
    a.label("L_end")
    a("s_endpgm")
    if Cfg.stamps:
        out, roles = [], 0
        armed = True
        for ln in a.lines:
            out.append(ln)
            if ln in ("M_entry:", "M_loader:", "M_first:", "F_entry:"):
                armed = True
            if armed and ln == "s_waitcnt lgkmcnt(0)":
                out.append("v_writelane_b32 v127, s98, 0")
                armed = False
        a.lines = out
    s = HEADER
    s += "; cfg " + " ".join(sys.argv[2:]) + "\n"
    s += DOC
    s += f"; @launch grid=({NWG},1,1) block=(512,1,1) lds={LDS_BYTES}\n"
    s += '.amdgcn_target "amdgcn-amd-amdhsa--gfx950"\n'
    s += kernel_head(NAME) + a.finalize(True) + kernel_desc(NAME, 128)
    return s


if __name__ == "__main__":
    out = sys.argv[1]
    for kv in sys.argv[2:]:
        k, v = kv.split("=")
        setattr(Cfg, k, type(getattr(Cfg, k))(int(v)) if not isinstance(getattr(Cfg, k), str) else v.replace("+", " "))
    open(out, "w").write(build())
```
